```python
import torch

def _softmax(x, axis=-1):
    return torch.softmax(x, dim=axis)
def _gelu(x):
    return torch.nn.functional.gelu(x, approximate="tanh")
def _silu(x):
    return torch.nn.functional.silu(x)
def _sigmoid(x):
    return torch.sigmoid(x)
def _layernorm(x, axis=-1, eps=1e-5):
    m = x.mean(dim=axis, keepdim=True)
    v = x.var(dim=axis, keepdim=True, unbiased=False)
    return (x - m) / torch.sqrt(v + eps)
def _scatter_add(tgt, idx, src, axis=0):
    return tgt.clone().index_add_(axis, idx, src)
def _segment_sum(src, seg, n):
    out = torch.zeros((n,) + src.shape[1:], dtype=src.dtype)
    return out.index_add_(0, seg, src)
def _pad(x, pw):
    flat = tuple(v for pair in reversed(pw) for v in pair)
    return torch.nn.functional.pad(x, flat)

kernel_name = 'sequential_preLN__sliding_block__dense_activation_silu__prompt'

def setup_inputs():

    _w = (lambda a: (lambda t: t.to(torch.bfloat16) if t.is_floating_point() else t)(torch.as_tensor(a)))
    def _A_setup():
        B, S, D = 1, 2048, 512
        return {
            "x": _w((lambda *s: torch.randn(*s, dtype=torch.bfloat16) * 0.05)(B, S, D)),
            "wqkv": _w((lambda *s: torch.randn(*s, dtype=torch.bfloat16) * 0.05)(D, 3 * D)),
            "wo": _w((lambda *s: torch.randn(*s, dtype=torch.bfloat16) * 0.05)(D, D)),
        }
    _A_in = _A_setup()

    def _B_setup():
        B, S, D, F = 1, 2048, 512, 1792
        return {
            "x": _w((lambda *s: torch.randn(*s, dtype=torch.bfloat16) * 0.05)(B, S, D)),
            "w1": _w((lambda *s: torch.randn(*s, dtype=torch.bfloat16) * 0.8)(D, F) * (D ** -0.5)),
            "w2": _w((lambda *s: torch.randn(*s, dtype=torch.bfloat16) * 0.8)(F, D) * (F ** -0.5)),
        }
    _B_in = _B_setup()

    return {
        "A_x": _A_in["x"],
        "A_wqkv": _A_in["wqkv"],
        "A_wo": _A_in["wo"],
        "B_x": _B_in["x"],
        "B_w1": _B_in["w1"],
        "B_w2": _B_in["w2"],
    }

def reference(A_x, A_wqkv, A_wo, B_x, B_w1, B_w2):
    def _A_ref(x, wqkv, wo):
        B, S, D = x.shape
        H = 32; Dh = D // H; W = 256
        qkv = (lambda x, *d: x.permute(*d))((x @ wqkv).reshape(B, S, 3, H, Dh), 2, 0, 3, 1, 4)
        q, k, v = qkv[0], qkv[1], qkv[2]
        scores = torch.einsum("bhqd,bhkd->bhqk", q, k) * (Dh ** -0.5)
        idx = torch.arange(S)
        mask = (idx[:, None] - idx[None, :] >= 0) & (idx[:, None] - idx[None, :] < W)
        scores = torch.where(mask[None, None], scores, -1e9)
        p = _softmax(scores, axis=-1)
        o = torch.einsum("bhqk,bhkd->bhqd", p, v)
        return (lambda x, *d: x.permute(*d))(o, 0, 2, 1, 3).reshape(B, S, D) @ wo

    def _B_ref(x, w1, w2):
        h = torch.einsum("bsd,df->bsf", x, w1)
        h = _silu(h)
        out = torch.einsum("bsf,fd->bsd", h, w2)
        return out

    x = A_x
    h = x + _A_ref(_layernorm(x, axis=-1), A_wqkv, A_wo)
    h2 = h + _B_ref(_layernorm(h, axis=-1), B_w1, B_w2)
    return h2
```

```python
import re

REG_RE = re.compile(r'(?<![\w.])([vas])(?:(\d+)|\[(\d+):(\d+)\])(?![\w])')
TRANS = ('v_exp_f32', 'v_log_f32', 'v_rcp_f32', 'v_rsq_f32', 'v_sqrt_f32', 'v_sin_f32', 'v_cos_f32')


def regs_of(op):
    out = []
    for m in REG_RE.finditer(op):
        k = m.group(1)
        if m.group(2) is not None:
            out.append((k, int(m.group(2))))
        else:
            out.extend((k, i) for i in range(int(m.group(3)), int(m.group(4)) + 1))
    if re.search(r'(?<![\w])vcc(?![\w])', op):
        out += [('s', 'vcc')]
    if re.search(r'(?<![\w])exec(?![\w])', op):
        out += [('s', 'exec')]
    if re.search(r'(?<![\w])m0(?![\w])', op):
        out += [('s', 'm0')]
    return out


def split_ops(s):
    ops, depth, cur = [], 0, ''
    for ch in s:
        if ch in '[(':
            depth += 1
        if ch in '])':
            depth -= 1
        if ch == ',' and depth == 0:
            ops.append(cur.strip())
            cur = ''
        else:
            cur += ch
    if cur.strip():
        ops.append(cur.strip())
    return ops


class Ins:
    __slots__ = ('text', 'mn', 'kind', 'defs', 'uses', 'srcc', 'passes', 'wait_vm', 'wait_lgkm', 'wide', 'seq',
                 'raw', 'comment')

    def __init__(self, text, raw=False):
        self.text = text
        self.raw = raw
        self.defs, self.uses, self.srcc = set(), set(), set()
        self.kind = 'other'
        self.passes = 0
        self.wait_vm = []
        self.wait_lgkm = []
        self.wide = False
        self.seq = None
        self.comment = ''
        t = text.split(';')[0].strip()
        if not t or raw:
            self.mn = ''
            self.kind = 'raw'
            return
        if t.endswith(':'):
            self.mn = ''
            self.kind = 'label'
            return
        parts = t.split(None, 1)
        mn = parts[0]
        self.mn = mn
        rest = parts[1] if len(parts) > 1 else ''
        ops = split_ops(rest)
        R = [regs_of(o) for o in ops]
        allr = [r for x in R for r in x]
        if mn.startswith('v_mfma'):
            self.kind = 'mfma'
            self.passes = 8 if '32x32' in mn else 4 if '16x16' in mn else 2
            self.defs = set(R[0])
            self.uses = set(R[1] + R[2] + R[3])
            self.srcc = set(R[3])
        elif mn.startswith(('buffer_load', 'global_load')):
            if re.search(r'\blds\b', rest) or mn.startswith('global_load_lds'):
                self.kind = 'dma'
                self.uses = set(allr) | {('s', 'm0')}
            else:
                self.kind = 'vmload'
                self.defs = set(R[0])
                self.uses = set(r for x in R[1:] for r in x)
        elif mn.startswith(('buffer_store', 'global_store')):
            self.kind = 'vmstore'
            self.uses = set(allr)
            self.wide = mn.endswith(('x3', 'x4'))
            if mn.startswith('buffer_store'):
                self.srcc = set(R[0])
            else:
                self.srcc = set(R[1])
        elif mn.startswith('ds_read'):
            self.kind = 'dsread'
            self.defs = set(R[0])
            self.uses = set(r for x in R[1:] for r in x)
        elif mn.startswith(('ds_write', 'ds_add')):
            self.kind = 'dswrite'
            self.uses = set(allr)
        elif mn.startswith('s_load'):
            self.kind = 'smem'
            self.defs = set(R[0])
            self.uses = set(R[1])
        elif mn.startswith(('s_memtime', 's_memrealtime')):
            self.kind = 'smem'
            self.defs = set(R[0])
        elif mn.startswith('v_'):
            self.kind = 'trans' if mn.replace('_e32', '').replace('_e64', '') in TRANS else 'valu'
            if mn.startswith('v_permlane'):
                self.defs = set(R[0] + R[1])
                self.uses = set(R[0] + R[1])
            elif mn.startswith(('v_fmac', 'v_dot2c')):
                self.defs = set(R[0])
                self.uses = set(allr)
            elif mn.startswith(('v_add_co', 'v_sub_co', 'v_addc_co')):
                self.defs = set(R[0] + R[1])
                self.uses = set(r for x in R[2:] for r in x)
            elif mn.startswith('v_writelane'):
                self.defs = set(R[0])
                self.uses = set(allr)
            elif mn == 'v_nop':
                pass
            else:
                self.defs = set(R[0])
                self.uses = set(r for x in R[1:] for r in x)
        elif mn.startswith('s_'):
            if mn in ('s_waitcnt', 's_nop', 's_barrier', 's_endpgm', 's_sleep', 's_setprio'):
                self.kind = mn
            elif mn.startswith(('s_cbranch', 's_branch')):
                self.kind = 'branch'
            elif mn.startswith('s_cmp') or mn.startswith('s_bitcmp'):
                self.kind = 'salu'
                self.uses = set(allr)
            else:
                self.kind = 'salu'
                self.defs = set(R[0])
                self.uses = set(r for x in R[1:] for r in x)
                if 'saveexec' in mn:
                    self.defs.add(('s', 'exec'))
        else:
            raise ValueError('unknown instruction: ' + text)


class Emitter:
    def __init__(self, name='main', conservative_entry=False):
        self.ins = []
        self.name = name
        self.pend_vm = []
        self.pend_lgkm = []

    def __call__(self, text, wait_vm=None, wait_lgkm=None):
        i = Ins(text)
        i.wait_vm = list(self.pend_vm) + list(wait_vm or [])
        i.wait_lgkm = list(self.pend_lgkm) + list(wait_lgkm or [])
        self.pend_vm, self.pend_lgkm = [], []
        self.ins.append(i)
        return i

    def raw(self, text):
        i = Ins(text, raw=True)
        self.ins.append(i)
        return i

    def comment(self, text):
        self.raw('; ' + text)

    def wait(self, vm=None, lgkm=None):
        self.pend_vm += list(vm or [])
        self.pend_lgkm += list(lgkm or [])

    def drained(self, vm=True, lgkm=True):
        t = 's_waitcnt' + (' vmcnt(0)' if vm else '') + (' lgkmcnt(0)' if lgkm else '')
        return self(t)

    def finalize(self):
        out = self._waits(self.ins)
        out = self._hazards(out)
        return out

    def _waits(self, ins):
        out = []
        vm_seq = 0
        vm_done = 0
        lg_seq = 0
        lg_done = 0
        smem_pending = set()
        pend_vm = {}
        pend_lg = {}
        for i in ins:
            if i.kind in ('raw',):
                out.append(i)
                continue
            if i.kind == 's_waitcnt':
                m = re.search(r'vmcnt\((\d+)\)', i.text)
                if m:
                    vm_done = max(vm_done, vm_seq - int(m.group(1)))
                m = re.search(r'lgkmcnt\((\d+)\)', i.text)
                if m:
                    n = int(m.group(1))
                    if n == 0:
                        smem_pending = set()
                        lg_done = lg_seq
                    elif not smem_pending:
                        lg_done = max(lg_done, lg_seq - n)
                out.append(i)
                continue
            need_vm = 0
            need_lg = 0
            need_smem = False
            touched = i.defs | i.uses
            for r in touched:
                if r in pend_vm and pend_vm[r] > vm_done:
                    need_vm = max(need_vm, pend_vm[r])
                if r in pend_lg and pend_lg[r] > lg_done:
                    need_lg = max(need_lg, pend_lg[r])
                if r in smem_pending:
                    need_smem = True
            for t in i.wait_vm:
                assert t.seq is not None, 'wait on an op that was not emitted before: ' + t.text
                if t.seq > vm_done:
                    need_vm = max(need_vm, t.seq)
            for t in i.wait_lgkm:
                assert t.seq is not None
                if t.seq > lg_done:
                    need_lg = max(need_lg, t.seq)
            w = []
            if need_vm:
                n = min(vm_seq - need_vm, 63)
                w.append('vmcnt(%d)' % n)
                vm_done = max(vm_done, vm_seq - n)
            if need_smem or (need_lg and smem_pending):
                w.append('lgkmcnt(0)')
                smem_pending = set()
                lg_done = lg_seq
            elif need_lg:
                n = min(lg_seq - need_lg, 15)
                w.append('lgkmcnt(%d)' % n)
                lg_done = max(lg_done, lg_seq - n)
            if w:
                out.append(Ins('s_waitcnt ' + ' '.join(w)))
            if i.kind in ('vmload', 'vmstore', 'dma'):
                vm_seq += 1
                i.seq = vm_seq
                for r in i.defs:
                    pend_vm[r] = vm_seq
            elif i.kind in ('dsread', 'dswrite'):
                lg_seq += 1
                i.seq = lg_seq
                for r in i.defs:
                    pend_lg[r] = lg_seq
            elif i.kind == 'smem':
                smem_pending |= i.defs
                if not i.defs:
                    smem_pending.add(('x', 0))
            out.append(i)
        return out

    def _hazards(self, ins):
        out = []
        hist = []

        def dist_needed(i):
            need = 0
            d = 0
            for p, st in reversed(hist):
                if d >= 20:
                    break
                req = hazard(p, i)
                if req > d:
                    need = max(need, req - d)
                d += st
            return need

        for i in ins:
            if i.kind == 'raw':
                out.append(i)
                continue
            if i.kind == 'label':
                out.append(i)
                continue
            n = dist_needed(i)
            while n > 0:
                k = min(n, 16)
                nop = Ins('s_nop %d' % (k - 1))
                out.append(nop)
                hist.append((nop, k))
                n -= k
            out.append(i)
            st = 1
            if i.kind == 's_nop':
                st = int(i.text.split()[1]) + 1
            hist.append((i, st))
            if len(hist) > 40:
                hist = hist[-30:]
        return out

    def text(self):
        lines = []
        for i in self.finalize():
            if i.kind == 'label' or i.kind == 'raw':
                lines.append(i.text)
            else:
                lines.append('    ' + i.text)
        return '\n'.join(lines) + '\n'


def vregs(s):
    return {r for r in s if r[0] in 'va'}


def sregs(s):
    return {r for r in s if r[0] == 's'}


def hazard(p, c):
    req = 0
    pv = p.kind in ('valu', 'trans')
    cv = c.kind in ('valu', 'trans')
    cmem = c.kind in ('vmload', 'vmstore', 'dma', 'dsread', 'dswrite')
    if pv:
        pd = vregs(p.defs)
        ps = sregs(p.defs)
        if c.kind == 'mfma' and pd & c.uses:
            req = max(req, 2)
        if c.kind == 'mfma' and ('s', 'exec') in ps:
            req = max(req, 4)
        if cv and c.mn.startswith('v_permlane') and pd & c.uses:
            req = max(req, 2)
        if cv and c.mn.startswith(('v_readfirstlane', 'v_readlane')) and pd & c.uses:
            req = max(req, 1)
        if cv and 'dpp' in c.text and pd & c.uses:
            req = max(req, 2)
        if p.kind == 'trans' and cv and pd & (c.uses | c.defs):
            req = max(req, 1)
        if cv and ps & c.uses:
            req = max(req, 2)
        if c.kind in ('vmload', 'vmstore', 'dma') and ps & c.uses:
            req = max(req, 5)
        if c.kind in ('salu', 'branch') and ps & c.uses:
            req = max(req, 1)
        if c.kind == 'branch' and ('s', 'vcc') in ps and 'vcc' in c.mn:
            req = max(req, 1)
    if p.kind == 'salu' and ('s', 'm0') in p.defs and c.kind == 'dma':
        req = max(req, 1)
    if p.kind == 'vmstore' and p.wide:
        if cv and p.srcc & c.defs:
            req = max(req, 2)
        elif p.srcc & c.defs:
            req = max(req, 1)
    if p.kind == 'mfma':
        idx = {2: 0, 4: 1, 8: 2}[p.passes]
        D = p.defs
        if c.kind == 'mfma':
            ab = c.uses - c.srcc if not (c.srcc & (c.uses - c.srcc)) else c.uses
            ops = split_ops(c.text.split(None, 1)[1])
            abr = set(regs_of(ops[1]) + regs_of(ops[2]))
            if D & abr:
                req = max(req, (5, 8, 12)[idx])
            if D & c.srcc:
                if D == c.srcc and p.passes == c.passes:
                    req = max(req, (2, 0, 0)[idx])
                else:
                    req = max(req, (4, 6, 10)[idx])
            elif D & c.defs:
                req = max(req, (4, 6, 10)[idx])
        else:
            if (cv or cmem) and D & (c.uses | c.defs):
                req = max(req, (5, 8, 12)[idx])
            if (cv or c.kind in ('vmload', 'dsread')) and p.srcc & c.defs:
                req = max(req, (1, 3, 7)[idx])
    return req


class Regs:
    def __init__(self, kind, lo, hi):
        self.kind = kind
        self.free = [True] * hi
        for i in range(lo):
            self.free[i] = False
        self.hi = hi
        self.names = {}
        self.high = lo

    def alloc(self, name, n=1, align=1, at=None):
        if at is not None:
            assert all(self.free[at:at + n]), (name, at, [k for k, v in self.names.items()])
            base = at
        else:
            base = None
            rng = range(0, getattr(self, 'small_hi', self.hi) - n + 1)
            for b in rng:
                if b % align == 0 and all(self.free[b:b + n]):
                    base = b
                    break
            assert base is not None, 'out of %s registers for %s (live: %s)' % (self.kind, name, self.names)
        for i in range(base, base + n):
            self.free[i] = False
        assert name not in self.names, name
        self.names[name] = (base, n)
        self.high = max(self.high, base + n)
        return R(self.kind, base, n)

    def release(self, *names):
        for name in names:
            base, n = self.names.pop(name)
            for i in range(base, base + n):
                self.free[i] = True


class R:
    def __init__(self, kind, base, n):
        self.kind, self.base, self.n = kind, base, n

    def __str__(self):
        if self.n == 1:
            return '%s%d' % (self.kind, self.base)
        return '%s[%d:%d]' % (self.kind, self.base, self.base + self.n - 1)

    def __getitem__(self, i):
        assert 0 <= i < self.n, (i, self.n)
        return R(self.kind, self.base + i, 1)

    def sub(self, i, n):
        assert 0 <= i and i + n <= self.n, (i, n, self.n)
        return R(self.kind, self.base + i, n)
```

```python
import sys
import struct
from emit import Emitter, Regs, R, Ins

KNAME = 'sequential_preLN__sliding_block__dense_activation_silu__prompt_kernel'

WS_EPOCH = 0
WS_XCC = 0x1000
WS_KVF = 0x10000
WS_W2F = 0x30000
WS_OF = 0x32000
WS_HF = 0x33000
WS_H1F = 0x36000
WS_CSP = 0x40000
WS_ST2 = 0x60000
WS_KV = 0x100000
WS_W2P = 0x500000
WS_H1 = 0x700000
WS_STAMP = 0xF00000
WS_DUMP = 0x1000000
WS_BYTES = 0x10000000
OOB = 0x20000000
H1_GT = 112 * 1024

K = 1024
L_ST = 0
L_CS = 512
L_CSW1 = 1280
L_RS = 2048
L_QX = 8 * K
L_RING = 16 * K
SLOT = 24 * K
L_WQ = 64 * K
L_WO = 16 * K
L_W1A = 80 * K
L_W1B = 16 * K
L_SIDE = 128 * K
L_KX = 144 * K
L_VX = 152 * K
L_RED3 = 144 * K
L_RED5 = 80 * K
LDS_BYTES = 160 * K

LOG2E = 1.4426950408889634
SPIN_LIMIT = 400000


def f2u(x):
    return struct.unpack('<I', struct.pack('<f', x))[0]


def hexf(x):
    return '0x%08x' % f2u(x)


def p5_table():
    tab = []
    for kq in range(4):
        by = {t: [jj for jj in range(14) if (kq + jj) % 4 == t] for t in range(4)}
        early = sorted([(jj, t) for t in (0, 1) for jj in by[t]], key=lambda x: (x[1], x[0]))
        mid = [(jj, 2) for jj in by[2]]
        late = [(jj, 3) for jj in by[3]]
        first, extra = early[:6], early[6:]
        while len(mid) < 4:
            mid.insert(0, extra.pop(0))
        while len(late) < 4:
            late.insert(0, extra.pop(0))
        assert not extra
        tab.append(first + mid + late)
    return tab


class Gen:
    def __init__(self, opts):
        self.o = opts
        self.e = Emitter()
        self.tail = []
        self.V = Regs('v', 1, 256)
        self.V.small_hi = 48
        self.A = Regs('a', 0, 256)
        self.nstamp = 0
        self.npoll = 0
        self.nslow = 0
        self.stamp_names = []

    def stamp(self, name):
        if not self.o.get('stamps'):
            return
        k = self.nstamp
        assert k < 28
        if k > 0:
            self.e('v_writelane_b32 %s, s%d, %d' % (self.vstamp, 72 + 2 * ((k - 1) & 1), k - 1))
        self.e('s_memtime s[%d:%d]' % (72 + 2 * (k & 1), 73 + 2 * (k & 1)))
        self.stamp_names.append(name)
        self.nstamp += 1

    def poll(self, voff, soff, vtmp, mask=None, width=1, imm=0, xor_lt=None):
        e = self.e
        k = self.npoll
        self.npoll += 1
        e('L_poll%d:' % k)
        if width == 1:
            e('buffer_load_dword %s, %s, s[32:35], %s offen offset:%d sc1' % (vtmp[0], voff, soff, imm))
        else:
            e('buffer_load_dwordx2 %s, %s, s[32:35], %s offen offset:%d sc1' % (vtmp.sub(0, 2), voff, soff, imm))
        e('s_add_u32 s96, s96, 1')
        e('s_cmp_gt_u32 s96, s97')
        e('s_cbranch_scc1 L_pdone%d' % k)
        e('s_waitcnt vmcnt(0)')
        if xor_lt is not None:
            e('v_xor_b32 %s, s6, %s' % (vtmp[0], vtmp[0]))
            e('v_cmp_le_u32 vcc, %d, %s' % (xor_lt, vtmp[0]))
        elif width == 1:
            e('v_cmp_ne_u32 vcc, s6, %s' % vtmp[0])
        else:
            e('v_xor_b32 %s, s6, %s' % (vtmp[0], vtmp[0]))
            e('v_xor_b32 %s, s6, %s' % (vtmp[1], vtmp[1]))
            e('v_or_b32 %s, %s, %s' % (vtmp[0], vtmp[0], vtmp[1]))
            e('v_cmp_ne_u32 vcc, 0, %s' % vtmp[0])
        if mask is not None:
            e('s_and_b64 vcc, vcc, %s' % mask)
        e('s_cbranch_vccnz L_poll%d' % k)
        e('L_pdone%d:' % k)
        e('s_waitcnt vmcnt(0)')

    def mode_stores(self, stores):
        e = self.e
        if self.o.get('force_sc1'):
            return [e(s + ' sc1') for s in stores]
        k = self.nslow
        self.nslow += 1
        e('s_cmp_eq_u32 s7, 0')
        e('s_cbranch_scc1 L_slow%d' % k)
        toks = [e(s) for s in stores]
        e('L_back%d:' % k)
        t = 'L_slow%d:\n    s_nop 4\n' % k
        for s in stores:
            t += '    ' + s + ' sc1\n'
        t += '    s_nop 1\n    s_branch L_back%d\n' % k
        self.tail.append(t)
        return toks

    @staticmethod
    def weave(e, main, fill, per=None, lead=0):
        def put(x):
            if callable(x):
                x()
            else:
                e(x)
        fill = list(fill)
        n = len(main)
        pos = 0
        for k, m in enumerate(main):
            put(m)
            if per is None:
                upto = (len(fill) * (k + 1) + n - 1) // n
            else:
                upto = min(len(fill), pos + (per[k] if isinstance(per, (list, tuple)) else per))
            while pos < upto:
                put(fill[pos])
                pos += 1
        while pos < len(fill):
            put(fill[pos])
            pos += 1

    def dump_v(self, regs, slot, nregs_total=None):
        e = self.e
        e('s_lshl_b32 s98, s2, 2')
        e('s_add_u32 s98, s98, s3')
        e('s_lshl_b32 s98, s98, 14')
        e('s_add_u32 s98, s98, 0x%x' % (WS_DUMP + slot * 0x1000000))
        t = self.V.alloc('dump_t', 2)
        e('v_lshlrev_b32 %s, 2, %s' % (t[0], self.vlane))
        for k, r in enumerate(regs):
            src = r
            if r.kind == 'a':
                e('v_accvgpr_read_b32 %s, %s' % (t[1], r))
                src = t[1]
            e('buffer_store_dword %s, %s, s[32:35], s98 offen offset:%d' % (src, t[0], (k % 16) * 256))
            if k % 16 == 15:
                e('s_add_u32 s98, s98, 4096')
            e('s_waitcnt vmcnt(0)')
        self.V.release('dump_t')

    def build(self):
        self.prologue()
        self.p1_kv()
        self.p1_q()
        self.attention()
        self.p3()
        self.p4()
        self.p5()
        self.finish()
        return self.text()

    def prologue(self):
        e, V, A = self.e, self.V, self.A
        e('s_cmp_ge_u32 s2, 256')
        e('s_cbranch_scc1 L_end')
        e('s_load_dwordx16 s[40:55], s[0:1], 0')
        e('s_load_dwordx2 s[32:33], s[0:1], 64')
        if self.o.get('stamps'):
            e('s_memrealtime s[94:95]')
            self.vstamp = R('v', 0, 1)
        self.stamp('start')
        self.vlane = V.alloc('lane', at=1)
        self.vflag = V.alloc('flagoff', at=3)
        self.vtag = V.alloc('tag', at=12)
        self.vh = V.alloc('h', at=13)
        self.hz = V.alloc('hz', at=14)
        self.vout = V.alloc('vout', at=15)
        self.vw2 = V.alloc('vw2', 2, at=16)
        V.alloc('resv_vw1', 4, at=18)
        self.vl16 = V.alloc('l16', at=2)
        vlane, vl16 = self.vlane, self.vl16
        t = V.alloc('pt', 8, 2, at=4)
        e('v_lshrrev_b32 %s, 6, v0' % t[0])
        e('v_and_b32 %s, 63, v0' % vlane)
        e('v_readfirstlane_b32 s3, %s' % t[0])
        if self.o.get('spread'):
            e('s_lshr_b32 s4, s2, 3')
            e('s_and_b32 s5, s2, 7')
        else:
            e('s_and_b32 s4, s2, 7')
            e('s_lshl_b32 s4, s4, 2')
            e('s_lshr_b32 s5, s2, 6')
            e('s_add_u32 s4, s4, s5')
            e('s_bfe_u32 s5, s2, 0x30003')
        e('s_getpc_b64 s[92:93]')
        e('L_pc:')
        e('s_and_b32 s58, s2, 8')
        e('s_lshr_b32 s58, s58, 1')
        e('s_add_u32 s58, s58, s3')
        e('s_lshl_b32 s58, s58, 13')
        e('v_lshl_add_u32 %s, %s, 7, s58' % (t[1], vlane))
        e('v_min_u32 %s, L_codeend-L_pc-4, %s' % (t[1], t[1]))
        self.vdummy = V.alloc('dummy')
        e('global_load_dword %s, %s, s[92:93]' % (self.vdummy, t[1]))
        e('s_lshl_b32 s59, s3, 6')
        e('s_add_u32 s92, s92, s59')
        e('s_addc_u32 s93, s93, 0')
        e('s_add_u32 s92, s92, L_tab-L_pc')
        e('s_addc_u32 s93, s93, 0')
        e('s_load_dwordx16 s[56:71], s[92:93], 0')
        e('v_lshlrev_b32 %s, 4, %s' % (vl16, vlane))
        self.vxA, self.vxB = V.alloc('xA'), V.alloc('xB')
        self.vwA, self.vwB, self.vwQ = V.alloc('wA'), V.alloc('wB'), V.alloc('wQ')
        self.vsw = V.alloc('swz')
        e('v_lshrrev_b32 %s, 3, %s' % (t[3], vlane))
        e('v_and_b32 %s, 7, %s' % (t[4], vlane))
        e('v_lshrrev_b32 %s, 4, %s' % (t[5], vlane))
        e('s_lshl_b32 s98, s4, 6')
        e('s_lshl_b32 s99, s3, 4')
        e('s_add_u32 s98, s98, s99')
        e('v_add_u32 %s, s98, %s' % (t[6], t[3]))
        e('v_lshlrev_b32 %s, 10, %s' % (t[6], t[6]))
        e('v_xor_b32 %s, %s, %s' % (t[7], t[4], t[5]))
        e('v_lshl_add_u32 %s, %s, 4, %s' % (self.vxA, t[7], t[6]))
        e('v_xor_b32 %s, 4, %s' % (t[7], t[7]))
        e('v_lshl_add_u32 %s, %s, 4, %s' % (self.vxB, t[7], t[6]))
        e('v_add_u32 %s, %d, %s' % (self.vxB, 8192 - 3072, self.vxB))
        e('v_and_b32 %s, 1, %s' % (t[5], t[5]))
        e('v_lshlrev_b32 %s, 2, %s' % (t[5], t[5]))
        e('v_xor_b32 %s, %s, %s' % (t[4], t[4], t[5]))
        e('v_lshlrev_b32 %s, 4, %s' % (self.vsw, t[4]))
        e('v_add_u32 %s, s99, %s' % (t[6], t[3]))
        e('v_mul_u32_u24 %s, 3072, %s' % (t[6], t[6]))
        e('s_lshl_b32 s98, s5, 7')
        e('v_add3_u32 %s, %s, s98, %s' % (self.vwA, t[6], self.vsw))
        e('v_add_u32 %s, %d, %s' % (self.vwB, 24576 + 1024, self.vwA))
        e('v_add_u32 %s, %d, %s' % (self.vwQ, 24576 - 1024, self.vwA))
        e('s_mul_i32 s100, s3, 6144')
        e('s_lshl_b32 s101, s3, 11')
        for base, src, nbytes in ((8, 40, 2048 * 1024), (12, 42, 512 * 3072)):
            e('s_mov_b32 s%d, s%d' % (base, src))
            e('s_and_b32 s%d, s%d, 0xffff' % (base + 1, src + 1))
            e('s_mov_b32 s%d, 0x%x' % (base + 2, nbytes))
            e('s_mov_b32 s%d, 0x20000' % (base + 3))
        self.kv_dma = {}
        for c in range(6):
            self.issue_chunk(c)
        for base, src, nbytes in ((16, 44, 512 * 1024), (20, 48, 512 * 3584), (24, 50, 1792 * 1024),
                                  (28, 52, 2048 * 1024)):
            e('s_mov_b32 s%d, s%d' % (base, src))
            e('s_and_b32 s%d, s%d, 0xffff' % (base + 1, src + 1))
            e('s_mov_b32 s%d, 0x%x' % (base + 2, nbytes))
            e('s_mov_b32 s%d, 0x20000' % (base + 3))
        e('s_and_b32 s33, s33, 0xffff')
        e('s_mov_b32 s34, 0x%x' % WS_BYTES)
        e('s_mov_b32 s35, 0x20000')
        e('s_mov_b64 s[36:37], s[54:55]')
        e('s_mov_b32 s38, 0x0000ffff')
        e('s_mov_b32 s39, 0x0000ffff')
        e('s_mov_b32 s96, 0')
        e('s_mov_b32 s97, %d' % SPIN_LIMIT)
        e('v_cmp_eq_u32 vcc, 0, %s' % vlane)
        e('v_mov_b32 %s, 0x%x' % (t[0], OOB))
        e('v_cndmask_b32 %s, %s, 0, vcc' % (self.vflag, t[0]))
        e('s_or_b32 s98, s2, s3')
        e('s_cmp_lg_u32 s98, 0')
        e('s_cbranch_scc1 L_notag')
        e('s_load_dword s98, s[32:33], 0')
        e('s_waitcnt lgkmcnt(0)')
        e('s_mul_i32 s98, s98, 0x9E3779B1')
        e('s_add_u32 s98, s98, 0x7F4A7C15')
        e('s_cmp_lt_u32 s98, 16')
        e('s_cselect_b32 s98, 0x2545F491, s98')
        e('v_mov_b32 %s, s98' % t[0])
        e('v_mov_b32 %s, 0' % t[1])
        e('s_mov_b64 exec, 1')
        e.raw('    global_store_dword %s, %s, s[36:37] sc1' % (t[1], t[0]))
        e.raw('    buffer_store_dword %s, %s, s[32:35], 0 offen sc1' % (t[0], t[1]))
        e('s_mov_b64 exec, -1')
        e('s_nop 1')
        e('L_notag:')
        e('v_mov_b32 %s, 0' % t[4])
        e('v_mov_b32 %s, 0' % t[5])
        e('v_lshlrev_b32 %s, 3, v0' % t[6])
        self.zero_tok = e('ds_write_b64 %s, %s' % (t[6], t.sub(4, 2)))
        self.pt = t

    def issue_chunk(self, c):
        e = self.e
        slot = c % 6
        base = L_RING + slot * SLOT
        e('s_mov_b32 s98, %d' % (c * 128))
        e('s_add_u32 m0, s100, %d' % base)
        e('s_mov_b32 s99, %d' % (c * 196608))
        tk = []
        tk.append(e('buffer_load_dwordx4 %s, s[8:11], s98 offen lds' % self.vxA))
        tk.append(e('buffer_load_dwordx4 %s, s[12:15], s99 offen offset:1024 lds' % self.vwA))
        tk.append(e('buffer_load_dwordx4 %s, s[12:15], s99 offen offset:2048 lds' % self.vwA))
        tk.append(e('buffer_load_dwordx4 %s, s[8:11], s98 offen offset:3072 lds' % self.vxB))
        e('s_add_u32 m0, s100, %d' % (base + 4096))
        tk.append(e('buffer_load_dwordx4 %s, s[12:15], s99 offen lds' % self.vwB))
        tk.append(e('buffer_load_dwordx4 %s, s[12:15], s99 offen offset:1024 lds' % self.vwB))
        self.kv_dma[c] = tk

    def chunk_fill(self, c):
        return [lambda c=c: self.issue_chunk(c)]

    def wq_fill(self, c):
        e = self.e

        def f():
            e('s_add_u32 m0, s101, %d' % (L_WQ + c * 8192))
            e('s_mov_b32 s99, %d' % (c * 196608))
            a = e('buffer_load_dwordx4 %s, s[12:15], s99 offen lds' % self.vwA)
            b = e('buffer_load_dwordx4 %s, s[12:15], s99 offen offset:1024 lds' % self.vwQ)
            self.wq_dma += [a, b]
        return [f]

    def p1_kv(self):
        e, V, A = self.e, self.V, self.A
        t = self.pt
        vlane = self.vlane
        self.wq_dma = []
        e('s_and_b32 s40, s3, 1')
        e('s_lshr_b32 s41, s3, 1')
        e('s_lshl_b32 s42, s40, 1')
        e('s_or_b32 s42, s42, s41')
        vx = V.alloc('vx', 4)
        vw = V.alloc('vw', 4)
        self.vtrb = V.alloc('trb')
        self.vq3 = V.alloc('q3')
        vh = self.vh
        e('v_lshrrev_b32 %s, 5, %s' % (vh, vlane))
        e('v_bfe_u32 %s, %s, 3, 1' % (self.vq3, vlane))
        e('v_bfe_u32 %s, %s, 2, 2' % (t[0], vlane))
        e('v_lshlrev_b32 %s, 7, %s' % (t[0], t[0]))
        e('v_bfe_u32 %s, %s, 4, 1' % (t[1], vlane))
        e('v_lshl_add_u32 %s, %s, 5, %s' % (t[0], t[1], t[0]))
        e('v_and_b32 %s, 3, %s' % (t[1], vlane))
        e('v_lshl_add_u32 %s, %s, 3, %s' % (self.vtrb, t[1], t[0]))
        e('v_xor_b32 %s, s41, %s' % (t[1], self.vq3))
        e('v_lshl_add_u32 %s, %s, 6, %s' % (t[1], t[1], self.vtrb))
        e('v_mul_u32_u24 %s, 3072, %s' % (t[2], vh))
        e('v_add_u32 %s, %s, %s' % (t[1], t[1], t[2]))
        e('v_bfe_u32 %s, %s, 4, 1' % (t[2], vlane))
        e('s_lshl_b32 s98, s40, 1')
        e('v_add_u32 %s, s98, %s' % (t[2], t[2]))
        e('v_mul_u32_u24 %s, 6144, %s' % (t[2], t[2]))
        e('v_mul_u32_u24 %s, 3072, %s' % (t[3], self.vq3))
        e('v_and_b32 %s, 7, %s' % (t[7], vlane))
        e('v_lshlrev_b32 %s, 7, %s' % (t[7], t[7]))
        e('v_add3_u32 %s, %s, %s, %s' % (t[2], t[2], t[3], t[7]))
        e('v_bfe_u32 %s, %s, 1, 3' % (t[3], vlane))
        for p in range(4):
            e('s_xor_b32 s98, s42, %d' % p)
            e('s_mul_i32 s99, s98, 6144')
            e('s_add_u32 s99, s99, %d' % L_RING)
            e('v_add_u32 %s, s99, %s' % (vw[p], t[1]))
            e('s_lshl_b32 s98, s98, 1')
            e('v_add_u32 %s, s98, %s' % (t[7], vh))
            e('v_xor_b32 %s, %s, %s' % (t[7], t[7], t[3]))
            e('v_lshl_add_u32 %s, %s, 4, %s' % (vx[p], t[7], t[2]))
            e('v_add_u32 %s, %d, %s' % (vx[p], L_RING, vx[p]))
        ones = V.alloc('ones', 2, 2)
        self.ones = ones
        e('v_mov_b32 %s, 0x3f803f80' % ones[0])
        e('v_mov_b32 %s, 0x3f803f80' % ones[1])
        X = A.alloc('X', 128, at=0)
        self.X = X
        accK = V.alloc('accK', 16, at=48)
        accV = V.alloc('accV', 16, at=64)
        sm = V.alloc('smalls', 16, at=80)
        WB = V.alloc('WB', 32, at=96)
        self.HV = V.alloc('HV', 64, at=192)
        self.OWN = A.alloc('OWN', 32, at=224)
        for n in range(4):
            e('s_add_u32 s98, s4, %d' % n)
            e('s_cmp_ge_u32 s98, 4')
            e('s_cselect_b32 s98, 0x3f803f80, 0')
            for r in range(16):
                e('v_mov_b32 %s, s98' % self.HV[n * 16 + r])
        for r in range(16):
            e('v_accvgpr_write_b32 %s, %s' % (self.OWN[8 + r], ones[0]))

        state = {'shift': 0}

        def slot_off(c):
            return (c % 6) * SLOT

        def reads(p_abs):
            c, p = divmod(p_abs, 4)
            off = slot_off(c) - state['shift']
            buf = WB.sub((p_abs % 4) * 8, 8)
            assert 0 <= off and off + 5632 + 512 < 65536, off
            return [
                'ds_read_b128 %s, %s offset:%d' % (X.sub(4 * p_abs, 4), vx[p], off),
                'ds_read_b64_tr_b16 %s, %s offset:%d' % (buf.sub(0, 2), vw[p], off + 1024),
                'ds_read_b64_tr_b16 %s, %s offset:%d' % (buf.sub(2, 2), vw[p], off + 1024 + 512),
                'ds_read_b64_tr_b16 %s, %s offset:%d' % (buf.sub(4, 2), vw[p], off + 2048),
                'ds_read_b64_tr_b16 %s, %s offset:%d' % (buf.sub(6, 2), vw[p], off + 2048 + 512),
            ]

        def shift_to(c):
            want = (slot_off(c) // (2 * SLOT)) * 2 * SLOT
            out = []
            if want != state['shift']:
                d = want - state['shift']
                for r in list(range(4)):
                    out.append('v_add_u32 %s, %d, %s' % (vx[r], d & 0xffffffff, vx[r]) if d > 0 else
                               'v_subrev_u32 %s, %d, %s' % (vx[r], -d, vx[r]))
                    out.append('v_add_u32 %s, %d, %s' % (vw[r], d & 0xffffffff, vw[r]) if d > 0 else
                               'v_subrev_u32 %s, %d, %s' % (vw[r], -d, vw[r]))
                state['shift'] = want
            return out

        def bigs(p_abs):
            buf = WB.sub((p_abs % 4) * 8, 8)
            x = X.sub(4 * p_abs, 4)
            c0 = '0' if p_abs == 0 else None
            return ['v_mfma_f32_32x32x16_bf16 %s, %s, %s, %s' % (accK, buf.sub(0, 4), x, c0 or accK),
                    'v_mfma_f32_32x32x16_bf16 %s, %s, %s, %s' % (accV, x, buf.sub(4, 4), c0 or accV)]

        def smalls(p_abs):
            p = p_abs % 4
            buf = WB.sub((p_abs % 4) * 8, 8)
            x = X.sub(4 * p_abs, 4)
            first = p_abs == 0
            M = 'v_mfma_f32_4x4x4_16b_bf16 %s, %s, %s, %s'
            a = []
            b = []
            if p & 1 == 0:
                a += [M % (sm.sub(0, 4), x.sub(0, 2), x.sub(0, 2), '0' if first else sm.sub(0, 4)),
                      M % (sm.sub(4, 4), ones, x.sub(0, 2), '0' if first else sm.sub(4, 4))]
                b += [M % (sm.sub(0, 4), x.sub(2, 2), x.sub(2, 2), sm.sub(0, 4)),
                      M % (sm.sub(4, 4), ones, x.sub(2, 2), sm.sub(4, 4))]
            if p & 2 == 0:
                a += [M % (sm.sub(8, 4), ones, buf.sub(0, 2), '0' if first else sm.sub(8, 4)),
                      M % (sm.sub(12, 4), ones, buf.sub(4, 2), '0' if first else sm.sub(12, 4))]
                b += [M % (sm.sub(8, 4), ones, buf.sub(2, 2), sm.sub(8, 4)),
                      M % (sm.sub(12, 4), ones, buf.sub(6, 2), sm.sub(12, 4))]
            return a, b

        last_read = [None]

        def emit_reads(lst):
            for s in lst:
                last_read[0] = e(s)

        e('s_barrier', wait_vm=self.kv_dma[0], wait_lgkm=[self.zero_tok])
        self.stamp('chunk0')
        emit_reads(reads(0))
        vt = V.alloc('tagtmp')
        for p_abs in range(28):
            nxt = p_abs + 1
            c_n, p_n = divmod(nxt, 4)
            a, b = smalls(p_abs)
            big = bigs(p_abs)
            fill = []
            if p_n == 0:
                e('s_barrier', wait_vm=self.kv_dma[c_n], wait_lgkm=[last_read[0]])
                fill += shift_to(c_n)
            rd = reads(nxt)
            fill += [lambda s=s: emit_reads([s]) for s in rd]
            if nxt == 28:
                for q in (29, 30, 31):
                    pass
            if p_n == 0:
                if c_n in (1, 2):
                    fill += self.chunk_fill(c_n + 5)
                elif c_n == 3:
                    fill += self.wq_fill(0) + self.wq_fill(1) + self.wq_fill(2)
                elif c_n == 4:
                    fill += self.wq_fill(3) + self.wq_fill(4) + self.wq_fill(5)
                elif c_n == 5:
                    fill += self.wq_fill(6) + self.wq_fill(7)

                    def tagload():
                        e('v_mov_b32 %s, 0' % vt)
                        self.tagld = e('global_load_dword %s, %s, s[36:37] sc1' % (self.vtag, vt))
                    fill += [tagload]
            for s in a:
                e(s)
            e(big[0])
            h = (len(fill) + 1) // 2
            for f in fill[:h]:
                f() if callable(f) else e(f)
            e(big[1])
            for f in fill[h:]:
                f() if callable(f) else e(f)
            for s in b:
                e(s)
        emit_reads(reads(29) + reads(30) + reads(31))
        for p_abs in (28, 29, 30):
            a, b = smalls(p_abs)
            for s in a:
                e(s)
            if len(a) == 2:
                e('s_nop 0')
            for s in b:
                e(s)
        big_rest = bigs(28) + bigs(29) + bigs(30) + bigs(31)
        e(big_rest[0])
        a0, a1 = V.alloc('a0'), V.alloc('a1')
        e('v_and_b32 %s, 31, %s' % (t[0], vlane))
        e('s_lshl_b32 s98, s40, 8')
        e('v_lshl_add_u32 %s, %s, 3, s98' % (a0, t[0]))
        e('s_lshl_b32 s98, s41, 7')
        e('v_lshl_add_u32 %s, %s, 2, s98' % (a1, t[0]))
        e('s_mov_b32 s98, 0xaaaaaaaa')
        e('s_mov_b32 s99, 0xaaaaaaaa')
        e('s_mov_b32 vcc_lo, 0xcccccccc')
        e('s_mov_b32 vcc_hi, 0xcccccccc')
        e('v_cndmask_b32 %s, %s, %s, s[98:99]' % (t[2], sm[0], sm[1]))
        e('v_cndmask_b32 %s, %s, %s, s[98:99]' % (t[3], sm[2], sm[3]))
        e('v_cndmask_b32 %s, %s, %s, vcc' % (t[2], t[2], t[3]))
        adds = [e('ds_add_f32 %s, %s offset:%d' % (a0, sm[4], L_ST)),
                e('ds_add_f32 %s, %s offset:%d' % (a0, t[2], L_ST + 4)),
                e('ds_add_f32 %s, %s offset:%d' % (a1, sm[8], L_CS + 256)),
                e('ds_add_f32 %s, %s offset:%d' % (a1, sm[12], L_CS + 512))]
        e(big_rest[1])
        e('s_barrier', wait_lgkm=adds + [last_read[0]])
        st = V.alloc('st', 2, at=156)
        csk, csv = V.alloc('csk', at=158), V.alloc('csv', at=159)
        e('ds_read_b64 %s, %s offset:%d' % (st, a0, L_ST))
        e('ds_read_b32 %s, %s offset:%d' % (csk, a1, L_CS + 256))
        e('ds_read_b32 %s, %s offset:%d' % (csv, a1, L_CS + 512))
        e(big_rest[2])
        self.csaddr = a1
        mB = V.alloc('mB', 4, at=152)
        cK = V.alloc('cK', 4, at=144)
        cV = V.alloc('cV', 4, at=148)
        rs = V.alloc('rs', 2, 2)
        self.mB, self.rs = mB, rs
        chain = [
            'v_mul_f32 %s, %s, %s' % (st[0], hexf(-1.0 / 512), st[0]),
            'v_mul_f32 %s, %s, %s' % (st[1], hexf(1.0 / 512), st[1]),
            'v_fma_f32 %s, -%s, %s, %s' % (st[1], st[0], st[0], st[1]),
            'v_max_f32 %s, 0, %s' % (st[1], st[1]),
            'v_add_f32 %s, %s, %s' % (st[1], hexf(1e-5), st[1]),
            'v_rsq_f32 %s, %s' % (rs[0], st[1]),
            'v_sub_u32 %s, 1, %s' % (self.hz, vh),
            'v_cvt_f32_u32 %s, %s' % (self.hz, self.hz),
            's_lshl_b32 s98, s3, 7',
            'v_lshl_add_u32 %s, %s, 2, s98' % (t[4], t[0]),
            lambda: self.__setattr__('rsw', e('ds_write_b32 %s, %s offset:%d' % (t[4], rs[0], L_RS))),
            'v_lshl_add_u32 %s, %s, 4, s98' % (t[5], vh),
        ]
        aug = self.aug_ops(mB, st[0], t[6], False) + \
            ['v_mul_f32 %s, %s, %s' % (csk, self.hz, csk), 'v_mul_f32 %s, %s, %s' % (csv, self.hz, csv)] + \
            self.aug_ops(cK, csk, t[6], True) + self.aug_ops(cV, csv, t[7], True)
        rT = V.alloc('rT', 16, at=128)

        def rdT():
            for g in range(4):
                e('ds_read_b128 %s, %s offset:%d' % (rT.sub(4 * g, 4), t[5], L_RS + 32 * g),
                  wait_lgkm=[self.rsw] if g == 0 else None)
        self.weave(e, big_rest[3:], chain + aug[:6] + [rdT] + aug[6:])
        e('v_mfma_f32_32x32x16_bf16 %s, %s, %s, %s' % (accK, cK, mB, accK))
        e('v_mfma_f32_32x32x16_bf16 %s, %s, %s, %s' % (accV, mB, cV, accV))
        V.release('xA', 'xB', 'wB', 'vx', 'a0')
        vkg, vvg, vkx, vvx = V.alloc('vkg', at=160), V.alloc('vvg', at=161), V.alloc('vkx', at=162), V.alloc('vvx', at=163)
        e('s_lshl_b32 s98, s41, 13')
        e('s_lshl_b32 s99, s40, 11')
        e('s_add_u32 s98, s98, s99')
        e('v_add_u32 %s, s98, %s' % (vkg, self.vl16))
        e('v_and_b32 %s, 15, %s' % (t[0], vlane))
        e('v_lshl_add_u32 %s, %s, 4, %s' % (t[0], vh, t[0]))
        self.vidx16 = V.alloc('idx16')
        e('v_lshlrev_b32 %s, 4, %s' % (self.vidx16, t[0]))
        e('v_bfe_u32 %s, %s, 4, 1' % (t[1], vlane))
        e('v_lshl_add_u32 %s, %s, 12, %s' % (t[2], t[1], self.vidx16))
        e('v_add_u32 %s, s98, %s' % (vvg, t[2]))
        e('s_lshr_b32 s98, s98, 1')
        e('v_add_u32 %s, s98, %s' % (vkx, self.vl16))
        e('v_lshl_add_u32 %s, %s, 11, %s' % (t[2], t[1], self.vidx16))
        e('v_add_u32 %s, s98, %s' % (vvx, t[2]))
        e('v_add_u32 %s, %d, %s' % (vvx, L_VX, vvx))
        self.vqx = V.alloc('vqx')
        e('v_add_u32 %s, %d, %s' % (self.vqx, L_QX, vkx))
        e('v_add_u32 %s, %d, %s' % (vkx, L_KX, vkx))
        e('s_lshl_b32 s43, s4, 3')
        e('s_add_u32 s43, s43, s5')
        e('s_lshl_b32 s44, s43, 14')
        e('s_add_u32 s44, s44, 0x%x' % WS_KV)
        e('s_add_u32 s45, s44, 4096')
        PK = WB
        for r in range(0, 16, 2):
            e('v_pk_mul_f32 %s, %s, %s op_sel_hi:[1,0]' % (accK.sub(r, 2), accK.sub(r, 2), rs))
        for r in range(8):
            e('v_cvt_pk_bf16_f32 %s, %s, %s' % (PK[r], accK[2 * r], accK[2 * r + 1]))
        st_tok = []
        st_tok.append(e('buffer_store_dwordx4 %s, %s, s[32:35], s44 offen sc1' % (PK.sub(0, 4), vkg)))
        st_tok.append(e('buffer_store_dwordx4 %s, %s, s[32:35], s45 offen sc1' % (PK.sub(4, 4), vkg)))
        for r in range(0, 16, 2):
            e('v_pk_mul_f32 %s, %s, %s' % (accV.sub(r, 2), accV.sub(r, 2), rT.sub(r, 2)))
        for r in range(8):
            e('v_cvt_pk_bf16_f32 %s, %s, %s' % (PK[8 + r], accV[2 * r], accV[2 * r + 1]))
        st_tok.append(e('buffer_store_dwordx4 %s, %s, s[32:35], s44 offen offset:1024 sc1' % (PK.sub(8, 4), vvg)))
        st_tok.append(e('buffer_store_dwordx4 %s, %s, s[32:35], s44 offen offset:1536 sc1' % (PK.sub(12, 4), vvg)))
        self.kv_st = st_tok
        self.stamp('kvpub')
        self.xw = [e('ds_write_b128 %s, %s' % (vkx, PK.sub(0, 4))),
                   e('ds_write_b128 %s, %s offset:2048' % (vkx, PK.sub(4, 4))),
                   e('ds_write_b128 %s, %s' % (vvx, PK.sub(8, 4))),
                   e('ds_write_b128 %s, %s offset:512' % (vvx, PK.sub(12, 4)))]
        V.release('accK', 'accV', 'st', 'csk', 'csv', 'cK', 'cV', 'rT', 'vkg', 'vvg', 'vkx', 'vvx')
        self.vw, self.WB, self.sm, self.vt = vw, WB, sm, vt

    def aug_ops(self, dst, val, tmp, dup):
        ops = ['v_cvt_pk_bf16_f32 %s, %s, %s' % (dst[0], val, val),
               'v_and_b32 %s, 0xffff0000, %s' % (tmp, dst[0]),
               'v_sub_f32 %s, %s, %s' % (tmp, val, tmp)]
        if dup:
            ops += ['v_cvt_pk_bf16_f32 %s, %s, %s' % (dst[1], tmp, tmp)]
        else:
            ops += ['v_cvt_pk_bf16_f32 %s, %s, %s' % (dst[0], val, tmp),
                    'v_mov_b32 %s, %s' % (dst[1], dst[0])]
        ops += ['v_mov_b32 %s, 0' % dst[2], 'v_mov_b32 %s, 0' % dst[3]]
        return ops

    def img_dma(self, vq, srd, stride, lds_base, groups, sbase):
        e = self.e
        out = []
        toks = []
        for g in groups:
            def f(g=g):
                e('s_add_u32 m0, s46, %d' % (lds_base + g * 16384))
                e('s_add_u32 s99, %s, %d' % (sbase, g * 128 * stride))
                for k in range(4):
                    toks.append(e('buffer_load_dwordx4 %s, %s, s99 offen offset:%d lds' % (vq[k], srd, k * 1024)))
            out.append(f)
        return out, toks

    def img_voff(self, name, stride):
        e, V = self.e, self.V
        vq = V.alloc(name, 4)
        ops = ['v_lshrrev_b32 %s, 3, %s' % (vq[0], self.vlane),
               's_lshl_b32 s98, s3, 5',
               'v_add_u32 %s, s98, %s' % (vq[0], vq[0]),
               'v_mul_u32_u24 %s, %d, %s' % (vq[0], stride, vq[0]),
               'v_add_u32 %s, %s, %s' % (vq[0], vq[0], self.vsw)]
        for k in range(1, 4):
            ops.append('v_add_u32 %s, %d, %s' % (vq[k], k * (8 * stride - 1024), vq[0]))
        return vq, ops

    def p1_q(self):
        e, V, A = self.e, self.V, self.A
        t, vlane, vh = self.pt, self.vlane, self.vh
        vw, WB, sm, X, ones = self.vw, self.WB, self.sm, self.X, self.ones
        e('s_lshl_b32 s46, s3, 12')
        vwo, ops = self.img_voff('vwo', 1024)
        for s in ops:
            e(s)
        self.vwo = vwo
        e('s_mul_i32 s47, s43, 2341')
        e('s_lshr_b32 s47, s47, 16')
        e('s_mul_i32 s98, s47, 28')
        e('s_sub_u32 s48, s43, s98')
        e('s_cmp_lt_u32 s43, 224')
        e('s_cselect_b32 s49, 0, 0x%x' % OOB)
        vs = V.alloc('vside', 4, at=128)
        e('v_lshrrev_b32 %s, 3, %s' % (t[0], vlane))
        e('s_lshl_b32 s98, s3, 4')
        e('v_add_u32 %s, s98, %s' % (t[0], t[0]))
        e('v_mul_u32_u24 %s, 3584, %s' % (vs[0], t[0]))
        e('v_add_u32 %s, %s, %s' % (vs[0], vs[0], self.vsw))
        e('v_add_u32 %s, %d, %s' % (vs[1], 8 * 3584 - 1024, vs[0]))
        e('v_lshl_add_u32 %s, %s, 10, %s' % (vs[2], t[0], self.vsw))
        e('v_add_u32 %s, %d, %s' % (vs[3], 8192 - 1024, vs[2]))
        e('s_mul_i32 s98, s47, %d' % (64 * 3584))
        e('s_lshl_b32 s99, s48, 7')
        e('s_add_u32 s98, s98, s99')
        e('s_add_u32 s98, s98, s49')
        e('s_add_u32 m0, s46, %d' % L_SIDE)
        e('s_lshl_b32 s99, s48, 16')
        side = [e('buffer_load_dwordx4 %s, s[20:23], s98 offen lds' % vs[0]),
                e('buffer_load_dwordx4 %s, s[20:23], s98 offen offset:1024 lds' % vs[1])]
        e('s_lshl_b32 s98, s47, 7')
        e('s_add_u32 s98, s98, s99')
        e('s_add_u32 m0, s46, %d' % (L_SIDE + 2048))
        e('s_add_u32 s98, s98, s49')
        side += [e('buffer_load_dwordx4 %s, s[24:27], s98 offen lds' % vs[2]),
                 e('buffer_load_dwordx4 %s, s[24:27], s98 offen offset:1024 lds' % vs[3])]
        self.side_dma = side
        V.release('vside')
        e('s_lshl_b32 s50, s5, 7')
        wo_f, self.wo_tok = self.img_dma(vwo, 's[16:19]', 1024, L_WO, [0, 1, 2], 's50')
        wo_f3, wo_tok3 = self.img_dma(vwo, 's[16:19]', 1024, L_WO, [3], 's50')
        e('v_xor_b32 %s, s41, %s' % (t[1], self.vq3))
        e('v_lshl_add_u32 %s, %s, 6, %s' % (t[1], t[1], self.vtrb))
        e('v_lshl_add_u32 %s, %s, 10, %s' % (t[1], vh, t[1]))
        for p in range(4):
            e('s_xor_b32 s98, s42, %d' % p)
            e('s_lshl_b32 s98, s98, 11')
            e('s_add_u32 s98, s98, %d' % L_WQ)
            e('v_add_u32 %s, s98, %s' % (vw[p], t[1]))
        accQ = V.alloc('accQ', 16, at=48)
        QB = WB.sub(16, 16)

        def reads(p_abs):
            c, p = divmod(p_abs, 4)
            buf = QB.sub((p_abs % 4) * 4, 4)
            return ['ds_read_b64_tr_b16 %s, %s offset:%d' % (buf.sub(0, 2), vw[p], c * 8192),
                    'ds_read_b64_tr_b16 %s, %s offset:%d' % (buf.sub(2, 2), vw[p], c * 8192 + 512)]

        def big(p_abs):
            buf = QB.sub((p_abs % 4) * 4, 4)
            return 'v_mfma_f32_32x32x16_bf16 %s, %s, %s, %s' % (accQ, buf, X.sub(4 * p_abs, 4),
                                                                '0' if p_abs == 0 else accQ)

        def smalls(p_abs):
            if p_abs & 2:
                return []
            buf = QB.sub((p_abs % 4) * 4, 4)
            M = 'v_mfma_f32_4x4x4_16b_bf16 %s, %s, %s, %s'
            return [M % (sm.sub(0, 4), ones, buf.sub(0, 2), '0' if p_abs == 0 else sm.sub(0, 4)),
                    M % (sm.sub(4, 4), ones, buf.sub(2, 2), '0' if p_abs == 0 else sm.sub(4, 4))]

        e('s_barrier', wait_vm=self.wq_dma)
        self.stamp('wq')
        for s in reads(0) + reads(1):
            e(s)
        Cl = V.alloc('Cl', 16, at=160)
        Cu = V.alloc('Cu', 16, at=176)
        self.Cl, self.Cu = Cl, Cu
        BIG = 2.0 ** 100
        fill = list(wo_f)
        fill += ['v_and_b32 %s, 31, %s' % (t[0], vlane),
                 'v_lshlrev_b32 %s, 2, %s' % (t[1], vh),
                 'v_sub_u32 %s, %s, %s' % (t[0], t[0], t[1]),
                 'v_cvt_f32_i32 %s, %s' % (t[0], t[0]),
                 'v_mov_b32 %s, %s' % (t[1], hexf(BIG)),
                 'v_mov_b32 %s, %s' % (t[2], hexf(-BIG))]
        for r in range(16):
            cr = (r & 3) + 8 * (r >> 2)
            fill += ['v_fmaak_f32 %s, %s, %s, %s' % (Cl[r], t[0], t[1], hexf(-cr * BIG)),
                     'v_fmaak_f32 %s, %s, %s, %s' % (Cu[r], t[0], t[2], hexf((cr - 1) * BIG)),
                     'v_min_f32 %s, 0, %s' % (Cl[r], Cl[r]),
                     'v_min_f32 %s, 0, %s' % (Cu[r], Cu[r])]

        def tag_and_flag():
            vt = self.vt
            e('v_cmp_eq_u32 vcc, 0, %s' % self.vtag)
            e('s_cbranch_vccnz L_tagspin')
            e('L_tagok:')
            e('v_readfirstlane_b32 s6, %s' % self.vtag)
            self.tail.append(
                'L_tagspin:\n    global_load_dword %s, %s, s[36:37] sc1\n    s_add_u32 s96, s96, 1\n'
                '    s_cmp_gt_u32 s96, s97\n    s_waitcnt vmcnt(0)\n    s_cbranch_scc1 L_tagok\n'
                '    v_cmp_eq_u32 vcc, 0, %s\n    s_nop 1\n    s_cbranch_vccnz L_tagspin\n    s_branch L_tagok\n'
                % (self.vtag, vt, self.vtag))
            e('s_lshl_b32 s98, s43, 2')
            e('s_add_u32 s98, s98, s3')
            e('s_lshl_b32 s98, s98, 7')
            e('s_add_u32 s98, s98, 0x%x' % WS_KVF)
            e('buffer_store_dword %s, %s, s[32:35], s98 offen sc1' % (self.vtag, self.vflag), wait_vm=self.kv_st)
            e('s_getreg_b32 s51, hwreg(HW_REG_XCC_ID, 0, 4)')
            e('s_lshr_b32 s98, s43, 4')
            e('s_lshl_b32 s52, s98, 7')
            e('s_add_u32 s52, s52, 0x%x' % WS_XCC)
            e('s_and_b32 s98, s43, 15')
            e('s_lshl_b32 s98, s98, 2')
            e('s_add_u32 s98, s98, s52')
            e('s_cmp_eq_u32 s3, 0')
            e('s_cselect_b32 s98, s98, 0x%x' % OOB)
            e('v_xor_b32 %s, s51, %s' % (vt, self.vtag))
            e('buffer_store_dword %s, %s, s[32:35], s98 offen sc1' % (vt, self.vflag))

        nfill = len(fill)
        pos = 0
        FLAG_AT = self.o.get('kvflag_at', 18)
        for p_abs in range(28):
            for s in smalls(p_abs):
                e(s)
            e(big(p_abs))
            for s in reads(p_abs + 2):
                e(s)
            upto = min(nfill, (nfill * (p_abs + 1) + 25) // 26)
            while pos < upto:
                f = fill[pos]
                f() if callable(f) else e(f)
                pos += 1
            if p_abs == FLAG_AT:
                tag_and_flag()
        for s in smalls(28):
            e(s)
        lr = None
        for s in reads(30):
            lr = e(s)
        for s in smalls(29):
            e(s)
        e(big(28))
        for s in reads(31):
            lr = e(s)
        e('v_add_f32 %s, %s, %s' % (t[3], sm[0], sm[4]))
        ad = e('ds_add_f32 %s, %s offset:%d' % (self.csaddr, t[3], L_CS))
        e(big(29))
        e('s_barrier', wait_lgkm=[ad, lr])
        csq = V.alloc('csq')
        cQ = V.alloc('cQ', 4, at=144)
        e('ds_read_b32 %s, %s offset:%d' % (csq, self.csaddr, L_CS))
        e(big(30))
        for f in wo_f3:
            f()
        self.wo_tok += wo_tok3
        e(big(31))
        e('v_mul_f32 %s, %s, %s' % (csq, self.hz, csq))
        for s in self.aug_ops(cQ, csq, t[3], True):
            e(s)
        e('v_mul_f32 %s, %s, %s' % (self.rs[0], hexf(0.25 * LOG2E), self.rs[0]))
        e('v_mfma_f32_32x32x16_bf16 %s, %s, %s, %s' % (accQ, cQ, self.mB, accQ))
        vr = V.alloc('vr', 3, at=128)
        e('v_add_u32 %s, s101, %s' % (vr[0], self.vl16))
        e('v_add_u32 %s, %d, %s' % (vr[1], L_KX, vr[0]))
        e('v_add_u32 %s, s101, %s' % (vr[2], self.vidx16))
        e('v_add_u32 %s, %d, %s' % (vr[2], L_VX, vr[2]))
        for r in range(0, 16, 2):
            e('v_pk_mul_f32 %s, %s, %s op_sel_hi:[1,0]' % (accQ.sub(r, 2), accQ.sub(r, 2), self.rs))
        for r in range(8):
            e('v_cvt_pk_bf16_f32 %s, %s, %s' % (QB[r], accQ[2 * r], accQ[2 * r + 1]))
        w = [e('ds_write_b128 %s, %s' % (self.vqx, QB.sub(0, 4))),
             e('ds_write_b128 %s, %s offset:2048' % (self.vqx, QB.sub(4, 4)))]
        e('s_barrier', wait_lgkm=w + self.xw)
        OWN = self.OWN
        e('ds_read_b128 %s, %s offset:%d' % (OWN.sub(28, 4), vr[0], L_QX + 1024))
        e('ds_read_b128 %s, %s offset:1024' % (OWN.sub(4, 4), vr[1]))
        e('ds_read_b128 %s, %s' % (OWN.sub(0, 4), vr[1]))
        e('ds_read_b128 %s, %s offset:%d' % (OWN.sub(24, 4), vr[0], L_QX))
        e('s_mov_b64 exec, s[38:39]')
        e('ds_read_b128 %s, %s offset:1024' % (OWN.sub(16, 4), vr[2]))
        e('ds_read_b128 %s, %s offset:1536' % (OWN.sub(20, 4), vr[2]))
        e('ds_read_b128 %s, %s' % (OWN.sub(8, 4), vr[2]))
        e('ds_read_b128 %s, %s offset:512' % (OWN.sub(12, 4), vr[2]))
        e('s_mov_b64 exec, -1')
        self.stamp('qdone')
        V.release('accQ', 'csq', 'cQ', 'vr', 'mB', 'rs', 'vqx', 'a1', 'vw', 'wA', 'wQ', 'WB', 'tagtmp', 'dummy', 'smalls')
        A.release('X')

    def kfrag(self, s):
        return self.HK.sub(4 * s, 4) if s < 8 else self.OWN.sub(4 * (s - 8), 4)

    def vfrag(self, s, m):
        return self.HV.sub(8 * s + 4 * m, 4) if s < 8 else self.OWN.sub(8 + 8 * (s - 8) + 4 * m, 4)

    def qfrag(self, qb):
        return self.OWN.sub(24 + 4 * qb, 4)

    def cmask(self, s, qb):
        if s == qb:
            return str(self.Cu)
        if s == qb + 8:
            return str(self.Cl)
        return '0'

    def attn_run(self, e, blocks, S, P, O, first, fill_at, cfun=None, last_pv=True):
        cfun = cfun or self.cmask

        def smf(n):
            s, qb = blocks[n]
            return 'v_mfma_f32_32x32x16_bf16 %s, %s, %s, %s' % (S[n % 2], self.kfrag(s), self.qfrag(qb), cfun(s, qb))

        def pv(n, m):
            s, qb = blocks[n]
            c = O[qb]
            if qb in first:
                first.discard(qb)
                c = '0'
            return 'v_mfma_f32_32x32x16_bf16 %s, %s, %s, %s' % (O[qb], self.vfrag(s, m), P.sub(4 * m, 4), c)

        e(smf(0))
        pending = None
        for n in range(len(blocks)):
            s_ = S[n % 2]
            fl = list(fill_at.get(n, []))
            ex = ['v_exp_f32 %s, %s' % (s_[r], s_[r]) for r in range(16)]
            cv = ['v_cvt_pk_bf16_f32 %s, %s, %s' % (P[r], s_[2 * r], s_[2 * r + 1]) for r in range(8)]
            if n == 0 and len(blocks) > 1:
                e(smf(1))
                for f in fl:
                    f() if callable(f) else e(f)
                fl = []
            e(ex[0])
            e(ex[1])
            if pending:
                e(pending)
                pending = None
            for s in ex[2:5]:
                e(s)
            if n > 0 and n + 1 < len(blocks):
                e(smf(n + 1))
            for s in ex[5:8]:
                e(s)
            for s in cv[0:4]:
                e(s)
            e(ex[8])
            e(ex[9])
            e(pv(n, 0))
            for f in fl:
                f() if callable(f) else e(f)
            for s in ex[10:16]:
                e(s)
            for s in cv[4:8]:
                e(s)
            pending = pv(n, 1)
        return pending

    def attention(self):
        e, V, A = self.e, self.V, self.A
        t, vlane, vh = self.pt, self.vlane, self.vh
        ones = self.ones
        self.HK = V.alloc('HK', 32, at=128)
        S = [V.alloc('S0', 16, at=48), V.alloc('S1', 16, at=64)]
        P = V.alloc('P', 8, at=112)
        O = [V.alloc('O0', 16, at=80), V.alloc('O1', 16, at=96)]
        self.S, self.P, self.O = S, P, O
        first = {0, 1}
        own = [(9, 1), (8, 1), (8, 0)]
        vhk, vhv, vpf = V.alloc('vhk'), V.alloc('vhv'), V.alloc('vpf')
        prep = ['v_add_u32 %s, s46, %s' % (vhk, self.vl16),
                'v_add_u32 %s, s46, %s' % (vhv, self.vidx16),
                'v_bfe_u32 %s, %s, 1, 2' % (t[0], vlane),
                'v_lshlrev_b32 %s, 12, %s' % (t[0], t[0]),
                'v_and_b32 %s, 1, %s' % (t[1], vlane),
                'v_lshl_add_u32 %s, %s, 7, %s' % (vpf, t[1], t[0]),
                'v_bfe_u32 %s, %s, 1, 2' % (t[0], vlane),
                'v_add_u32 %s, s4, %s' % (t[0], t[0]),
                'v_cmp_le_u32 s[54:55], 4, %s' % t[0],
                's_sub_u32 s98, s43, 32',
                's_lshl_b32 s98, s98, 9',
                's_lshl_b32 s99, s41, 8',
                's_add_u32 s98, s98, s99',
                's_add_u32 s53, s98, 0x%x' % WS_KVF]
        for n in range(4):
            prep += ['s_add_u32 s99, s4, %d' % n,
                     's_add_u32 s98, s44, %d' % ((n - 4) * 131072 & 0xffffffff),
                     's_cmp_ge_u32 s99, 4',
                     's_cselect_b32 s%d, s98, 0x%x' % (90 + n, OOB)]
        pend = self.attn_run(e, own, S, P, O, first, {1: prep})
        vsr = V.alloc('vsr', 2)
        sb, sm = S[0], S[1]
        e('v_lshl_add_u32 %s, %s, 9, %s' % (t[0], vh, self.vtrb))
        e('v_add_u32 %s, s46, %s' % (t[0], t[0]))
        e(pend)
        e('v_add_u32 %s, %d, %s' % (t[0], L_SIDE, t[0]))
        e('v_lshl_add_u32 %s, %s, 6, %s' % (vsr[0], self.vq3, t[0]))
        e('v_xor_b32 %s, 64, %s' % (vsr[1], vsr[0]))
        e.wait(vm=self.side_dma)
        for pc in range(2):
            for nt in range(2):
                for u in range(2):
                    e('ds_read_b64_tr_b16 %s, %s offset:%d' % (sb.sub(pc * 8 + nt * 4 + 2 * u, 2), vsr[nt],
                                                                pc * 2048 + u * 1024))
        M = 'v_mfma_f32_4x4x4_16b_bf16 %s, %s, %s, %s'
        e(M % (sm.sub(0, 4), ones, sb.sub(0, 2), '0'))
        e(M % (sm.sub(4, 4), ones, sb.sub(4, 2), '0'))
        e('s_mul_i32 s98, s47, %d' % (112 * 2048))
        e(M % (sm.sub(0, 4), ones, sb.sub(2, 2), sm.sub(0, 4)))
        e(M % (sm.sub(4, 4), ones, sb.sub(6, 2), sm.sub(4, 4)))
        e('s_lshl_b32 s99, s48, 13')
        e('s_add_u32 s98, s98, s99')
        e('s_add_u32 s98, s98, s101')
        e('s_add_u32 s98, s98, s49')
        e('s_add_u32 s98, s98, 0x%x' % WS_W2P)
        self.w2p_st = [e('buffer_store_dwordx4 %s, %s, s[32:35], s98 offen sc1' % (sb.sub(8, 4), self.vl16)),
                       e('buffer_store_dwordx4 %s, %s, s[32:35], s98 offen offset:1024 sc1' % (sb.sub(12, 4), self.vl16))]
        e('v_and_b32 %s, 31, %s' % (t[0], vlane))
        e('v_lshlrev_b32 %s, 2, %s' % (t[0], t[0]))
        self.cs1_add = [e('ds_add_f32 %s, %s offset:%d' % (t[0], sm[0], L_CSW1)),
                        e('ds_add_f32 %s, %s offset:%d' % (t[0], sm[4], L_CSW1 + 128))]
        V.release('vsr', 'ones')
        V.release('resv_vw1')
        vw1, ops = self.img_voff('vw1', 3584)
        for s in ops:
            e(s)
        self.vw1 = vw1
        e('s_and_b32 s47, s43, 15')
        e('s_min_u32 s48, s47, 13')
        e('s_lshl_b32 s49, s48, 8')
        self.stamp('halowait')
        self.poll(vpf, 's53', t, mask='s[54:55]')
        self.stamp('haloflag')
        order = list(range(7, -1, -1))
        for s in order:
            e('buffer_load_dwordx4 %s, %s, s[32:35], s%d offen offset:%d sc1' % (self.kfrag(s), vhk, 90 + (s >> 1),
                                                                                (s & 1) * 2048))
            e('s_mov_b64 exec, s[38:39]')
            for m in range(2):
                e('buffer_load_dwordx4 %s, %s, s[32:35], s%d offen offset:%d sc1' % (
                    self.vfrag(s, m), vhv, 90 + (s >> 1), (s & 1) * 2048 + 1024 + 512 * m))
            e('s_mov_b64 exec, -1')
        V.release('vhk', 'vhv', 'vpf', 'idx16', 'swz')
        w1a_f, self.w1a_tok = self.img_dma(vw1, 's[20:23]', 3584, L_W1A, [0, 1, 2, 3], 's49')
        xr = V.alloc('xr', 8, at=120)
        self.xr = xr

        def w2flag():
            e('s_mul_i32 s98, s43, 2341')
            e('s_lshr_b32 s98, s98, 16')
            e('s_mul_i32 s99, s98, 28')
            e('s_sub_u32 s99, s43, s99')
            e('s_lshl_b32 s98, s98, 9')
            e('s_lshl_b32 s99, s99, 4')
            e('s_add_u32 s98, s98, s99')
            e('s_lshl_b32 s99, s3, 2')
            e('s_add_u32 s98, s98, s99')
            e('s_add_u32 s98, s98, 0x%x' % WS_W2F)
            e('s_cmp_lt_u32 s43, 224')
            e('s_cselect_b32 s98, s98, 0x%x' % OOB)
            e('buffer_store_dword %s, %s, s[32:35], s98 offen sc1' % (self.vtag, self.vflag), wait_vm=self.w2p_st)

        def xres():
            e('v_and_b32 %s, 31, %s' % (t[0], vlane))
            e('s_lshl_b32 s98, s4, 1')
            e('s_add_u32 s98, s98, s41')
            e('s_lshl_b32 s98, s98, 15')
            e('s_lshl_b32 s99, s40, 6')
            e('s_add_u32 s98, s98, s99')
            e('s_add_u32 s98, s98, s50')
            e('v_lshl_add_u32 %s, %s, 10, s98' % (t[0], t[0]))
            e('v_lshl_add_u32 %s, %s, 4, %s' % (self.vout, vh, t[0]))
            e('buffer_load_dwordx4 %s, %s, s[8:11], 0 offen' % (xr.sub(0, 4), self.vout))
            e('buffer_load_dwordx4 %s, %s, s[8:11], 0 offen offset:32' % (xr.sub(4, 4), self.vout))

        def offsets():
            e('s_mul_i32 s98, s4, %d' % (2 * H1_GT))
            e('s_add_u32 s98, s98, 0x%x' % WS_H1)
            e('s_lshl_b32 s99, s5, 2')
            e('s_add_u32 s99, s99, s3')
            e('s_lshl_b32 s99, s99, 10')
            e('s_add_u32 s53, s98, s99')
            e('s_mul_i32 s99, s41, %d' % H1_GT)
            e('s_add_u32 s98, s98, s99')
            e('s_lshl_b32 s99, s40, 14')
            e('s_add_u32 s54, s98, s99')
            e('s_lshl_b32 s98, s4, 1')
            e('s_add_u32 s98, s98, s41')
            e('s_lshl_b32 s99, s5, 1')
            e('s_add_u32 s99, s99, s40')
            e('s_lshl_b32 s55, s98, 4')
            e('s_add_u32 s55, s55, s99')
            e('s_lshl_b32 s45, s55, 9')
            e('s_add_u32 s45, s45, 0x%x' % WS_ST2)
            e('s_lshl_b32 s55, s55, 11')

        def pretouch():
            if self.o.get('force_sc1'):
                return
            e('v_and_b32 %s, 7, %s' % (t[0], vlane))
            e('v_lshlrev_b32 %s, 7, %s' % (t[0], t[0]))
            e('v_mul_u32_u24 %s, %d, %s' % (t[1], H1_GT, self.vq3))
            e('v_add3_u32 %s, %s, %s, s53' % (t[1], t[0], t[1]))
            e('v_and_b32 %s, 0x180, %s' % (t[2], t[0]))
            e('v_add_u32 %s, s45, %s' % (t[2], t[2]))
            e('v_cmp_gt_u32 vcc, 16, %s' % vlane)
            e('v_and_b32 %s, 15, %s' % (t[3], vlane))
            e('v_lshlrev_b32 %s, 7, %s' % (t[3], t[3]))
            e('v_cndmask_b32 %s, %s, %s, vcc' % (t[1], t[2], t[1]))
            e('buffer_load_dword %s, %s, s[32:35], 0 offen sc1' % (t[4], t[1]))
            e('buffer_load_dword %s, %s, s[28:31], s55 offen sc1' % (t[5], t[3]))

        def xccload():
            e('v_and_b32 %s, 15, %s' % (t[6], vlane))
            e('v_lshlrev_b32 %s, 2, %s' % (t[6], t[6]))
            e('buffer_load_dword %s, %s, s[32:35], s52 offen sc1' % (t[7], t[6]))

        def xcccheck():
            e('v_xor_b32 %s, s6, %s' % (t[7], t[7]))
            e('v_cmp_le_u32 vcc, 16, %s' % t[7])
            e('s_cbranch_vccnz L_xccspin')
            e('L_xccok:')
            e('v_cmp_ne_u32 vcc, s51, %s' % t[7])
            e('s_cmp_eq_u64 vcc, 0')
            e('s_cselect_b32 s7, 1, 0')
            if self.o.get('force_slow'):
                e('s_mov_b32 s7, 0')
            self.tail.append(
                'L_xccspin:\n    buffer_load_dword %s, %s, s[32:35], s52 offen sc1\n    s_add_u32 s96, s96, 1\n'
                '    s_cmp_gt_u32 s96, s97\n    s_waitcnt vmcnt(0)\n    v_xor_b32 %s, s6, %s\n'
                '    s_cbranch_scc1 L_xccok\n    v_cmp_le_u32 vcc, 16, %s\n    s_nop 1\n'
                '    s_cbranch_vccnz L_xccspin\n    s_branch L_xccok\n' % (t[7], t[6], t[7], t[7], t[7]))

        blocks = []
        for s in range(7, 0, -1):
            blocks += [(s, 1), (s, 0)]
        blocks += [(0, 0)]
        fill_at = {0: [w2flag, offsets], 1: [pretouch, xccload], 2: [xres], 3: [w1a_f[0]], 5: [w1a_f[1]],
                   7: [w1a_f[2]], 9: [w1a_f[3]], 12: [xcccheck]}
        pend = self.attn_run(e, blocks, S, P, O, first, fill_at)
        e(pend)
        self.stamp('attn')
        e('s_mov_b32 s98, %s' % hexf(2.0 ** -40))
        e('s_mov_b32 s99, %s' % hexf(2.0 ** 40))
        for qb in (1, 0):
            o = O[qb]
            e('v_max3_f32 %s, abs(%s), abs(%s), abs(%s)' % (t[0], o[0], o[1], o[2]))
            e('v_max3_f32 %s, abs(%s), abs(%s), %s' % (t[0], o[3], o[4], t[0]))
            e('v_max3_f32 %s, abs(%s), abs(%s), %s' % (t[0], o[5], o[6], t[0]))
            e('v_max3_f32 %s, abs(%s), %s, %s' % (t[0], o[7], t[0], t[0]))
            e('v_cmp_nle_f32 vcc, s98, %s' % o[8])
            e('v_cmp_nge_f32 s[90:91], s99, %s' % o[8])
            e('v_cmp_nlt_f32 s[92:93], %s, %s' % (t[0], 'v' + str(self.vinf().base)))
            e('s_or_b64 vcc, vcc, s[90:91]')
            e('s_or_b64 vcc, vcc, s[92:93]')
            if self.o.get('force_fallback'):
                e('s_mov_b64 vcc, -1')
            e('s_cbranch_vccnz L_fallback')
        e('L_attn_ok:')
        rc = t.sub(0, 2)
        st = []
        for qb in (1, 0):
            o = O[qb]
            e('v_rcp_f32 %s, %s' % (rc[0], o[8]))
            for r in range(0, 8, 2):
                e('v_pk_mul_f32 %s, %s, %s op_sel_hi:[1,0]' % (o.sub(r, 2), o.sub(r, 2), rc))
            for r in range(4):
                e('v_cvt_pk_bf16_f32 %s, %s, %s' % (P[4 * qb + r], o[2 * r], o[2 * r + 1]))
        e('s_add_u32 s99, s53, %d' % H1_GT)
        self.o_st = self.mode_stores(['buffer_store_dwordx4 %s, %s, s[32:35], s53 offen' % (P.sub(0, 4), self.vl16),
                                      'buffer_store_dwordx4 %s, %s, s[32:35], s99 offen' % (P.sub(4, 4), self.vl16)])
        self.fallback()
        V.release('S0', 'S1', 'O0', 'O1', 'Cl', 'Cu', 'HK', 'HV', 'vinf')
        A.release('OWN')

    def vinf(self):
        if 'vinf' not in self.V.names:
            r = self.V.alloc('vinf')
            self._vinf = r
            self.e('v_mov_b32 %s, 0x7f800000' % r)
        return self._vinf

    def fallback(self):
        f = Emitter('fb')
        S, P, O, t = self.S, self.P, self.O, self.pt
        Cz = S[1]
        f('L_fallback:')
        f('s_nop 15')
        for qb in (0, 1):
            slots = list(range(qb + 8, qb - 1, -1))
            f('v_mov_b32 %s, 0xff800000' % t[0])
            for s in slots:
                if s < 8:
                    f('s_cmp_lt_u32 s4, %d' % (4 - (s >> 1)))
                    f('s_cbranch_scc1 L_fb_a%d_%d' % (qb, s))
                f('v_mfma_f32_32x32x16_bf16 %s, %s, %s, %s' % (S[0], self.kfrag(s), self.qfrag(qb), self.cmask(s, qb)))
                for r in range(0, 16, 2):
                    f('v_max3_f32 %s, %s, %s, %s' % (t[0], S[0][r], S[0][r + 1], t[0]))
                f('s_nop 7')
                f('L_fb_a%d_%d:' % (qb, s))
            f('v_mov_b32 %s, %s' % (t[1], t[0]))
            f('v_permlane32_swap_b32 %s, %s' % (t[0], t[1]))
            f('v_max_f32 %s, %s, %s' % (t[0], t[0], t[1]))
            for r in range(16):
                f('v_mov_b32 %s, 0' % O[qb][r])
            for s in slots:
                if s < 8:
                    f('s_cmp_lt_u32 s4, %d' % (4 - (s >> 1)))
                    f('s_cbranch_scc1 L_fb_b%d_%d' % (qb, s))
                f('v_mfma_f32_32x32x16_bf16 %s, %s, %s, %s' % (S[0], self.kfrag(s), self.qfrag(qb), self.cmask(s, qb)))
                for r in range(16):
                    f('v_sub_f32 %s, %s, %s' % (S[0][r], S[0][r], t[0]))
                for r in range(16):
                    f('v_exp_f32 %s, %s' % (S[0][r], S[0][r]))
                for r in range(8):
                    f('v_cvt_pk_bf16_f32 %s, %s, %s' % (P[r], S[0][2 * r], S[0][2 * r + 1]))
                for m in range(2):
                    f('v_mfma_f32_32x32x16_bf16 %s, %s, %s, %s' % (O[qb], self.vfrag(s, m), P.sub(4 * m, 4), O[qb]))
                f('s_nop 15')
                f('L_fb_b%d_%d:' % (qb, s))
        f('s_nop 15')
        f('s_branch L_attn_ok')
        self.cold = f.text()

    def w2_loads(self, positions):
        e = self.e
        out = []
        for p in positions:
            def f(p=p):
                e('s_lshl_b32 s98, s%d, 1' % (56 + p))
                e('s_add_u32 s98, s98, s92')
                for m in range(2):
                    for b in range(2):
                        e('buffer_load_dwordx4 %s, %s, s[32:35], s98 offen offset:%d sc1' % (
                            self.W2.sub((p * 4 + m * 2 + b) * 4, 4), self.vw2[b], m * 2048))
            out.append(f)
        return out

    def p3(self):
        e, V, A = self.e, self.V, self.A
        t, vlane, vh = self.pt, self.vlane, self.vh
        self.W2 = A.alloc('W2', 224, at=0)
        WB = A.alloc('WB3', 32, at=224)
        self.WBa = WB
        H = V.alloc('hres', 16, at=240)
        self.H = H
        acc1 = V.alloc('acc1', 16, at=224)
        OF = V.alloc('OF', 64, at=128)
        vwr = V.alloc('vwr', 2)
        vpo = V.alloc('vpo')
        xr = self.xr
        e('v_permlane32_swap_b32 %s, %s' % (xr[0], xr[2]))
        e('v_permlane32_swap_b32 %s, %s' % (xr[1], xr[3]))
        e('v_permlane32_swap_b32 %s, %s' % (xr[4], xr[6]))
        e('v_permlane32_swap_b32 %s, %s' % (xr[5], xr[7]))
        for k in range(8):
            e('v_lshlrev_b32 %s, 16, %s' % (H[2 * k], xr[k]))
            e('v_and_b32 %s, 0xffff0000, %s' % (H[2 * k + 1], xr[k]))
        V.release('xr')
        e('v_lshl_add_u32 %s, %s, 9, %s' % (t[0], vh, self.vtrb))
        self.vtr9 = V.alloc('vtr9')
        e('v_lshl_add_u32 %s, %s, 6, %s' % (self.vtr9, self.vq3, t[0]))
        e('s_lshl_b32 s98, s40, 6')
        e('v_xor_b32 %s, s98, %s' % (t[0], self.vtr9))
        e('s_lshl_b32 s98, s40, 15')
        e('s_add_u32 s98, s98, %d' % L_WO)
        e('v_add_u32 %s, s98, %s' % (vwr[0], t[0]))
        e('v_xor_b32 %s, 64, %s' % (vwr[1], vwr[0]))
        e('v_and_b32 %s, 15, %s' % (t[0], vlane))
        e('s_lshl_b32 s98, s40, 6')
        e('v_lshl_add_u32 %s, %s, 2, s98' % (vpo, t[0]))
        e('s_lshl_b32 s98, s40, 10')
        e('v_add_u32 %s, s98, %s' % (self.vw2[0], self.vl16))
        e('v_xor_b32 %s, 1024, %s' % (self.vw2[1], self.vw2[0]))
        e('s_mul_i32 s92, s5, %d' % (112 * 2048))
        e('s_add_u32 s92, s92, 0x%x' % WS_W2P)
        e('s_lshl_b32 s90, s4, 7')
        e('s_add_u32 s90, s90, 0x%x' % WS_OF)
        e('s_lshl_b32 s98, s5, 2')
        e('s_add_u32 s98, s98, s3')
        e('s_lshl_b32 s98, s98, 2')
        e('s_add_u32 s91, s98, s90')
        e.wait(vm=self.o_st)
        self.mode_stores(['buffer_store_dword %s, %s, s[32:35], s91 offen' % (self.vtag, self.vflag)])
        e('s_barrier', wait_vm=self.wo_tok, wait_lgkm=self.cs1_add)
        self.stamp('opub')
        cs = t.sub(2, 2)
        e('v_lshlrev_b32 %s, 2, %s' % (t[0], vlane))
        e('ds_read_b32 %s, %s offset:%d' % (cs[0], t[0], L_CSW1))
        e('v_mov_b32 %s, %s' % (cs[1], self.vtag))
        e('s_mul_i32 s98, s43, 2341')
        e('s_lshr_b32 s98, s98, 16')
        e('s_mul_i32 s99, s98, 28')
        e('s_sub_u32 s99, s43, s99')
        e('s_lshl_b32 s99, s99, 12')
        e('s_lshl_b32 s98, s98, 3')
        e('s_add_u32 s98, s98, s99')
        e('s_add_u32 s98, s98, 0x%x' % WS_CSP)
        e('s_cmp_lt_u32 s43, 224')
        e('s_cselect_b32 s98, s98, 0x%x' % OOB)
        e('s_cmp_eq_u32 s3, 0')
        e('s_cselect_b32 s98, s98, 0x%x' % OOB)
        e('v_lshlrev_b32 %s, 6, %s' % (t[0], vlane))
        e('buffer_store_dwordx2 %s, %s, s[32:35], s98 offen sc1' % (cs, t[0]))

        def wreads(s):
            out = []
            for u in range(2):
                buf = WB.sub((s % 4) * 8 + 4 * u, 4)
                for uu in range(2):
                    out.append('ds_read_b64_tr_b16 %s, %s offset:%d' % (buf.sub(2 * uu, 2), vwr[u], s * 2048 + uu * 1024))
            return out
        for s in wreads(0) + wreads(1):
            e(s)
        e('v_min_u32 %s, 55, %s' % (t[4], vlane))
        e('v_lshlrev_b32 %s, 3, %s' % (t[4], t[4]))
        e('s_lshl_b32 s98, s5, 9')
        e('s_add_u32 s93, s98, 0x%x' % WS_W2F)
        self.poll(t[4], 's93', t.sub(6, 2), width=2)
        self.poll(vpo, 's90', t.sub(6, 2))
        self.stamp('oflag')
        for u in range(16):
            if u % 4 == 0:
                e('s_add_u32 s98, s54, %d' % (u * 1024))
            e('buffer_load_dwordx4 %s, %s, s[32:35], s98 offen offset:%d sc1' % (OF.sub(4 * u, 4), self.vl16,
                                                                                (u % 4) * 1024))
        n_p3 = self.o.get('w2_p3', 3)
        for f in self.w2_loads(range(0, n_p3)):
            f()
        self.w2_next = n_p3
        vred = V.alloc('vred', 2)
        e('s_xor_b32 s98, s3, 1')
        e('s_lshl_b32 s98, s98, 12')
        e('s_add_u32 s98, s98, %d' % L_RED3)
        e('v_add_u32 %s, s98, %s' % (vred[0], self.vl16))
        e('s_add_u32 s98, s46, %d' % L_RED3)
        e('v_add_u32 %s, s98, %s' % (vred[1], self.vl16))
        for s in range(16):
            b = WB.sub((s % 4) * 8, 8)
            e('v_mfma_f32_32x32x16_bf16 %s, %s, %s, %s' % (acc1, b.sub(4, 4), OF.sub(4 * s, 4), '0' if s == 0 else acc1))
            rd = wreads(s + 2) if s + 2 < 16 else []
            for x in rd[:2]:
                e(x)
            e('v_mfma_f32_32x32x16_bf16 %s, %s, %s, %s' % (H, b.sub(0, 4), OF.sub(4 * s, 4), H))
            for x in rd[2:]:
                e(x)
        wr = [e('ds_write_b128 %s, %s offset:%d' % (vred[0], acc1.sub(4 * g, 4), g * 1024)) for g in range(4)]
        e('s_barrier', wait_lgkm=wr, wait_vm=self.w1a_tok)
        for g in range(4):
            e('ds_read_b128 %s, %s offset:%d' % (acc1.sub(4 * g, 4), vred[1], g * 1024))
        for r in range(0, 16, 2):
            e('v_pk_add_f32 %s, %s, %s' % (H.sub(r, 2), H.sub(r, 2), acc1.sub(r, 2)))
        PK = OF
        for r in range(8):
            e('v_cvt_pk_bf16_f32 %s, %s, %s' % (PK[r], H[2 * r], H[2 * r + 1]))
        h_st = self.mode_stores(['buffer_store_dwordx4 %s, %s, s[28:31], s55 offen' % (PK.sub(0, 4), self.vl16),
                                 'buffer_store_dwordx4 %s, %s, s[28:31], s55 offen offset:1024' % (PK.sub(4, 4), self.vl16)])
        e('s_add_u32 s49, s49, 128')
        w1b_f, self.w1b_tok = self.img_dma(self.vw1, 's[20:23]', 3584, L_W1B, [0, 1, 2, 3], 's49')
        nb = self.o.get('w1b_early', 2)
        for f in w1b_f[:nb]:
            f()
        self.w1b_rest = w1b_f[nb:]
        a = acc1
        e('v_pk_mul_f32 %s, %s, %s' % (a.sub(0, 2), H.sub(0, 2), H.sub(0, 2)))
        e('v_pk_add_f32 %s, %s, %s' % (a.sub(2, 2), H.sub(0, 2), H.sub(2, 2)))
        for r in range(2, 16, 2):
            e('v_pk_fma_f32 %s, %s, %s, %s' % (a.sub(0, 2), H.sub(r, 2), H.sub(r, 2), a.sub(0, 2)))
            if r >= 4:
                e('v_pk_add_f32 %s, %s, %s' % (a.sub(2, 2), a.sub(2, 2), H.sub(r, 2)))
        e('v_add_f32 %s, %s, %s' % (a[4], a[2], a[3]))
        e('v_add_f32 %s, %s, %s' % (a[6], a[0], a[1]))
        e('v_mov_b32 %s, %s' % (a[0], a[4]))
        e('v_mov_b32 %s, %s' % (a[1], a[6]))
        e('v_permlane32_swap_b32 %s, %s' % (a[0], a[4]))
        e('v_permlane32_swap_b32 %s, %s' % (a[1], a[6]))
        e('v_add_f32 %s, %s, %s' % (a[4], a[4], a[0]))
        e('v_add_f32 %s, %s, %s' % (a[6], a[6], a[1]))
        e('v_mov_b32 %s, %s' % (a[5], self.vtag))
        e('v_mov_b32 %s, %s' % (a[7], self.vtag))
        e('v_lshl_add_u32 %s, %s, 29, %s' % (t[0], vh, self.vl16))
        e('s_lshr_b32 s98, s55, 15')
        e('s_lshl_b32 s98, s98, 7')
        e('s_bfe_u32 s99, s55, 0x4000b')
        e('s_lshl_b32 s99, s99, 2')
        e('s_add_u32 s98, s98, s99')
        e('s_add_u32 s91, s98, 0x%x' % WS_HF)
        e.wait(vm=h_st)
        self.mode_stores(['buffer_store_dword %s, %s, s[32:35], s91 offen' % (self.vtag, self.vflag),
                          'buffer_store_dwordx4 %s, %s, s[32:35], s45 offen' % (a.sub(4, 4), t[0])])
        self.stamp('hpub')
        V.release('acc1', 'OF', 'vwr', 'vpo', 'vred', 'P', 'vwo', 'trb', 'q3')

    def p4(self):
        e, V, A = self.e, self.V, self.A
        t, vlane, vh = self.pt, self.vlane, self.vh
        WB = self.WBa
        HF = V.alloc('HF', 128, at=48)
        acc = [V.alloc('acc%d' % k, 16, at=176 + 16 * k) for k in range(4)]
        self.HF, self.acc = HF, acc
        vA = V.alloc('vA', 2)
        cz = [V.alloc('cA%d' % k, 6, 2) for k in range(2)]
        cA = [cz[0].sub(0, 2), cz[0].sub(4, 2), cz[1].sub(0, 2), cz[1].sub(4, 2)]
        cT = [cz[0].sub(0, 4), cz[0].sub(2, 4), cz[1].sub(0, 4), cz[1].sub(2, 4)]
        e('s_lshr_b32 s98, s4, 1')
        e('s_lshl_b32 s98, s98, 2')
        e('s_add_u32 s53, s98, s3')
        e('s_lshl_b32 s44, s53, 15')
        e('s_lshl_b32 s45, s53, 13')
        e('s_add_u32 s45, s45, 0x%x' % WS_ST2)
        e('s_lshl_b32 s90, s53, 7')
        e('s_add_u32 s90, s90, 0x%x' % WS_HF)
        e('s_cmp_lt_u32 s47, 14')
        e('s_cselect_b32 s99, 0, 0x%x' % OOB)
        e('s_mul_i32 s54, s53, %d' % H1_GT)
        e('s_lshl_b32 s98, s48, 13')
        e('s_add_u32 s54, s54, s98')
        e('s_add_u32 s54, s54, 0x%x' % WS_H1)
        e('s_add_u32 s54, s54, s99')
        e('s_mul_i32 s55, s53, 384')
        e('s_lshl_b32 s98, s48, 2')
        e('s_add_u32 s55, s55, s98')
        e('s_add_u32 s55, s55, 0x%x' % WS_H1F)
        e('s_add_u32 s55, s55, s99')
        e('v_add_u32 %s, %d, %s' % (vA[0], L_W1A, self.vtr9))
        e('v_xor_b32 %s, 64, %s' % (vA[1], vA[0]))
        V.release('vtr9')
        for k in range(2):
            e('v_mov_b32 %s, 0' % cz[k][2])
            e('v_mov_b32 %s, 0' % cz[k][3])
        csb = acc[2]
        csb2 = acc[3]
        e('v_and_b32 %s, 31, %s' % (t[0], vlane))
        e('v_lshlrev_b32 %s, 6, %s' % (t[0], t[0]))
        e('v_lshl_add_u32 %s, %s, 5, %s' % (t[0], vh, t[0]))
        e('s_lshl_b32 s93, s48, 13')
        e('s_add_u32 s93, s93, 0x%x' % WS_CSP)
        e('s_add_u32 s98, s93, 4096')
        e('L_csretry:')
        for tl in range(4):
            dst = (csb if tl < 2 else csb2).sub((tl % 2) * 8, 8)
            for k in range(2):
                e('buffer_load_dwordx4 %s, %s, s[32:35], %s offen offset:%d sc1' % (
                    dst.sub(4 * k, 4), t[0], 's93' if tl < 2 else 's98', (tl % 2) * 2048 + 16 * k))
        e('s_add_u32 s96, s96, 1')
        e('s_cmp_gt_u32 s96, s97')
        e('s_waitcnt vmcnt(0)')
        e('s_cbranch_scc1 L_csok')

        def tagcheck(regs, tmp):
            e('v_min3_u32 %s, %s, %s, %s' % (tmp[0], regs[0], regs[1], regs[2]))
            e('v_max3_u32 %s, %s, %s, %s' % (tmp[1], regs[0], regs[1], regs[2]))
            k = 3
            while k < len(regs):
                b = regs[k + 1] if k + 1 < len(regs) else regs[k]
                e('v_min3_u32 %s, %s, %s, %s' % (tmp[0], regs[k], b, tmp[0]))
                e('v_max3_u32 %s, %s, %s, %s' % (tmp[1], regs[k], b, tmp[1]))
                k += 2
            e('v_xor_b32 %s, s6, %s' % (tmp[0], tmp[0]))
            e('v_xor_b32 %s, s6, %s' % (tmp[1], tmp[1]))
            e('v_or_b32 %s, %s, %s' % (tmp[0], tmp[0], tmp[1]))
            e('v_cmp_ne_u32 vcc, 0, %s' % tmp[0])
        tagcheck([csb[k] for k in range(1, 16, 2)] + [csb2[k] for k in range(1, 16, 2)], t.sub(2, 2))
        e('s_cbranch_vccnz L_csretry')
        e('L_csok:')
        for tl in range(4):
            d = (csb if tl < 2 else csb2).sub((tl % 2) * 8, 8)
            e('v_add_f32 %s, %s, %s' % (d[0], d[0], d[2]))
            e('v_add_f32 %s, %s, %s' % (d[4], d[4], d[6]))
            e('v_add_f32 %s, %s, %s' % (d[0], d[0], d[4]))
            e('v_mov_b32 %s, %s' % (d[1], d[0]))
            e('v_permlane32_swap_b32 %s, %s' % (d[0], d[1]))
            e('v_add_f32 %s, %s, %s' % (d[0], d[0], d[1]))
            e('v_mul_f32 %s, %s, %s' % (d[0], self.hz, d[0]))
            e('v_cvt_pk_bf16_f32 %s, %s, %s' % (cA[tl][0], d[0], d[0]))
            e('v_and_b32 %s, 0xffff0000, %s' % (d[1], cA[tl][0]))
            e('v_sub_f32 %s, %s, %s' % (d[1], d[0], d[1]))
            e('v_cvt_pk_bf16_f32 %s, %s, %s' % (cA[tl][1], d[1], d[1]))

        def wreads(tl, s, slot):
            buf = WB.sub(slot * 4, 4)
            return ['ds_read_b64_tr_b16 %s, %s offset:%d' % (buf.sub(2 * uu, 2), vA[tl & 1], s * 2048 + uu * 1024)
                    for uu in range(2)]
        seq1 = [(tl, s) for s in range(32) for tl in (0, 1)]
        for n in range(4):
            for x in wreads(seq1[n][0], seq1[n][1], n):
                e(x)
        e('v_and_b32 %s, 15, %s' % (t[1], vlane))
        e('v_lshlrev_b32 %s, 2, %s' % (t[1], t[1]))
        self.poll(t[1], 's90', t.sub(6, 2))
        self.stamp('hflag')
        for s in range(32):
            if s % 4 == 0:
                e('s_add_u32 s98, s44, %d' % (s * 1024))
            e('buffer_load_dwordx4 %s, %s, s[28:31], s98 offen offset:%d sc1' % (HF.sub(4 * s, 4), self.vl16,
                                                                                (s % 4) * 1024))
        vst = V.alloc('vst')
        e('v_and_b32 %s, 31, %s' % (t[0], vlane))
        e('v_lshlrev_b32 %s, 4, %s' % (t[0], t[0]))
        e('v_lshl_add_u32 %s, %s, 12, %s' % (vst, vh, t[0]))

        def stloads(em):
            for k in range(8):
                dst = (csb if k < 4 else csb2).sub((k % 4) * 4, 4)
                em('buffer_load_dwordx4 %s, %s, s[32:35], s45 offen offset:%d sc1' % (dst, vst, k * 512))
        stloads(e)
        for f in self.w1b_rest:
            f()
        mB = V.alloc('mB2', 4, 2)
        sc = V.alloc('sc', 2, 2)
        V.release('vw1')

        def stats_chain():
            tagcheck([csb[k] for k in range(1, 16, 2)] + [csb2[k] for k in range(1, 16, 2)], t.sub(2, 2))
            e('s_cbranch_vccnz L_stspin')
            e('L_stok:')
            f = Emitter('st')
            f('L_stspin:')
            f('s_nop 7')
            stloads(f)
            f('s_add_u32 s96, s96, 1')
            f('s_cmp_gt_u32 s96, s97')
            f('s_waitcnt vmcnt(0)')
            f('s_cbranch_scc1 L_stok')
            save = self.e
            regs = [csb[k] for k in range(1, 16, 2)] + [csb2[k] for k in range(1, 16, 2)]
            tmp = t.sub(2, 2)
            f('v_min3_u32 %s, %s, %s, %s' % (tmp[0], regs[0], regs[1], regs[2]))
            f('v_max3_u32 %s, %s, %s, %s' % (tmp[1], regs[0], regs[1], regs[2]))
            k = 3
            while k < len(regs):
                b = regs[k + 1] if k + 1 < len(regs) else regs[k]
                f('v_min3_u32 %s, %s, %s, %s' % (tmp[0], regs[k], b, tmp[0]))
                f('v_max3_u32 %s, %s, %s, %s' % (tmp[1], regs[k], b, tmp[1]))
                k += 2
            f('v_xor_b32 %s, s6, %s' % (tmp[0], tmp[0]))
            f('v_xor_b32 %s, s6, %s' % (tmp[1], tmp[1]))
            f('v_or_b32 %s, %s, %s' % (tmp[0], tmp[0], tmp[1]))
            f('v_cmp_ne_u32 vcc, 0, %s' % tmp[0])
            f('s_cbranch_vccnz L_stspin')
            f('s_branch L_stok')
            self.tail.append(f.text())

        def stats_ops():
            a, b = csb, csb2
            ops = []
            for off in (0, 2):
                ops += ['v_add_f32 %s, %s, %s' % (a[off], a[off], a[off + 4]),
                        'v_add_f32 %s, %s, %s' % (a[off + 8], a[off + 8], a[off + 12]),
                        'v_add_f32 %s, %s, %s' % (b[off], b[off], b[off + 4]),
                        'v_add_f32 %s, %s, %s' % (b[off + 8], b[off + 8], b[off + 12]),
                        'v_add_f32 %s, %s, %s' % (a[off], a[off], a[off + 8]),
                        'v_add_f32 %s, %s, %s' % (b[off], b[off], b[off + 8]),
                        'v_add_f32 %s, %s, %s' % (a[off], a[off], b[off]),
                        'v_mov_b32 %s, %s' % (a[off + 1], a[off])]
            ops += ['s_nop 0',
                    'v_permlane32_swap_b32 %s, %s' % (a[0], a[1]),
                    'v_permlane32_swap_b32 %s, %s' % (a[2], a[3]),
                    'v_add_f32 %s, %s, %s' % (a[0], a[0], a[1]),
                    'v_add_f32 %s, %s, %s' % (a[2], a[2], a[3]),
                    'v_mul_f32 %s, %s, %s' % (a[0], hexf(-1.0 / 512), a[0]),
                    'v_mul_f32 %s, %s, %s' % (a[2], hexf(1.0 / 512), a[2]),
                    'v_fma_f32 %s, -%s, %s, %s' % (a[2], a[0], a[0], a[2]),
                    'v_max_f32 %s, 0, %s' % (a[2], a[2]),
                    'v_add_f32 %s, %s, %s' % (a[2], hexf(1e-5), a[2]),
                    'v_rsq_f32 %s, %s' % (sc[0], a[2]),
                    'v_sqrt_f32 %s, %s' % (sc[1], a[2])]
            ops += self.aug_ops(mB, a[0], a[1], False)[:-2] + ['v_mov_b32 %s, %s' % (mB[2], mB[0]), 'v_mov_b32 %s, %s' % (mB[3], mB[0])]
            ops += ['v_mul_f32 %s, %s, %s' % (sc[0], hexf(-LOG2E), sc[0])]
            return ops

        def aug(tl):
            return ['v_mfma_f32_32x32x16_bf16 %s, %s, %s, %s' % (acc[tl], cT[tl], mB, acc[tl])]

        et = t.sub(2, 4)
        self.h1_st = {}

        def epi(tl, packed=False):
            ops = []
            a = acc[tl]
            PK = a
            for r in range(0, 16, 2):
                x, y = et[(r // 2 % 2) * 2], et[(r // 2 % 2) * 2 + 1]
                xy = et.sub((r // 2 % 2) * 2, 2)
                if packed:
                    ops += ['v_pk_mul_f32 %s, %s, %s op_sel_hi:[1,0]' % (xy, a.sub(r, 2), sc),
                            'v_exp_f32 %s, %s' % (x, x), 'v_exp_f32 %s, %s' % (y, y),
                            'v_pk_fma_f32 %s, %s, %s, %s op_sel:[0,1,1] op_sel_hi:[1,1,1]' % (xy, xy, sc, sc),
                            'v_rcp_f32 %s, %s' % (x, x), 'v_rcp_f32 %s, %s' % (y, y),
                            'v_pk_mul_f32 %s, %s, %s' % (a.sub(r, 2), a.sub(r, 2), xy),
                            'v_cvt_pk_bf16_f32 %s, %s, %s' % (PK[r // 2], a[r], a[r + 1])]
                else:
                    ops += ['v_mul_f32 %s, %s, %s' % (x, sc[0], a[r]), 'v_mul_f32 %s, %s, %s' % (y, sc[0], a[r + 1]),
                            'v_exp_f32 %s, %s' % (x, x), 'v_exp_f32 %s, %s' % (y, y),
                            'v_fma_f32 %s, %s, %s, %s' % (x, x, sc[1], sc[1]),
                            'v_fma_f32 %s, %s, %s, %s' % (y, y, sc[1], sc[1]),
                            'v_rcp_f32 %s, %s' % (x, x), 'v_rcp_f32 %s, %s' % (y, y),
                            'v_mul_f32 %s, %s, %s' % (a[r], a[r], x),
                            'v_mul_f32 %s, %s, %s' % (a[r + 1], a[r + 1], y),
                            'v_cvt_pk_bf16_f32 %s, %s, %s' % (PK[r // 2], a[r], a[r + 1])]
                if r in (6, 14):
                    m = r // 8

                    def st(tl=tl, m=m, PK=PK):
                        if m == 0:
                            e('s_add_u32 s93, s54, %d' % (tl * 2048))
                        tok = e('buffer_store_dwordx4 %s, %s, s[32:35], s93 offen offset:%d sc1' % (
                            PK.sub(4 * m, 4), self.vl16, m * 1024))
                        self.h1_st.setdefault(tl, []).append(tok)
                    ops.append(st)
            return ops

        def flag(part, tiles):
            def f():
                w = []
                for tl in tiles:
                    w += self.h1_st[tl]
                e.wait(vm=w)
                self.mode_stores(['buffer_store_dword %s, %s, s[32:35], s55 offen offset:%d' % (
                    self.vtag, self.vflag, part * 128)])
            return f

        n_p4a = self.o.get('w2_p4a', 5)
        w2f = self.w2_loads(range(self.w2_next, self.w2_next + n_p4a))
        self.w2_next += n_p4a
        so = stats_ops()
        for n, (tl, s) in enumerate(seq1):
            e('v_mfma_f32_32x32x16_bf16 %s, %s, %s, %s' % (acc[tl], WB.sub((n % 8) * 4, 4), HF.sub(4 * s, 4),
                                                           '0' if s == 0 else acc[tl]))
            if n + 4 < 64:
                for x in wreads(seq1[n + 4][0], seq1[n + 4][1], (n + 4) % 8):
                    e(x)
            if n % 8 == 3 and w2f:
                w2f.pop(0)()
            if n == 48:
                stats_chain()
            if n > 48:
                k0 = (n - 49) * 3
                for x in so[k0:k0 + 3] if n < 63 else so[k0:]:
                    e(x)
        for f in w2f:
            f()
        for x in aug(0) + aug(1):
            e(x)
        self.stamp('p4a')
        e('s_barrier', wait_vm=self.w1b_tok)
        e('v_subrev_u32 %s, %d, %s' % (vA[0], L_W1A - L_W1B, vA[0]))
        e('v_subrev_u32 %s, %d, %s' % (vA[1], L_W1A - L_W1B, vA[1]))
        seq2 = [(2, s) for s in range(32)] + [(3, s) for s in range(32)]
        for n in range(4):
            for x in wreads(seq2[n][0], seq2[n][1], n):
                e(x)
        self.vh1 = V.alloc('vh1', 2)
        vpf = V.alloc('vpf5')
        self.vpf5 = vpf
        setup = ['s_mul_i32 s98, s41, %d' % H1_GT,
                 'v_add_u32 %s, s98, %s' % (self.vh1[0], self.vl16),
                 's_xor_b32 s98, s41, 1',
                 's_mul_i32 s98, s98, %d' % H1_GT,
                 'v_add_u32 %s, s98, %s' % (self.vh1[1], self.vl16),
                 's_mul_i32 s44, s4, %d' % (2 * H1_GT),
                 's_add_u32 s44, s44, 0x%x' % WS_H1,
                 'v_and_b32 %s, 15, %s' % (t[0], vlane),
                 'v_min_u32 %s, 13, %s' % (t[0], t[0]),
                 'v_bfe_u32 %s, %s, 4, 1' % (t[1], vlane),
                 'v_mul_u32_u24 %s, 384, %s' % (t[1], t[1]),
                 'v_lshl_add_u32 %s, %s, 2, %s' % (vpf, t[0], t[1]),
                 's_mul_i32 s45, s4, 768',
                 's_add_u32 s45, s45, 0x%x' % WS_H1F]
        rest_w2 = self.w2_loads(range(self.w2_next, 14))
        fillA = epi(0) + rest_w2[:len(rest_w2) // 2] + epi(1) + rest_w2[len(rest_w2) // 2:] + setup
        fillB = epi(2)

        def run(seq, base, fill, extra):
            pos = 0
            for k in range(32):
                n = base + k
                tl, s = seq[n]
                e('v_mfma_f32_32x32x16_bf16 %s, %s, %s, %s' % (acc[tl], WB.sub((n % 8) * 4, 4), HF.sub(4 * s, 4),
                                                               '0' if s == 0 else acc[tl]))
                if n + 4 < 64:
                    for x in wreads(seq[n + 4][0], seq[n + 4][1], (n + 4) % 8):
                        e(x)
                lo = 3
                upto = 0 if k < lo else (len(fill) * (k - lo + 1) + (32 - lo) - 1) // (32 - lo)
                while pos < upto:
                    f = fill[pos]
                    f() if callable(f) else e(f)
                    pos += 1
                for f in extra.get(k, []):
                    f() if callable(f) else e(f)
        run(seq2, 0, fillA, {})
        for x in aug(2):
            e(x)
        self.h1_loaded = 0

        def pollA():
            self.poll(vpf, 's45', t.sub(6, 2), imm=0)

        def h1l(p):
            def f():
                self.h1_load(p)
            return f
        pa = self.o.get('pollA_at', 20)
        extra = {self.o.get('flagA_at', 8): [flag(0, [0, 1])], pa: [pollA]}
        for k in range(pa, 32):
            p = self.h1_loaded
        extra.setdefault(pa, []).append(h1l(0))
        extra.setdefault(pa + 2, []).append(h1l(1))
        extra.setdefault(pa + 4, []).append(h1l(2))
        extra.setdefault(pa + 6, []).append(h1l(3))
        extra.setdefault(pa + 8, []).append(h1l(4))
        extra.setdefault(pa + 10, []).append(h1l(5))
        run(seq2, 32, fillB, extra)
        for x in aug(3):
            e(x)
        flag(1, [2])()
        for x in epi(3, packed=True):
            x() if callable(x) else e(x)
        self.flagC = flag(2, [3])
        self.stamp('p4end')
        V.release('vA', 'cA0', 'cA1', 'vst', 'mB2', 'sc')

    def h1_load(self, p):
        e = self.e
        e('s_add_u32 s98, s%d, s44' % (56 + p))
        for m in range(2):
            for a in range(2):
                e('buffer_load_dwordx4 %s, %s, s[32:35], s98 offen offset:%d sc1' % (
                    self.HF.sub(((p % 8) * 4 + m * 2 + a) * 4, 4), self.vh1[a], m * 1024))

    def p5(self):
        e, V, A = self.e, self.V, self.A
        t = self.pt
        acc = [self.H, self.acc[0], self.acc[1], self.acc[2]]
        HF, W2 = self.HF, self.W2
        vr = V.alloc('vr5', 4)

        def mf(p):
            out = []
            for m in range(2):
                for a in range(2):
                    for b in range(2):
                        u = 2 * a + b
                        c = '0' if (p == 0 and m == 0 and u != 0) else acc[u]
                        out.append('v_mfma_f32_32x32x16_bf16 %s, %s, %s, %s' % (
                            acc[u], W2.sub((p * 4 + m * 2 + b) * 4, 4), HF.sub(((p % 8) * 4 + m * 2 + a) * 4, 4), c))
            return out
        extra = {}

        def add(p, k, f):
            extra.setdefault((p, k), []).append(f)
        add(0, 7, self.flagC)
        add(1, 0, lambda: self.poll(self.vpf5, 's45', t.sub(6, 2), imm=128))
        add(1, 0, lambda: self.h1_load(6))
        add(1, 2, lambda: self.h1_load(7))
        add(1, 4, lambda: self.h1_load(8))
        add(2, 0, lambda: self.h1_load(9))
        pc = self.o.get('pollC_at', 4)
        add(pc, 0, lambda: self.poll(self.vpf5, 's45', t.sub(6, 2), imm=256))
        add(pc, 0, lambda: self.h1_load(10))
        add(pc, 2, lambda: self.h1_load(11))
        add(pc + 1, 0, lambda: self.h1_load(12))
        add(pc + 2, 0, lambda: self.h1_load(13))

        def addr():
            for u in range(1, 4):
                e('s_xor_b32 s98, s3, %d' % u)
                e('s_mul_i32 s98, s98, 12288')
                e('s_add_u32 s98, s98, %d' % (L_RED5 + (u - 1) * 4096))
                e('v_add_u32 %s, s98, %s' % (vr[u], self.vl16))
            e('s_mul_i32 s98, s3, 12288')
            e('s_add_u32 s98, s98, %d' % L_RED5)
            e('v_add_u32 %s, s98, %s' % (vr[0], self.vl16))
        add(8, 0, addr)
        for p in range(13):
            for k, s in enumerate(mf(p)):
                e(s)
                for f in extra.get((p, k), []):
                    f()
        last = mf(13)
        order = [3, 7, 2, 6, 1, 5, 0, 4]
        for k in order:
            e(last[k])
        wr = []
        for u in (3, 2, 1):
            for g in range(4):
                wr.append(e('ds_write_b128 %s, %s offset:%d' % (vr[u], acc[u].sub(4 * g, 4), g * 1024)))
        e('s_barrier', wait_lgkm=wr)
        for u in (1, 2, 3):
            for g in range(4):
                e('ds_read_b128 %s, %s offset:%d' % (acc[u].sub(4 * g, 4), vr[0], (u - 1) * 4096 + g * 1024))
        for u in (1, 2, 3):
            for r in range(0, 16, 2):
                e('v_pk_add_f32 %s, %s, %s' % (acc[0].sub(r, 2), acc[0].sub(r, 2), acc[u].sub(r, 2)))
        PK = acc[1]
        for r in range(8):
            e('v_cvt_pk_bf16_f32 %s, %s, %s' % (PK[r], acc[0][2 * r], acc[0][2 * r + 1]))
        e('v_permlane32_swap_b32 %s, %s' % (PK[0], PK[2]))
        e('v_permlane32_swap_b32 %s, %s' % (PK[1], PK[3]))
        e('v_permlane32_swap_b32 %s, %s' % (PK[4], PK[6]))
        e('v_permlane32_swap_b32 %s, %s' % (PK[5], PK[7]))
        fl = self.o.get('out_flags', '')
        e('buffer_store_dwordx4 %s, %s, s[28:31], 0 offen %s' % (PK.sub(0, 4), self.vout, fl))
        e('buffer_store_dwordx4 %s, %s, s[28:31], 0 offen offset:32 %s' % (PK.sub(4, 4), self.vout, fl))

    def finish(self):
        e = self.e
        t = self.pt
        if self.o.get('stamps'):
            self.stamp('end')
            self.stamp('dummy')
            e('s_waitcnt vmcnt(0) lgkmcnt(0)')
            e('s_memrealtime s[76:77]')
            e('s_lshl_b32 s98, s2, 2')
            e('s_add_u32 s98, s98, s3')
            e('s_lshl_b32 s98, s98, 7')
            e('s_add_u32 s98, s98, 0x%x' % WS_STAMP)
            for k, r in ((27, 's76'), (28, 's94'), (29, 's96'), (30, 's7'), (31, 's51')):
                e('v_writelane_b32 %s, %s, %d' % (self.vstamp, r, k))
            e('v_lshlrev_b32 %s, 2, %s' % (t[0], self.vlane))
            e('v_lshl_add_u32 %s, %s, 29, %s' % (t[0], self.vh, t[0]))
            e('buffer_store_dword %s, %s, s[32:35], s98 offen' % (self.vstamp, t[0]))
        e('s_cmp_gt_u32 s96, s97')
        e('s_cbranch_scc0 L_end')
        e('v_mov_b32 %s, 16' % t[0])
        e('v_mov_b32 %s, 0xdead' % t[1])
        e('global_store_dword %s, %s, s[36:37]' % (t[0], t[1]))
        e('L_end:')
        e('s_endpgm')

    def text(self):
        hdr = open('sequential_preLN__sliding_block__dense_activation_silu__prompt.s.ref').read()
        head = [l for l in hdr.split('\n') if l.startswith(';') and '@launch' not in l]
        out = '\n'.join(head) + '\n'
        out += '; @launch grid=(256,1,1) block=(256,1,1) lds=%d\n' % LDS_BYTES
        out += '.amdgcn_target "amdgcn-amd-amdhsa--gfx950"\n.text\n.globl %s\n.p2align 8\n.type %s,@function\n%s:\n' % (
            KNAME, KNAME, KNAME)
        out += self.e.text()
        for tl in self.tail:
            out += tl
        out += 'L_codeend:\n'
        out += self.cold
        out += '.p2align 6\n.type L_tab,@object\nL_tab:\n'
        for row in p5_table():
            vals = [(8 * jj + 2 * tl) * 1024 for jj, tl in row] + [0, 0]
            out += '    .long ' + ', '.join(str(v) for v in vals) + '\n'
        out += '.size L_tab, 256\n'
        out += '.section .rodata,"a"\n.p2align 6\n.amdhsa_kernel %s\n' % KNAME
        out += '  .amdhsa_next_free_vgpr 512\n  .amdhsa_next_free_sgpr 102\n  .amdhsa_accum_offset 256\n'
        out += '  .amdhsa_group_segment_fixed_size 0\n  .amdhsa_kernarg_size 72\n  .amdhsa_user_sgpr_count 2\n'
        out += '  .amdhsa_user_sgpr_kernarg_segment_ptr 1\n  .amdhsa_system_sgpr_workgroup_id_x 1\n.end_amdhsa_kernel\n'
        return out


def parse_opts(args):
    o = {}
    for a in args:
        if '=' in a:
            k, v = a.split('=', 1)
            try:
                v = int(v)
            except ValueError:
                pass
            o[k] = v
        else:
            o[a] = 1
    return o


if __name__ == '__main__':
    path = sys.argv[1]
    g = Gen(parse_opts(sys.argv[2:]))
    txt = g.build()
    open(path, 'w').write(txt)
    print('wrote', path, len(txt), 'bytes; vgpr high', g.V.high, 'stamps', g.stamp_names)
```

```python
import re

REG_RE = re.compile(r'(?<![\w.])([vas])(?:(\d+)|\[(\d+):(\d+)\])(?![\w])')
TRANS = ('v_exp_f32', 'v_log_f32', 'v_rcp_f32', 'v_rsq_f32', 'v_sqrt_f32', 'v_sin_f32', 'v_cos_f32')


def regs_of(op):
    out = []
    for m in REG_RE.finditer(op):
        k = m.group(1)
        if m.group(2) is not None:
            out.append((k, int(m.group(2))))
        else:
            out.extend((k, i) for i in range(int(m.group(3)), int(m.group(4)) + 1))
    if re.search(r'(?<![\w])vcc(?![\w])', op):
        out += [('s', 'vcc')]
    if re.search(r'(?<![\w])exec(?![\w])', op):
        out += [('s', 'exec')]
    if re.search(r'(?<![\w])m0(?![\w])', op):
        out += [('s', 'm0')]
    return out


def split_ops(s):
    ops, depth, cur = [], 0, ''
    for ch in s:
        if ch in '[(':
            depth += 1
        if ch in '])':
            depth -= 1
        if ch == ',' and depth == 0:
            ops.append(cur.strip())
            cur = ''
        else:
            cur += ch
    if cur.strip():
        ops.append(cur.strip())
    return ops


class Ins:
    __slots__ = ('text', 'mn', 'kind', 'defs', 'uses', 'srcc', 'passes', 'wait_vm', 'wait_lgkm', 'wide', 'seq',
                 'raw', 'comment')

    def __init__(self, text, raw=False):
        self.text = text
        self.raw = raw
        self.defs, self.uses, self.srcc = set(), set(), set()
        self.kind = 'other'
        self.passes = 0
        self.wait_vm = []
        self.wait_lgkm = []
        self.wide = False
        self.seq = None
        self.comment = ''
        t = text.split(';')[0].strip()
        if not t or raw:
            self.mn = ''
            self.kind = 'raw'
            return
        if t.endswith(':'):
            self.mn = ''
            self.kind = 'label'
            return
        parts = t.split(None, 1)
        mn = parts[0]
        self.mn = mn
        rest = parts[1] if len(parts) > 1 else ''
        ops = split_ops(rest)
        R = [regs_of(o) for o in ops]
        allr = [r for x in R for r in x]
        if mn.startswith('v_mfma'):
            self.kind = 'mfma'
            self.passes = 8 if '32x32' in mn else 4 if '16x16' in mn else 2
            self.defs = set(R[0])
            self.uses = set(R[1] + R[2] + R[3])
            self.srcc = set(R[3])
        elif mn.startswith(('buffer_load', 'global_load')):
            if re.search(r'\blds\b', rest) or mn.startswith('global_load_lds'):
                self.kind = 'dma'
                self.uses = set(allr) | {('s', 'm0')}
            else:
                self.kind = 'vmload'
                self.defs = set(R[0])
                self.uses = set(r for x in R[1:] for r in x)
        elif mn.startswith(('buffer_store', 'global_store')):
            self.kind = 'vmstore'
            self.uses = set(allr)
            self.wide = mn.endswith(('x3', 'x4'))
            if mn.startswith('buffer_store'):
                self.srcc = set(R[0])
            else:
                self.srcc = set(R[1])
        elif mn.startswith('ds_read'):
            self.kind = 'dsread'
            self.defs = set(R[0])
            self.uses = set(r for x in R[1:] for r in x)
        elif mn.startswith(('ds_write', 'ds_add')):
            self.kind = 'dswrite'
            self.uses = set(allr)
        elif mn.startswith('s_load'):
            self.kind = 'smem'
            self.defs = set(R[0])
            self.uses = set(R[1])
        elif mn.startswith(('s_memtime', 's_memrealtime')):
            self.kind = 'smem'
            self.defs = set(R[0])
        elif mn.startswith('v_'):
            self.kind = 'trans' if mn.replace('_e32', '').replace('_e64', '') in TRANS else 'valu'
            if mn.startswith('v_permlane'):
                self.defs = set(R[0] + R[1])
                self.uses = set(R[0] + R[1])
            elif mn.startswith(('v_fmac', 'v_dot2c')):
                self.defs = set(R[0])
                self.uses = set(allr)
            elif mn.startswith(('v_add_co', 'v_sub_co', 'v_addc_co')):
                self.defs = set(R[0] + R[1])
                self.uses = set(r for x in R[2:] for r in x)
            elif mn.startswith('v_writelane'):
                self.defs = set(R[0])
                self.uses = set(allr)
            elif mn == 'v_nop':
                pass
            else:
                self.defs = set(R[0])
                self.uses = set(r for x in R[1:] for r in x)
        elif mn.startswith('s_'):
            if mn in ('s_waitcnt', 's_nop', 's_barrier', 's_endpgm', 's_sleep', 's_setprio'):
                self.kind = mn
            elif mn.startswith(('s_cbranch', 's_branch')):
                self.kind = 'branch'
            elif mn.startswith('s_cmp') or mn.startswith('s_bitcmp'):
                self.kind = 'salu'
                self.uses = set(allr)
            else:
                self.kind = 'salu'
                self.defs = set(R[0])
                self.uses = set(r for x in R[1:] for r in x)
                if 'saveexec' in mn:
                    self.defs.add(('s', 'exec'))
        else:
            raise ValueError('unknown instruction: ' + text)


class Emitter:
    def __init__(self, name='main', conservative_entry=False):
        self.ins = []
        self.name = name
        self.pend_vm = []
        self.pend_lgkm = []
        self.now = 0
        self.mfma_free = 0
        self.scc_live = False
        self.hook = None
        self.in_hook = False
        self.last_vm = -1000

    def __call__(self, text, wait_vm=None, wait_lgkm=None):
        i = Ins(text)
        i.wait_vm = list(self.pend_vm) + list(wait_vm or [])
        i.wait_lgkm = list(self.pend_lgkm) + list(wait_lgkm or [])
        self.pend_vm, self.pend_lgkm = [], []
        self.ins.append(i)
        if i.kind == 'mfma':
            t = max(self.now, self.mfma_free)
            self.mfma_free = t + 4 * i.passes
            self.now = t + (12 if i.passes == 2 else 8)
        elif i.kind == 'trans':
            self.now += 8
        elif i.kind == 's_nop':
            self.now += 4 * (int(text.split()[1]) + 1)
        elif i.kind != 'label':
            if i.mn.startswith('v_pk_'):
                self.now = max(self.now, self.mfma_free)
            self.now += 4
        if i.mn.startswith(('s_cmp', 's_bitcmp')):
            self.scc_live = True
        elif i.mn.startswith(('s_cbranch_scc', 's_cselect')):
            self.scc_live = False
        if i.kind in ('vmload', 'vmstore', 'dma'):
            self.last_vm = self.now
        if self.hook is not None and not self.in_hook and not self.scc_live and i.kind != 'label':
            self.in_hook = True
            self.hook()
            self.in_hook = False
        return i

    def raw(self, text):
        i = Ins(text, raw=True)
        self.ins.append(i)
        return i

    def comment(self, text):
        self.raw('; ' + text)

    def wait(self, vm=None, lgkm=None):
        self.pend_vm += list(vm or [])
        self.pend_lgkm += list(lgkm or [])

    def drained(self, vm=True, lgkm=True):
        t = 's_waitcnt' + (' vmcnt(0)' if vm else '') + (' lgkmcnt(0)' if lgkm else '')
        return self(t)

    def finalize(self):
        out = self._waits(self.ins)
        out = self._hazards(out)
        return out

    def _waits(self, ins):
        out = []
        vm_seq = 0
        vm_done = 0
        lg_seq = 0
        lg_done = 0
        smem_pending = set()
        pend_vm = {}
        pend_lg = {}
        for i in ins:
            if i.kind in ('raw',):
                out.append(i)
                continue
            if i.kind == 's_waitcnt':
                m = re.search(r'vmcnt\((\d+)\)', i.text)
                if m:
                    vm_done = max(vm_done, vm_seq - int(m.group(1)))
                m = re.search(r'lgkmcnt\((\d+)\)', i.text)
                if m:
                    n = int(m.group(1))
                    if n == 0:
                        smem_pending = set()
                        lg_done = lg_seq
                    elif not smem_pending:
                        lg_done = max(lg_done, lg_seq - n)
                out.append(i)
                continue
            need_vm = 0
            need_lg = 0
            need_smem = False
            touched = i.defs | i.uses
            for r in touched:
                if r in pend_vm and pend_vm[r] > vm_done:
                    need_vm = max(need_vm, pend_vm[r])
                if r in pend_lg and pend_lg[r] > lg_done:
                    need_lg = max(need_lg, pend_lg[r])
                if r in smem_pending:
                    need_smem = True
            for t in i.wait_vm:
                assert t.seq is not None, 'wait on an op that was not emitted before: ' + t.text
                if t.seq > vm_done:
                    need_vm = max(need_vm, t.seq)
            for t in i.wait_lgkm:
                assert t.seq is not None
                if t.seq > lg_done:
                    need_lg = max(need_lg, t.seq)
            w = []
            if need_vm:
                n = min(vm_seq - need_vm, 63)
                w.append('vmcnt(%d)' % n)
                vm_done = max(vm_done, vm_seq - n)
            if need_smem or (need_lg and smem_pending):
                w.append('lgkmcnt(0)')
                smem_pending = set()
                lg_done = lg_seq
            elif need_lg:
                n = min(lg_seq - need_lg, 15)
                w.append('lgkmcnt(%d)' % n)
                lg_done = max(lg_done, lg_seq - n)
            if w:
                out.append(Ins('s_waitcnt ' + ' '.join(w)))
            if i.kind in ('vmload', 'vmstore', 'dma'):
                vm_seq += 1
                i.seq = vm_seq
                for r in i.defs:
                    pend_vm[r] = vm_seq
            elif i.kind in ('dsread', 'dswrite'):
                lg_seq += 1
                i.seq = lg_seq
                for r in i.defs:
                    pend_lg[r] = lg_seq
            elif i.kind == 'smem':
                smem_pending |= i.defs
                if not i.defs:
                    smem_pending.add(('x', 0))
            out.append(i)
        return out

    def _hazards(self, ins):
        out = []
        hist = []

        def dist_needed(i):
            need = 0
            d = 0
            for p, st in reversed(hist):
                if d >= 20:
                    break
                req = hazard(p, i)
                if req > d:
                    need = max(need, req - d)
                d += st
            return need

        for i in ins:
            if i.kind == 'raw':
                out.append(i)
                continue
            if i.kind == 'label':
                out.append(i)
                continue
            n = dist_needed(i)
            while n > 0:
                k = min(n, 16)
                nop = Ins('s_nop %d' % (k - 1))
                out.append(nop)
                hist.append((nop, k))
                n -= k
            out.append(i)
            st = 1
            if i.kind == 's_nop':
                st = int(i.text.split()[1]) + 1
            hist.append((i, st))
            if len(hist) > 40:
                hist = hist[-30:]
        return out

    def text(self):
        lines = []
        for i in self.finalize():
            if i.kind == 'label' or i.kind == 'raw':
                lines.append(i.text)
            else:
                lines.append('    ' + i.text)
        return '\n'.join(lines) + '\n'


def vregs(s):
    return {r for r in s if r[0] in 'va'}


def sregs(s):
    return {r for r in s if r[0] == 's'}


def hazard(p, c):
    req = 0
    pv = p.kind in ('valu', 'trans')
    cv = c.kind in ('valu', 'trans')
    cmem = c.kind in ('vmload', 'vmstore', 'dma', 'dsread', 'dswrite')
    if pv:
        pd = vregs(p.defs)
        ps = sregs(p.defs)
        if c.kind == 'mfma' and pd & c.uses:
            req = max(req, 2)
        if c.kind == 'mfma' and ('s', 'exec') in ps:
            req = max(req, 4)
        if cv and c.mn.startswith('v_permlane') and pd & c.uses:
            req = max(req, 2)
        if cv and c.mn.startswith(('v_readfirstlane', 'v_readlane')) and pd & c.uses:
            req = max(req, 1)
        if cv and 'dpp' in c.text and pd & c.uses:
            req = max(req, 2)
        if p.kind == 'trans' and cv and pd & (c.uses | c.defs):
            req = max(req, 1)
        if cv and ps & c.uses:
            req = max(req, 2)
        if c.kind in ('vmload', 'vmstore', 'dma') and ps & c.uses:
            req = max(req, 5)
        if c.kind in ('salu', 'branch') and ps & c.uses:
            req = max(req, 1)
        if c.kind == 'branch' and ('s', 'vcc') in ps and 'vcc' in c.mn:
            req = max(req, 1)
    if p.kind == 'salu' and ('s', 'm0') in p.defs and c.kind == 'dma':
        req = max(req, 1)
    if p.kind == 'vmstore' and p.wide:
        if cv and p.srcc & c.defs:
            req = max(req, 2)
        elif p.srcc & c.defs:
            req = max(req, 1)
    if p.kind == 'mfma':
        idx = {2: 0, 4: 1, 8: 2}[p.passes]
        D = p.defs
        if c.kind == 'mfma':
            ab = c.uses - c.srcc if not (c.srcc & (c.uses - c.srcc)) else c.uses
            ops = split_ops(c.text.split(None, 1)[1])
            abr = set(regs_of(ops[1]) + regs_of(ops[2]))
            if D & abr:
                req = max(req, (5, 8, 12)[idx])
            if D & c.srcc:
                if D == c.srcc and p.passes == c.passes:
                    req = max(req, (2, 0, 0)[idx])
                else:
                    req = max(req, (4, 6, 10)[idx])
            elif D & c.defs:
                req = max(req, (4, 6, 10)[idx])
        else:
            if (cv or cmem) and D & (c.uses | c.defs):
                req = max(req, (5, 8, 12)[idx])
            if (cv or c.kind in ('vmload', 'dsread')) and p.srcc & c.defs:
                req = max(req, (1, 3, 7)[idx])
    return req


class Regs:
    def __init__(self, kind, lo, hi):
        self.kind = kind
        self.free = [True] * hi
        for i in range(lo):
            self.free[i] = False
        self.hi = hi
        self.names = {}
        self.high = lo

    def alloc(self, name, n=1, align=1, at=None):
        if at is not None:
            assert all(self.free[at:at + n]), (name, at, [k for k, v in self.names.items()])
            base = at
        else:
            base = None
            rng = range(0, getattr(self, 'small_hi', self.hi) - n + 1)
            for b in rng:
                if b % align == 0 and all(self.free[b:b + n]):
                    base = b
                    break
            assert base is not None, 'out of %s registers for %s (live: %s)' % (self.kind, name, self.names)
        for i in range(base, base + n):
            self.free[i] = False
        assert name not in self.names, name
        self.names[name] = (base, n)
        self.high = max(self.high, base + n)
        return R(self.kind, base, n)

    def release(self, *names):
        for name in names:
            base, n = self.names.pop(name)
            for i in range(base, base + n):
                self.free[i] = True


class R:
    def __init__(self, kind, base, n):
        self.kind, self.base, self.n = kind, base, n

    def __str__(self):
        if self.n == 1:
            return '%s%d' % (self.kind, self.base)
        return '%s[%d:%d]' % (self.kind, self.base, self.base + self.n - 1)

    def __getitem__(self, i):
        assert 0 <= i < self.n, (i, self.n)
        return R(self.kind, self.base + i, 1)

    def sub(self, i, n):
        assert 0 <= i and i + n <= self.n, (i, n, self.n)
        return R(self.kind, self.base + i, n)
```

```python
import sys
import struct
import collections
from emit import Emitter, Regs, R, Ins

KNAME = 'sequential_preLN__sliding_block__dense_activation_silu__prompt_kernel'

WS_EPOCH = 0
WS_XCC = 0x1000
WS_KVF = 0x10000
WS_W2F = 0x30000
WS_OF = 0x32000
WS_HF = 0x33000
WS_H1F = 0x36000
WS_CSP = 0x40000
WS_ST2 = 0x60000
WS_KV = 0x100000
WS_W2P = 0x500000
WS_H1 = 0x700000
WS_STAMP = 0xF00000
WS_DUMP = 0x1000000
WS_BYTES = 0x10000000
OOB = 0x20000000
H1_GT = 112 * 1024

K = 1024
L_ST = 0
L_CS = 2048
L_CSW1 = 5120
L_RS = 7168
L_CA = 8 * K
L_QX = 8 * K
L_RING = 16 * K
SLOT = 24 * K
L_WQ = 64 * K
L_WO = 16 * K
L_W1A = 80 * K
L_W1B = 16 * K
L_SIDE = 128 * K
L_KX = 144 * K
L_VX = 152 * K
L_RED3 = 144 * K
L_RED5 = 80 * K
LDS_BYTES = 160 * K

LOG2E = 1.4426950408889634
SPIN_LIMIT = 400000


def f2u(x):
    return struct.unpack('<I', struct.pack('<f', x))[0]


def hexf(x):
    return '0x%08x' % f2u(x)


def p5_table():
    tab = []
    for kq in range(4):
        by = {t: [jj for jj in range(14) if (kq + jj) % 4 == t] for t in range(4)}
        early = sorted([(jj, t) for t in (0, 1) for jj in by[t]], key=lambda x: (x[1], x[0]))
        mid = [(jj, 2) for jj in by[2]]
        late = [(jj, 3) for jj in by[3]]
        first, extra = early[:6], early[6:]
        while len(mid) < 4:
            mid.insert(0, extra.pop(0))
        while len(late) < 4:
            late.insert(0, extra.pop(0))
        assert not extra
        tab.append(first + mid + late)
    return tab


class Gen:
    def __init__(self, opts):
        self.o = opts
        self.e = Emitter()
        self.tail = []
        self.V = Regs('v', 1, 256)
        self.V.small_hi = 48
        self.A = Regs('a', 0, 256)
        self.nstamp = 0
        self.npoll = 0
        self.nslow = 0
        self.stamp_names = []
        self.bg = collections.deque()
        self.gap = opts.get('gap', 64)
        self.extra_gap = 0
        self.nasync = 0

    def _hook(self):
        e = self.e
        if self.bg and e.now - e.last_vm >= self.gap + self.extra_gap:
            self.extra_gap = 0
            self.bg.popleft()()

    def pace(self, on):
        self.e.hook = self._hook if on else None

    def bg_flush(self, n=None):
        e = self.e
        h, e.hook = e.hook, None
        k = 0
        while self.bg and (n is None or k < n):
            self.bg.popleft()()
            k += 1
        e.hook = h

    def bg_until(self, cond):
        e = self.e
        h, e.hook = e.hook, None
        while not cond():
            self.bg.popleft()()
        e.hook = h

    def poll_issue(self, voff, soff, vtmp, imm=0):
        self.e('buffer_load_dword %s, %s, s[32:35], %s offen offset:%d sc1' % (vtmp, voff, soff, imm))

    def poll_check(self, voff, soff, vtmp, imm=0):
        e = self.e
        h, e.hook = e.hook, None
        k = self.nasync
        self.nasync += 1
        e('v_cmp_ne_u32 vcc, s6, %s' % vtmp)
        e('s_cbranch_vccnz L_aspin%d' % k)
        e('L_aok%d:' % k)
        e.hook = h
        self.tail.append(
            'L_aspin%d:\n    buffer_load_dword %s, %s, s[32:35], %s offen offset:%d sc1\n    s_add_u32 s96, s96, 1\n'
            '    s_cmp_gt_u32 s96, s97\n    s_waitcnt vmcnt(0)\n    s_cbranch_scc1 L_aok%d\n'
            '    v_cmp_ne_u32 vcc, s6, %s\n    s_nop 1\n    s_cbranch_vccnz L_aspin%d\n    s_branch L_aok%d\n'
            % (k, vtmp, voff, soff, imm, k, vtmp, k, k))

    def stamp(self, name):
        if not self.o.get('stamps'):
            return
        k = self.nstamp
        assert k < 28
        if k > 0:
            self.e('v_writelane_b32 %s, s%d, %d' % (self.vstamp, 72 + 2 * ((k - 1) & 1), k - 1))
        self.e('s_memtime s[%d:%d]' % (72 + 2 * (k & 1), 73 + 2 * (k & 1)))
        self.stamp_names.append(name)
        self.nstamp += 1

    def poll(self, voff, soff, vtmp, mask=None, width=1, imm=0, xor_lt=None):
        e = self.e
        k = self.npoll
        self.npoll += 1
        hook, e.hook = e.hook, None
        e('L_poll%d:' % k)
        if width == 1:
            e('buffer_load_dword %s, %s, s[32:35], %s offen offset:%d sc1' % (vtmp[0], voff, soff, imm))
        else:
            e('buffer_load_dwordx2 %s, %s, s[32:35], %s offen offset:%d sc1' % (vtmp.sub(0, 2), voff, soff, imm))
        e('s_add_u32 s96, s96, 1')
        e('s_cmp_gt_u32 s96, s97')
        e('s_cbranch_scc1 L_pdone%d' % k)
        e('s_waitcnt vmcnt(0)')
        if xor_lt is not None:
            e('v_xor_b32 %s, s6, %s' % (vtmp[0], vtmp[0]))
            e('v_cmp_le_u32 vcc, %d, %s' % (xor_lt, vtmp[0]))
        elif width == 1:
            e('v_cmp_ne_u32 vcc, s6, %s' % vtmp[0])
        else:
            e('v_xor_b32 %s, s6, %s' % (vtmp[0], vtmp[0]))
            e('v_xor_b32 %s, s6, %s' % (vtmp[1], vtmp[1]))
            e('v_or_b32 %s, %s, %s' % (vtmp[0], vtmp[0], vtmp[1]))
            e('v_cmp_ne_u32 vcc, 0, %s' % vtmp[0])
        if mask is not None:
            e('s_and_b64 vcc, vcc, %s' % mask)
        e('s_cbranch_vccnz L_poll%d' % k)
        e('L_pdone%d:' % k)
        e('s_waitcnt vmcnt(0)')
        e.hook = hook

    def mode_stores(self, stores):
        e = self.e
        if self.o.get('force_sc1'):
            return [e(s + ' sc1') for s in stores]
        k = self.nslow
        self.nslow += 1
        hook, e.hook = e.hook, None
        e('s_cmp_eq_u32 s7, 0')
        e('s_cbranch_scc1 L_slow%d' % k)
        toks = [e(s) for s in stores]
        e('L_back%d:' % k)
        e.hook = hook
        t = 'L_slow%d:\n    s_nop 4\n' % k
        for s in stores:
            t += '    ' + s + ' sc1\n'
        t += '    s_nop 1\n    s_branch L_back%d\n' % k
        self.tail.append(t)
        return toks

    @staticmethod
    def weave(e, main, fill, per=None, lead=0):
        def put(x):
            if callable(x):
                x()
            else:
                e(x)
        fill = list(fill)
        n = len(main)
        pos = 0
        for k, m in enumerate(main):
            put(m)
            if per is None:
                upto = (len(fill) * (k + 1) + n - 1) // n
            else:
                upto = min(len(fill), pos + (per[k] if isinstance(per, (list, tuple)) else per))
            while pos < upto:
                put(fill[pos])
                pos += 1
        while pos < len(fill):
            put(fill[pos])
            pos += 1

    def dump_v(self, regs, slot, nregs_total=None):
        e = self.e
        e('s_lshl_b32 s98, s2, 2')
        e('s_add_u32 s98, s98, s3')
        e('s_lshl_b32 s98, s98, 14')
        e('s_add_u32 s98, s98, 0x%x' % (WS_DUMP + slot * 0x1000000))
        t = self.V.alloc('dump_t', 2)
        e('v_lshlrev_b32 %s, 2, %s' % (t[0], self.vlane))
        for k, r in enumerate(regs):
            src = r
            if r.kind == 'a':
                e('v_accvgpr_read_b32 %s, %s' % (t[1], r))
                src = t[1]
            e('buffer_store_dword %s, %s, s[32:35], s98 offen offset:%d' % (src, t[0], (k % 16) * 256))
            if k % 16 == 15:
                e('s_add_u32 s98, s98, 4096')
            e('s_waitcnt vmcnt(0)')
        self.V.release('dump_t')

    def build(self):
        stop = self.o.get('stop', '')
        self.cold = ''
        for name, fn in (('pro', self.prologue), ('kv', self.p1_kv), ('p1', self.p1_q), ('attn', self.attention),
                         ('p3', self.p3), ('p4', self.p4), ('p5', self.p5)):
            fn()
            if name == stop:
                break
        self.finish()
        return self.text()

    def prologue(self):
        e, V, A = self.e, self.V, self.A
        o = self.o
        e('s_load_dwordx4 s[40:43], s[0:1], 0')
        e('s_cmp_ge_u32 s2, 256')
        e('s_cbranch_scc1 L_end')
        if o.get('stamps'):
            e('s_memrealtime s[94:95]')
            self.vstamp = R('v', 0, 1)
        self.stamp('start')
        self.vlane = V.alloc('lane', at=1)
        self.vflag = V.alloc('flagoff', at=3)
        self.vtag = V.alloc('tag', at=12)
        self.vh = V.alloc('h', at=13)
        self.hz = V.alloc('hz', at=14)
        self.vout = V.alloc('vout', at=15)
        self.vw2 = V.alloc('vw2', 2, at=16)
        V.alloc('resv_vw1', 4, at=18)
        self.vl16 = V.alloc('l16', at=2)
        vlane, vl16 = self.vlane, self.vl16
        t = V.alloc('pt', 8, 2, at=4)
        self.pt = t
        e('v_lshrrev_b32 %s, 6, v0' % t[0])
        e('v_and_b32 %s, 63, v0' % vlane)
        e('v_readfirstlane_b32 s3, %s' % t[0])
        if o.get('spread'):
            e('s_lshr_b32 s4, s2, 3')
            e('s_and_b32 s5, s2, 7')
        else:
            e('s_and_b32 s4, s2, 7')
            e('s_lshl_b32 s4, s4, 2')
            e('s_lshr_b32 s5, s2, 6')
            e('s_add_u32 s4, s4, s5')
            e('s_bfe_u32 s5, s2, 0x30003')
        self.vxA, self.vxB = V.alloc('xA'), V.alloc('xB')
        self.vwA, self.vwB, self.vwQ = V.alloc('wA'), V.alloc('wB'), V.alloc('wQ')
        self.vsw = V.alloc('swz')
        e('v_lshrrev_b32 %s, 3, %s' % (t[3], vlane))
        e('v_and_b32 %s, 7, %s' % (t[4], vlane))
        e('v_lshrrev_b32 %s, 4, %s' % (t[5], vlane))
        e('s_lshl_b32 s98, s4, 6')
        e('s_lshl_b32 s99, s3, 4')
        e('s_add_u32 s98, s98, s99')
        e('v_add_lshl_u32 %s, %s, s98, 10' % (t[6], t[3]))
        e('v_xor_b32 %s, %s, %s' % (t[7], t[4], t[5]))
        e('v_lshl_add_u32 %s, %s, 4, %s' % (self.vxA, t[7], t[6]))
        e('v_and_b32 %s, 1, %s' % (t[5], t[5]))
        e('v_lshlrev_b32 %s, 2, %s' % (t[5], t[5]))
        e('v_xor_b32 %s, %s, %s' % (t[4], t[4], t[5]))
        e('v_lshlrev_b32 %s, 4, %s' % (self.vsw, t[4]))
        e('v_add_u32 %s, s99, %s' % (t[2], t[3]))
        e('v_mul_u32_u24 %s, 3072, %s' % (t[2], t[2]))
        e('s_lshl_b32 s98, s5, 7')
        e('v_add3_u32 %s, %s, s98, %s' % (self.vwA, t[2], self.vsw))
        e('s_mul_i32 s100, s3, 6144')
        if o.get('rot'):
            e('s_lshl_b32 s85, s4, 1')
            e('s_add_u32 s85, s85, s5')
        e('s_mov_b32 s10, 0x%x' % (2048 * 1024))
        e('s_mov_b32 s11, 0x20000')
        e('s_mov_b32 s14, 0x%x' % (512 * 3072))
        e('s_mov_b32 s15, 0x20000')
        e('v_xor_b32 %s, 64, %s' % (self.vxB, self.vxA))
        e('v_add_u32 %s, %d, %s' % (self.vxB, 8192 - 3072, self.vxB))
        e('v_add_u32 %s, %d, %s' % (self.vwB, 24576 + 1024, self.vwA))
        for base, src in ((8, 40), (12, 42)):
            e('s_mov_b32 s%d, s%d' % (base, src))
            e('s_and_b32 s%d, s%d, 0xffff' % (base + 1, src + 1))
        self.kv_dma = {c: [] for c in range(8)}
        self.wq_dma = []
        self.dmaq = []
        for c in range(8):
            self.dmaq += self.chunk_items(c)
        for c in range(8):
            self.dmaq += self.wq_items(c)
        self.dma_pos = 0
        self.release_dma(o.get('win', 14))
        self.stamp('dma0')
        self.bg_flush(4)
        e('s_load_dwordx8 s[44:51], s[0:1], 16')
        e('s_load_dwordx4 s[52:55], s[0:1], 48')
        e('s_load_dwordx2 s[32:33], s[0:1], 64')
        e('s_getpc_b64 s[92:93]')
        e('L_pc:')
        e('s_and_b32 s58, s2, 8')
        e('s_lshr_b32 s58, s58, 1')
        e('s_add_u32 s58, s58, s3')
        e('s_lshl_b32 s58, s58, 12')
        e('v_and_b32 %s, 31, %s' % (t[1], vlane))
        e('v_lshl_add_u32 %s, %s, 7, s58' % (t[1], t[1]))
        e('v_min_u32 %s, L_codeend-L_pc-4, %s' % (t[1], t[1]))
        self.vdummy = V.alloc('dummy')
        e('global_load_dword %s, %s, s[92:93]' % (self.vdummy, t[1]))
        e('s_lshl_b32 s59, s3, 6')
        e('s_add_u32 s92, s92, s59')
        e('s_addc_u32 s93, s93, 0')
        e('s_add_u32 s92, s92, L_tab-L_pc')
        e('s_addc_u32 s93, s93, 0')
        e('s_load_dwordx16 s[56:71], s[92:93], 0')
        self.pace(True)
        e('v_lshlrev_b32 %s, 4, %s' % (vl16, vlane))
        e('v_add_u32 %s, %d, %s' % (self.vwQ, 24576 - 1024, self.vwA))
        e('s_lshl_b32 s101, s3, 11')
        e('s_mov_b32 s38, 0x0000ffff')
        e('s_mov_b32 s39, 0x0000ffff')
        e('s_mov_b32 s96, 0')
        e('s_mov_b32 s97, %d' % SPIN_LIMIT)
        e('v_cmp_eq_u32 vcc, 0, %s' % vlane)
        e('v_mov_b32 %s, 0x%x' % (t[0], OOB))
        e('v_cndmask_b32 %s, %s, 0, vcc' % (self.vflag, t[0]))

    def late_args(self):
        e, t = self.e, self.pt
        for base, src, nbytes in ((16, 44, 512 * 1024), (20, 48, 512 * 3584), (24, 50, 1792 * 1024),
                                  (28, 52, 2048 * 1024)):
            e('s_mov_b32 s%d, s%d' % (base, src))
            e('s_and_b32 s%d, s%d, 0xffff' % (base + 1, src + 1))
            e('s_mov_b32 s%d, 0x%x' % (base + 2, nbytes))
            e('s_mov_b32 s%d, 0x20000' % (base + 3))
        e('s_and_b32 s33, s33, 0xffff')
        e('s_mov_b32 s34, 0x%x' % WS_BYTES)
        e('s_mov_b32 s35, 0x20000')
        e('s_mov_b64 s[36:37], s[54:55]')
        self.pace(False)
        e('s_or_b32 s98, s2, s3')
        e('s_cmp_lg_u32 s98, 0')
        e('s_cbranch_scc1 L_notag')
        e('s_load_dword s98, s[32:33], 0')
        e('s_waitcnt lgkmcnt(0)')
        e('s_mul_i32 s98, s98, 0x9E3779B1')
        e('s_add_u32 s98, s98, 0x7F4A7C15')
        e('s_cmp_lt_u32 s98, 16')
        e('s_cselect_b32 s98, 0x2545F491, s98')
        e('v_mov_b32 %s, s98' % t[0])
        e('v_mov_b32 %s, 0' % t[1])
        e('s_mov_b64 exec, 1')
        e.raw('    global_store_dword %s, %s, s[36:37] sc1' % (t[1], t[0]))
        e.raw('    buffer_store_dword %s, %s, s[32:35], 0 offen sc1' % (t[0], t[1]))
        e('s_mov_b64 exec, -1')
        e('s_nop 1')
        e('L_notag:')
        self.pace(True)

    def release_dma(self, upto):
        upto = min(upto, len(self.dmaq))
        while self.dma_pos < upto:
            self.bg.append(self.dmaq[self.dma_pos])
            self.dma_pos += 1

    def chunk_soff(self, c, need_x):
        e = self.e
        if self.o.get('rot'):
            e('s_add_u32 s87, s85, %d' % c)
            e('s_and_b32 s87, s87, 7')
            if need_x:
                e('s_lshl_b32 s86, s87, 7')
            e('s_mul_i32 s87, s87, 196608')
        else:
            if need_x:
                e('s_mov_b32 s86, %d' % (c * 128))
            e('s_mov_b32 s87, %d' % (c * 196608))

    def chunk_items(self, c):
        e = self.e
        base = L_RING + (c % 6) * SLOT
        tk = self.kv_dma[c]

        def i0():
            e('s_add_u32 m0, s100, %d' % base)
            self.chunk_soff(c, True)
            tk.append(e('buffer_load_dwordx4 %s, s[8:11], s86 offen lds' % self.vxA))

        def i4():
            e('s_add_u32 m0, s100, %d' % (base + 4096))
            tk.append(e('buffer_load_dwordx4 %s, s[12:15], s87 offen lds' % self.vwB))
        return [i0,
                lambda: tk.append(e('buffer_load_dwordx4 %s, s[12:15], s87 offen offset:1024 lds' % self.vwA)),
                lambda: tk.append(e('buffer_load_dwordx4 %s, s[12:15], s87 offen offset:2048 lds' % self.vwA)),
                lambda: tk.append(e('buffer_load_dwordx4 %s, s[8:11], s86 offen offset:3072 lds' % self.vxB)),
                i4,
                lambda: tk.append(e('buffer_load_dwordx4 %s, s[12:15], s87 offen offset:1024 lds' % self.vwB))]

    def wq_items(self, c):
        e = self.e

        def i0():
            e('s_add_u32 m0, s101, %d' % (L_WQ + c * 8192))
            self.chunk_soff(c, False)
            self.wq_dma.append(e('buffer_load_dwordx4 %s, s[12:15], s87 offen lds' % self.vwA))
        return [i0, lambda: self.wq_dma.append(
            e('buffer_load_dwordx4 %s, s[12:15], s87 offen offset:1024 lds' % self.vwQ))]

    def p1_kv(self):
        e, V, A = self.e, self.V, self.A
        t = self.pt
        vlane = self.vlane
        WIN = self.o.get('win', 14)
        e('s_and_b32 s40, s3, 1')
        e('s_lshr_b32 s41, s3, 1')
        e('s_lshl_b32 s42, s40, 1')
        e('s_or_b32 s42, s42, s41')
        vx = V.alloc('vx', 4)
        vw = V.alloc('vw', 4)
        self.vtrb = V.alloc('trb')
        self.vq3 = V.alloc('q3')
        vh = self.vh
        e('v_lshrrev_b32 %s, 5, %s' % (vh, vlane))
        e('v_bfe_u32 %s, %s, 3, 1' % (self.vq3, vlane))
        e('v_bfe_u32 %s, %s, 2, 2' % (t[0], vlane))
        e('v_lshlrev_b32 %s, 7, %s' % (t[0], t[0]))
        e('v_bfe_u32 %s, %s, 4, 1' % (t[1], vlane))
        e('v_lshl_add_u32 %s, %s, 5, %s' % (t[0], t[1], t[0]))
        e('v_and_b32 %s, 3, %s' % (t[1], vlane))
        e('v_lshl_add_u32 %s, %s, 3, %s' % (self.vtrb, t[1], t[0]))
        e('v_xor_b32 %s, s41, %s' % (t[1], self.vq3))
        e('v_lshl_add_u32 %s, %s, 6, %s' % (t[1], t[1], self.vtrb))
        e('v_mul_u32_u24 %s, 3072, %s' % (t[2], vh))
        e('v_add_u32 %s, %s, %s' % (t[1], t[1], t[2]))
        e('v_bfe_u32 %s, %s, 4, 1' % (t[2], vlane))
        e('s_lshl_b32 s98, s40, 1')
        e('v_add_u32 %s, s98, %s' % (t[2], t[2]))
        e('v_mul_u32_u24 %s, 6144, %s' % (t[2], t[2]))
        e('v_mul_u32_u24 %s, 3072, %s' % (t[3], self.vq3))
        e('v_and_b32 %s, 7, %s' % (t[7], vlane))
        e('v_lshlrev_b32 %s, 7, %s' % (t[7], t[7]))
        e('v_add3_u32 %s, %s, %s, %s' % (t[2], t[2], t[3], t[7]))
        e('v_add_u32 %s, %d, %s' % (t[2], L_RING, t[2]))
        e('v_bfe_u32 %s, %s, 1, 3' % (t[3], vlane))
        for p in range(4):
            e('s_xor_b32 s98, s42, %d' % p)
            e('s_mul_i32 s99, s98, 6144')
            e('s_add_u32 s99, s99, %d' % L_RING)
            e('v_add_u32 %s, s99, %s' % (vw[p], t[1]))
            e('s_lshl_b32 s98, s98, 1')
            e('v_add_u32 %s, s98, %s' % (t[7], vh))
            e('v_xor_b32 %s, %s, %s' % (t[7], t[7], t[3]))
            e('v_lshl_add_u32 %s, %s, 4, %s' % (vx[p], t[7], t[2]))
        ones = V.alloc('ones', 2, 2)
        self.ones = ones
        e('v_mov_b32 %s, 0x3f803f80' % ones[0])
        e('v_mov_b32 %s, 0x3f803f80' % ones[1])
        X = A.alloc('X', 128, at=0)
        self.X = X
        accK = V.alloc('accK', 16, at=48)
        accV = V.alloc('accV', 16, at=64)
        sm = V.alloc('smalls', 16, at=80)
        WB = V.alloc('WB', 32, at=96)
        self.HV = V.alloc('HV', 64, at=192)
        self.OWN = A.alloc('OWN', 32, at=224)
        for n in range(4):
            e('s_add_u32 s98, s4, %d' % n)
            e('s_cmp_ge_u32 s98, 4')
            e('s_cselect_b32 s98, 0x3f803f80, 0')
            for r in range(16):
                e('v_mov_b32 %s, s98' % self.HV[n * 16 + r])
        for r in range(16):
            e('v_accvgpr_write_b32 %s, %s' % (self.OWN[8 + r], ones[0]))
        self.late_args()
        a0, a1 = V.alloc('a0', 2), V.alloc('a1', 2)
        e('v_and_b32 %s, 31, %s' % (t[0], vlane))
        e('s_lshl_b32 s98, s40, 10')
        e('v_lshl_add_u32 %s, %s, 5, s98' % (a0[0], t[0]))
        e('s_lshl_b32 s98, s41, 4')
        e('v_lshl_add_u32 %s, %s, 3, s98' % (t[1], vh))
        e('v_add_u32 %s, %s, %s' % (a0[1], a0[0], t[1]))
        e('s_lshl_b32 s98, s41, 9')
        e('v_lshl_add_u32 %s, %s, 4, s98' % (a1[0], t[0]))
        e('s_lshl_b32 s98, s40, 3')
        e('v_lshl_add_u32 %s, %s, 2, s98' % (t[1], vh))
        e('v_add_u32 %s, %s, %s' % (a1[1], a1[0], t[1]))
        e('v_sub_u32 %s, 1, %s' % (self.hz, vh))
        e('v_cvt_f32_u32 %s, %s' % (self.hz, self.hz))
        rsa = V.alloc('rsa', 2, at=164)
        e('s_lshl_b32 s98, s3, 7')
        e('v_lshl_add_u32 %s, %s, 2, s98' % (rsa[0], t[0]))
        e('v_lshl_add_u32 %s, %s, 4, s98' % (rsa[1], vh))
        vkg, vvg, vkx, vvx = (V.alloc('vkg', at=160), V.alloc('vvg', at=161), V.alloc('vkx', at=162),
                              V.alloc('vvx', at=163))
        e('s_lshl_b32 s98, s41, 13')
        e('s_lshl_b32 s99, s40, 11')
        e('s_add_u32 s98, s98, s99')
        e('v_add_u32 %s, s98, %s' % (vkg, self.vl16))
        e('v_and_b32 %s, 15, %s' % (t[0], vlane))
        e('v_lshl_add_u32 %s, %s, 4, %s' % (t[0], vh, t[0]))
        self.vidx16 = V.alloc('idx16')
        e('v_lshlrev_b32 %s, 4, %s' % (self.vidx16, t[0]))
        e('v_bfe_u32 %s, %s, 4, 1' % (t[1], vlane))
        e('v_lshl_add_u32 %s, %s, 12, %s' % (t[2], t[1], self.vidx16))
        e('v_add_u32 %s, s98, %s' % (vvg, t[2]))
        e('s_lshr_b32 s98, s98, 1')
        e('v_add_u32 %s, s98, %s' % (vkx, self.vl16))
        e('v_lshl_add_u32 %s, %s, 11, %s' % (t[2], t[1], self.vidx16))
        e('v_add_u32 %s, s98, %s' % (vvx, t[2]))
        e('v_add_u32 %s, %d, %s' % (vvx, L_VX, vvx))
        self.vqx = self.vw2[0]
        e('v_add_u32 %s, %d, %s' % (self.vqx, L_QX, vkx))
        e('v_add_u32 %s, %d, %s' % (vkx, L_KX, vkx))
        e('s_lshl_b32 s43, s4, 3')
        e('s_add_u32 s43, s43, s5')
        e('s_lshl_b32 s44, s43, 14')
        e('s_add_u32 s44, s44, 0x%x' % WS_KV)
        e('s_add_u32 s45, s44, 4096')
        e('s_lshl_b32 s46, s3, 12')
        vt = self.vw2[1]
        e('v_mov_b32 %s, 0' % vt)

        state = {'shift': 0}

        def slot_off(c):
            return (c % 6) * SLOT

        def reads(p_abs):
            c, p = divmod(p_abs, 4)
            off = slot_off(c) - state['shift']
            buf = WB.sub((p_abs % 4) * 8, 8)
            assert 0 <= off and off + 5632 + 512 < 65536, off
            return [
                'ds_read_b128 %s, %s offset:%d' % (X.sub(4 * p_abs, 4), vx[p], off),
                'ds_read_b64_tr_b16 %s, %s offset:%d' % (buf.sub(0, 2), vw[p], off + 1024),
                'ds_read_b64_tr_b16 %s, %s offset:%d' % (buf.sub(2, 2), vw[p], off + 1024 + 512),
                'ds_read_b64_tr_b16 %s, %s offset:%d' % (buf.sub(4, 2), vw[p], off + 2048),
                'ds_read_b64_tr_b16 %s, %s offset:%d' % (buf.sub(6, 2), vw[p], off + 2048 + 512),
            ]

        def shift_ops(c, p):
            want = (slot_off(c) // (2 * SLOT)) * 2 * SLOT
            prev = (slot_off(c - 1) // (2 * SLOT)) * 2 * SLOT if c else 0
            state['shift'] = want
            d = want - prev
            if d == 0:
                return []
            f = 'v_add_u32 %s, %d, %s' if d > 0 else 'v_subrev_u32 %s, %d, %s'
            return [f % (vx[p], abs(d), vx[p]), f % (vw[p], abs(d), vw[p])]

        def bigs(p_abs):
            buf = WB.sub((p_abs % 4) * 8, 8)
            x = X.sub(4 * p_abs, 4)
            c0 = '0' if p_abs == 0 else None
            return ['v_mfma_f32_32x32x16_bf16 %s, %s, %s, %s' % (accK, buf.sub(0, 4), x, c0 or accK),
                    'v_mfma_f32_32x32x16_bf16 %s, %s, %s, %s' % (accV, x, buf.sub(4, 4), c0 or accV)]

        def smalls(p_abs):
            p = p_abs % 4
            buf = WB.sub((p_abs % 4) * 8, 8)
            x = X.sub(4 * p_abs, 4)
            first = p_abs == 0
            M = 'v_mfma_f32_4x4x4_16b_bf16 %s, %s, %s, %s'
            a = []
            b = []
            if p & 1 == 0:
                a += [M % (sm.sub(0, 4), x.sub(0, 2), x.sub(0, 2), '0' if first else sm.sub(0, 4)),
                      M % (sm.sub(4, 4), ones, x.sub(0, 2), '0' if first else sm.sub(4, 4))]
                b += [M % (sm.sub(0, 4), x.sub(2, 2), x.sub(2, 2), sm.sub(0, 4)),
                      M % (sm.sub(4, 4), ones, x.sub(2, 2), sm.sub(4, 4))]
            if p & 2 == 0:
                a += [M % (sm.sub(8, 4), ones, buf.sub(0, 2), '0' if first else sm.sub(8, 4)),
                      M % (sm.sub(12, 4), ones, buf.sub(4, 2), '0' if first else sm.sub(12, 4))]
                b += [M % (sm.sub(8, 4), ones, buf.sub(2, 2), sm.sub(8, 4)),
                      M % (sm.sub(12, 4), ones, buf.sub(6, 2), sm.sub(12, 4))]
            if len(a) == 2:
                return a + ['s_nop 0'] + b
            return a + b

        last_read = [None]

        def barrier_for(c):
            self.bg_until(lambda: len(self.kv_dma[c]) == 6)
            self.pace(False)
            e('s_barrier', wait_vm=self.kv_dma[c], wait_lgkm=[last_read[0]] if last_read[0] else None)
            self.pace(True)
            if self.o.get('chunkstamps'):
                self.stamp('c%d' % c)
            lim = 6 * (c + 1) + WIN
            space = {0: 36, 1: 42, 2: 48, 3: 54, 4: 60}.get(c, 64)
            self.release_dma(min(lim, space))
            if c == 5:
                self.bg.append(lambda: setattr(self, 'tagld', e(
                    'global_load_dword %s, %s, s[36:37] sc1' % (self.vtag, vt))))

        def rd(p_abs):
            c, p = divmod(p_abs, 4)
            out = shift_ops(c, p)
            return out + reads(p_abs)

        barrier_for(0)
        self.stamp('chunk0')
        for s in rd(0) + rd(1):
            last_read[0] = e(s)
        for p_abs in range(28):
            nxt = p_abs + 2
            if nxt % 4 == 0:
                barrier_for(nxt // 4)
            r = rd(nxt)
            big = bigs(p_abs)
            e(big[0])
            h = len(r) - 2
            for s in r[:h]:
                last_read[0] = e(s)
            e(big[1])
            for s in r[h:]:
                last_read[0] = e(s)
            for s in smalls(p_abs):
                e(s)
        for s in rd(30)[:] + rd(31):
            last_read[0] = e(s)
        lr = last_read[0]
        for p_abs in (28, 29, 30):
            for s in smalls(p_abs):
                e(s)
        big_rest = bigs(28) + bigs(29) + bigs(30) + bigs(31)
        e(big_rest[0])
        e('s_mov_b32 s98, 0xaaaaaaaa')
        e('s_mov_b32 s99, 0xaaaaaaaa')
        e('s_mov_b32 vcc_lo, 0xcccccccc')
        e('s_mov_b32 vcc_hi, 0xcccccccc')
        e('v_cndmask_b32 %s, %s, %s, s[98:99]' % (t[2], sm[0], sm[1]))
        e('v_cndmask_b32 %s, %s, %s, s[98:99]' % (t[3], sm[2], sm[3]))
        e('v_cndmask_b32 %s, %s, %s, vcc' % (sm[5], t[2], t[3]))
        adds = [e('ds_write_b64 %s, %s offset:%d' % (a0[1], sm.sub(4, 2), L_ST)),
                e('ds_write_b32 %s, %s offset:%d' % (a1[1], sm[8], L_CS + 1024)),
                e('ds_write_b32 %s, %s offset:%d' % (a1[1], sm[12], L_CS + 2048))]
        e(big_rest[1])
        self.pace(False)
        e('s_barrier', wait_lgkm=adds + [lr])
        self.pace(True)
        self.release_dma(64)
        stb = V.alloc('stb', 16, at=128)
        e('ds_read_b128 %s, %s offset:%d' % (stb.sub(0, 4), a0[0], L_ST))
        e('ds_read_b128 %s, %s offset:%d' % (stb.sub(4, 4), a0[0], L_ST + 16))
        e(big_rest[2])
        e('ds_read_b128 %s, %s offset:%d' % (stb.sub(8, 4), a1[0], L_CS + 1024))
        e('ds_read_b128 %s, %s offset:%d' % (stb.sub(12, 4), a1[0], L_CS + 2048))
        self.csaddr = a1
        st = V.alloc('st', 2, at=156)
        csk, csv = V.alloc('csk', at=158), V.alloc('csv', at=159)
        mB = V.alloc('mB', 4, at=152)
        cK = V.alloc('cK', 4, at=144)
        cV = V.alloc('cV', 4, at=148)
        rs = V.alloc('rs', 2, 2)
        self.mB, self.rs = mB, rs
        rT = sm
        chain = [
            'v_add_f32 %s, %s, %s' % (stb[0], stb[0], stb[2]),
            'v_add_f32 %s, %s, %s' % (stb[1], stb[1], stb[3]),
            'v_add_f32 %s, %s, %s' % (stb[4], stb[4], stb[6]),
            'v_add_f32 %s, %s, %s' % (stb[5], stb[5], stb[7]),
            'v_add_f32 %s, %s, %s' % (st[0], stb[0], stb[4]),
            'v_add_f32 %s, %s, %s' % (st[1], stb[1], stb[5]),
            'v_mul_f32 %s, %s, %s' % (st[0], hexf(-1.0 / 512), st[0]),
            'v_mul_f32 %s, %s, %s' % (st[1], hexf(1.0 / 512), st[1]),
            'v_fma_f32 %s, -%s, %s, %s' % (st[1], st[0], st[0], st[1]),
            'v_max_f32 %s, 0, %s' % (st[1], st[1]),
            'v_add_f32 %s, %s, %s' % (st[1], hexf(1e-5), st[1]),
            'v_rsq_f32 %s, %s' % (rs[0], st[1]),
            'v_add_f32 %s, %s, %s' % (stb[8], stb[8], stb[9]),
            lambda: setattr(self, 'rsw', e('ds_write_b32 %s, %s offset:%d' % (rsa[0], rs[0], L_RS))),
            'v_add_f32 %s, %s, %s' % (stb[10], stb[10], stb[11]),
            'v_add_f32 %s, %s, %s' % (stb[12], stb[12], stb[13]),
            'v_add_f32 %s, %s, %s' % (stb[14], stb[14], stb[15]),
            'v_add_f32 %s, %s, %s' % (csk, stb[8], stb[10]),
            'v_add_f32 %s, %s, %s' % (csv, stb[12], stb[14]),
        ]
        aug = self.aug_ops(mB, st[0], t[6], False) + \
            ['v_mul_f32 %s, %s, %s' % (csk, self.hz, csk), 'v_mul_f32 %s, %s, %s' % (csv, self.hz, csv)] + \
            self.aug_ops(cK, csk, t[6], True) + self.aug_ops(cV, csv, t[7], True)

        def rdT(g):
            return lambda: e('ds_read_b128 %s, %s offset:%d' % (rT.sub(4 * g, 4), rsa[1], L_RS + 32 * g),
                             wait_lgkm=[self.rsw] if g == 0 else None)
        self.weave(e, big_rest[3:], chain + aug[:7] + [rdT(0), rdT(1)] + aug[7:12] + [rdT(2), rdT(3)] + aug[12:])
        e('v_mfma_f32_32x32x16_bf16 %s, %s, %s, %s' % (accK, cK, mB, accK))
        e('v_mfma_f32_32x32x16_bf16 %s, %s, %s, %s' % (accV, mB, cV, accV))
        self.pace(False)
        PK = WB
        st_tok = []
        for hd in range(2):
            for r in range(8 * hd, 8 * hd + 8):
                e('v_mul_f32 %s, %s, %s' % (accK[r], rs[0], accK[r]))
            for r in range(4 * hd, 4 * hd + 4):
                e('v_cvt_pk_bf16_f32 %s, %s, %s' % (PK[r], accK[2 * r], accK[2 * r + 1]))
            st_tok.append(e('buffer_store_dwordx4 %s, %s, s[32:35], s%d offen sc1' % (PK.sub(4 * hd, 4), vkg, 44 + hd)))
        for m in range(2):
            for r in range(8 * m, 8 * m + 8, 2):
                e('v_pk_mul_f32 %s, %s, %s' % (accV.sub(r, 2), accV.sub(r, 2), rT.sub(r, 2)))
            for r in range(4 * m, 4 * m + 4):
                e('v_cvt_pk_bf16_f32 %s, %s, %s' % (PK[8 + r], accV[2 * r], accV[2 * r + 1]))
            st_tok.append(e('buffer_store_dwordx4 %s, %s, s[32:35], s44 offen offset:%d sc1' % (
                PK.sub(8 + 4 * m, 4), vvg, 1024 + 512 * m)))
        self.kv_st = st_tok
        self.stamp('kvpub')
        self.xw = [e('ds_write_b128 %s, %s' % (vkx, PK.sub(0, 4))),
                   e('ds_write_b128 %s, %s offset:2048' % (vkx, PK.sub(4, 4))),
                   e('ds_write_b128 %s, %s' % (vvx, PK.sub(8, 4))),
                   e('ds_write_b128 %s, %s offset:512' % (vvx, PK.sub(12, 4)))]
        V.release('accK', 'accV', 'st', 'csk', 'csv', 'cK', 'cV', 'stb', 'vkg', 'vvg', 'vkx', 'vvx', 'rsa',
                  'xA', 'xB', 'wB', 'vx', 'a0')
        self.vw, self.WB, self.sm, self.vt = vw, WB, sm, vt

    def aug_ops(self, dst, val, tmp, dup):
        ops = ['v_cvt_pk_bf16_f32 %s, %s, %s' % (dst[0], val, val),
               'v_and_b32 %s, 0xffff0000, %s' % (tmp, dst[0]),
               'v_sub_f32 %s, %s, %s' % (tmp, val, tmp)]
        if dup:
            ops += ['v_cvt_pk_bf16_f32 %s, %s, %s' % (dst[1], tmp, tmp)]
        else:
            ops += ['v_cvt_pk_bf16_f32 %s, %s, %s' % (dst[0], val, tmp),
                    'v_mov_b32 %s, %s' % (dst[1], dst[0])]
        ops += ['v_mov_b32 %s, 0' % dst[2], 'v_mov_b32 %s, 0' % dst[3]]
        return ops

    def img_dma(self, vq, srd, stride, lds_base, groups, sbase):
        e = self.e
        out = []
        toks = []
        for g in groups:
            for k in range(4):
                def f(g=g, k=k):
                    if k == 0:
                        e('s_add_u32 m0, s46, %d' % (lds_base + g * 16384))
                        e('s_add_u32 s87, %s, %d' % (sbase, g * 128 * stride))
                    toks.append(e('buffer_load_dwordx4 %s, %s, s87 offen offset:%d lds' % (vq[k], srd, k * 1024)))
                out.append(f)
        return out, toks

    def img_voff(self, name, stride):
        e, V = self.e, self.V
        vq = V.alloc(name, 4)
        ops = ['v_lshrrev_b32 %s, 3, %s' % (vq[0], self.vlane),
               's_lshl_b32 s98, s3, 5',
               'v_add_u32 %s, s98, %s' % (vq[0], vq[0]),
               'v_mul_u32_u24 %s, %d, %s' % (vq[0], stride, vq[0]),
               'v_add_u32 %s, %s, %s' % (vq[0], vq[0], self.vsw)]
        for k in range(1, 4):
            ops.append('v_add_u32 %s, %d, %s' % (vq[k], k * (8 * stride - 1024), vq[0]))
        return vq, ops

    def p1_q(self):
        e, V, A = self.e, self.V, self.A
        t, vlane, vh = self.pt, self.vlane, self.vh
        vw, WB, sm, X, ones = self.vw, self.WB, self.sm, self.X, self.ones
        self.pace(True)
        e('v_xor_b32 %s, s41, %s' % (t[1], self.vq3))
        e('v_lshl_add_u32 %s, %s, 6, %s' % (t[1], t[1], self.vtrb))
        e('v_lshl_add_u32 %s, %s, 10, %s' % (t[1], vh, t[1]))
        for p in range(4):
            e('s_xor_b32 s98, s42, %d' % p)
            e('s_lshl_b32 s98, s98, 11')
            e('s_add_u32 s98, s98, %d' % L_WQ)
            e('v_add_u32 %s, s98, %s' % (vw[p], t[1]))
        vwo, ops = self.img_voff('vwo', 1024)
        for s in ops:
            e(s)
        self.vwo = vwo
        e('s_mul_i32 s47, s43, 2341')
        e('s_lshr_b32 s47, s47, 16')
        e('s_mul_i32 s98, s47, 28')
        e('s_sub_u32 s48, s43, s98')
        e('s_cmp_lt_u32 s43, 224')
        e('s_cselect_b32 s49, 0, 0x%x' % OOB)
        vs = V.alloc('vside', 4, at=128)
        e('v_lshrrev_b32 %s, 3, %s' % (t[0], vlane))
        e('s_lshl_b32 s98, s3, 4')
        e('v_add_u32 %s, s98, %s' % (t[0], t[0]))
        e('v_mul_u32_u24 %s, 3584, %s' % (vs[0], t[0]))
        e('v_add_u32 %s, %s, %s' % (vs[0], vs[0], self.vsw))
        e('v_add_u32 %s, %d, %s' % (vs[1], 8 * 3584 - 1024, vs[0]))
        e('v_lshl_add_u32 %s, %s, 10, %s' % (vs[2], t[0], self.vsw))
        e('v_add_u32 %s, %d, %s' % (vs[3], 8192 - 1024, vs[2]))
        e('s_mul_i32 s98, s47, %d' % (64 * 3584))
        e('s_lshl_b32 s99, s48, 7')
        e('s_add_u32 s98, s98, s99')
        e('s_add_u32 s90, s98, s49')
        e('s_lshl_b32 s99, s48, 16')
        e('s_lshl_b32 s98, s47, 7')
        e('s_add_u32 s98, s98, s99')
        e('s_add_u32 s91, s98, s49')
        e('s_lshl_b32 s50, s5, 7')
        side = []
        self.side_dma = side

        def sd0():
            e('s_add_u32 m0, s46, %d' % (L_SIDE + 2048))
            e('s_nop 0')
            side.append(e('buffer_load_dwordx4 %s, s[24:27], s91 offen lds' % vs[2]))

        def sd2():
            e('s_add_u32 m0, s46, %d' % L_SIDE)
            e('s_nop 0')
            side.append(e('buffer_load_dwordx4 %s, s[20:23], s90 offen lds' % vs[0]))
        side_items = [sd0, lambda: side.append(e('buffer_load_dwordx4 %s, s[24:27], s91 offen offset:1024 lds' % vs[3])),
                      sd2, lambda: side.append(e('buffer_load_dwordx4 %s, s[20:23], s90 offen offset:1024 lds' % vs[1]))]
        wo_f, self.wo_tok = self.img_dma(vwo, 's[16:19]', 1024, L_WO, [0, 1, 2], 's50')
        wo_f3, wo_tok3 = self.img_dma(vwo, 's[16:19]', 1024, L_WO, [3], 's50')
        self.wo_tok3 = wo_tok3
        accQ = V.alloc('accQ', 16, at=48)
        QB = V.alloc('QB', 16, at=64)

        def reads(p_abs):
            c, p = divmod(p_abs, 4)
            buf = QB.sub((p_abs % 4) * 4, 4)
            return ['ds_read_b64_tr_b16 %s, %s offset:%d' % (buf.sub(0, 2), vw[p], c * 8192),
                    'ds_read_b64_tr_b16 %s, %s offset:%d' % (buf.sub(2, 2), vw[p], c * 8192 + 512)]

        def big(p_abs):
            buf = QB.sub((p_abs % 4) * 4, 4)
            return 'v_mfma_f32_32x32x16_bf16 %s, %s, %s, %s' % (accQ, buf, X.sub(4 * p_abs, 4),
                                                                '0' if p_abs == 0 else accQ)

        def smalls(p_abs):
            if p_abs & 2:
                return []
            buf = QB.sub((p_abs % 4) * 4, 4)
            M = 'v_mfma_f32_4x4x4_16b_bf16 %s, %s, %s, %s'
            return [M % (sm.sub(0, 4), ones, buf.sub(0, 2), '0' if p_abs == 0 else sm.sub(0, 4)),
                    M % (sm.sub(4, 4), ones, buf.sub(2, 2), '0' if p_abs == 0 else sm.sub(4, 4))]

        self.bg_flush()
        self.pace(False)
        e('s_barrier', wait_vm=self.wq_dma)
        self.stamp('wq')
        self.bg.extend(side_items + wo_f)
        self.pace(True)
        for s in reads(0) + reads(1) + reads(2):
            e(s)
        Cl = V.alloc('Cl', 16, at=160)
        Cu = V.alloc('Cu', 16, at=176)
        self.Cl, self.Cu = Cl, Cu
        BIG = 2.0 ** 100
        fill = ['v_and_b32 %s, 31, %s' % (t[0], vlane),
                'v_lshlrev_b32 %s, 2, %s' % (t[1], vh),
                'v_sub_u32 %s, %s, %s' % (t[0], t[0], t[1]),
                'v_cvt_f32_i32 %s, %s' % (t[0], t[0]),
                'v_mov_b32 %s, %s' % (t[1], hexf(BIG)),
                'v_mov_b32 %s, %s' % (t[2], hexf(-BIG))]
        for r in range(16):
            cr = (r & 3) + 8 * (r >> 2)
            fill += ['v_fmaak_f32 %s, %s, %s, %s' % (Cl[r], t[0], t[1], hexf(-cr * BIG)),
                     'v_fmaak_f32 %s, %s, %s, %s' % (Cu[r], t[0], t[2], hexf((cr - 1) * BIG)),
                     'v_min_f32 %s, 0, %s' % (Cl[r], Cl[r]),
                     'v_min_f32 %s, 0, %s' % (Cu[r], Cu[r])]

        def tag_and_flag():
            vt = self.vt
            self.pace(False)
            e('v_cmp_eq_u32 vcc, 0, %s' % self.vtag)
            e('s_lshl_b32 s98, s43, 2')
            e('s_cbranch_vccnz L_tagspin')
            e('L_tagok:')
            self.tail.append(
                'L_tagspin:\n    global_load_dword %s, %s, s[36:37] sc1\n    s_add_u32 s96, s96, 1\n'
                '    s_cmp_gt_u32 s96, s97\n    s_waitcnt vmcnt(0)\n    s_cbranch_scc1 L_tagok\n'
                '    v_cmp_eq_u32 vcc, 0, %s\n    s_nop 1\n    s_cbranch_vccnz L_tagspin\n    s_branch L_tagok\n'
                % (self.vtag, vt, self.vtag))
            e('s_add_u32 s98, s98, s3')
            e('s_lshl_b32 s98, s98, 7')
            e('s_add_u32 s98, s98, 0x%x' % WS_KVF)
            e('buffer_store_dword %s, %s, s[32:35], s98 offen sc1' % (self.vtag, self.vflag), wait_vm=self.kv_st)
            self.stamp('kvflag')
            e('v_readfirstlane_b32 s6, %s' % self.vtag)
            self.pace(True)

        def xccpub():
            vt = self.vt
            e('s_getreg_b32 s51, hwreg(HW_REG_XCC_ID, 0, 4)')
            e('s_lshr_b32 s98, s43, 4')
            e('s_lshl_b32 s52, s98, 7')
            e('s_add_u32 s52, s52, 0x%x' % WS_XCC)
            e('s_and_b32 s98, s43, 15')
            e('s_lshl_b32 s98, s98, 2')
            e('s_add_u32 s98, s98, s52')
            e('s_cmp_eq_u32 s3, 0')
            e('s_cselect_b32 s98, s98, 0x%x' % OOB)
            e('v_xor_b32 %s, s51, %s' % (vt, self.vtag))
            e('buffer_store_dword %s, %s, s[32:35], s98 offen sc1' % (vt, self.vflag))

        nfill = len(fill)
        pos = 0
        FLAG_AT = self.o.get('kvflag_at', 10)
        for p_abs in range(28):
            e(big(p_abs))
            for s in reads(p_abs + 3):
                e(s)
            upto = min(nfill, (nfill * (p_abs + 1) + 25) // 26)
            while pos < upto:
                e(fill[pos])
                pos += 1
            if p_abs == FLAG_AT:
                tag_and_flag()
            if p_abs == FLAG_AT + 2:
                xccpub()
            for s in smalls(p_abs):
                e(s)
        for s in smalls(28):
            e(s)
        lr = None
        for s in smalls(29):
            e(s)
        for s in reads(31):
            lr = e(s)
        e(big(28))
        e('v_add_f32 %s, %s, %s' % (t[3], sm[0], sm[4]))
        ad = e('ds_write_b32 %s, %s offset:%d' % (self.csaddr[1], t[3], L_CS))
        e(big(29))
        self.pace(False)
        e('s_barrier', wait_lgkm=[ad, lr])
        self.bg.extend(wo_f3)
        self.pace(True)
        cq4 = sm.sub(8, 4)
        cQ = V.alloc('cQ', 4, at=144)
        e('ds_read_b128 %s, %s offset:%d' % (cq4, self.csaddr[0], L_CS))
        e(big(30))
        vr = V.alloc('vr', 3, at=132)
        e('v_add_u32 %s, s101, %s' % (vr[0], self.vl16))
        e('v_add_u32 %s, %d, %s' % (vr[1], L_KX, vr[0]))
        e('v_add_u32 %s, s101, %s' % (vr[2], self.vidx16))
        e('v_add_u32 %s, %d, %s' % (vr[2], L_VX, vr[2]))
        e('v_mul_f32 %s, %s, %s' % (self.rs[0], hexf(0.25 * LOG2E), self.rs[0]))
        e(big(31))
        e('v_add_f32 %s, %s, %s' % (cq4[0], cq4[0], cq4[1]))
        e('v_add_f32 %s, %s, %s' % (cq4[2], cq4[2], cq4[3]))
        e('v_add_f32 %s, %s, %s' % (cq4[0], cq4[0], cq4[2]))
        e('v_mul_f32 %s, %s, %s' % (cq4[0], self.hz, cq4[0]))
        for s in self.aug_ops(cQ, cq4[0], t[3], True):
            e(s)
        e('v_mfma_f32_32x32x16_bf16 %s, %s, %s, %s' % (accQ, cQ, self.mB, accQ))
        OWN = self.OWN
        e('ds_read_b128 %s, %s offset:1024' % (OWN.sub(4, 4), vr[1]))
        e('ds_read_b128 %s, %s' % (OWN.sub(0, 4), vr[1]))
        self.pace(False)
        e('s_mov_b64 exec, s[38:39]')
        e('ds_read_b128 %s, %s offset:1024' % (OWN.sub(16, 4), vr[2]))
        e('ds_read_b128 %s, %s offset:1536' % (OWN.sub(20, 4), vr[2]))
        e('ds_read_b128 %s, %s' % (OWN.sub(8, 4), vr[2]))
        e('ds_read_b128 %s, %s offset:512' % (OWN.sub(12, 4), vr[2]))
        e('s_mov_b64 exec, -1')
        self.pace(True)
        w = []
        for hd in range(2):
            for r in range(8 * hd, 8 * hd + 8, 2):
                e('v_pk_mul_f32 %s, %s, %s op_sel_hi:[1,0]' % (accQ.sub(r, 2), accQ.sub(r, 2), self.rs))
            for r in range(4 * hd, 4 * hd + 4):
                e('v_cvt_pk_bf16_f32 %s, %s, %s' % (QB[r], accQ[2 * r], accQ[2 * r + 1]))
            w.append(e('ds_write_b128 %s, %s offset:%d' % (self.vqx, QB.sub(4 * hd, 4), 2048 * hd)))
        self.pace(False)
        e('s_barrier', wait_lgkm=w)
        self.pace(True)
        e('ds_read_b128 %s, %s offset:%d' % (OWN.sub(28, 4), vr[0], L_QX + 1024))
        e('ds_read_b128 %s, %s offset:%d' % (OWN.sub(24, 4), vr[0], L_QX))
        self.stamp('qdone')
        assert len(side) == 4, 'side DMAs must be issued before their address registers are released'
        V.release('accQ', 'QB', 'cQ', 'vr', 'mB', 'rs', 'a1', 'vw', 'wA', 'wQ', 'WB', 'dummy', 'smalls', 'vside')
        A.release('X')

    def kfrag(self, s):
        return self.HK.sub(4 * s, 4) if s < 8 else self.OWN.sub(4 * (s - 8), 4)

    def vfrag(self, s, m):
        return self.HV.sub(8 * s + 4 * m, 4) if s < 8 else self.OWN.sub(8 + 8 * (s - 8) + 4 * m, 4)

    def qfrag(self, qb):
        return self.OWN.sub(24 + 4 * qb, 4)

    def cmask(self, s, qb):
        if s == qb:
            return str(self.Cu)
        if s == qb + 8:
            return str(self.Cl)
        return '0'

    def attn_run(self, e, blocks, S, P, O, first, fill_at, cfun=None, last_pv=True):
        cfun = cfun or self.cmask

        def smf(n):
            s, qb = blocks[n]
            if s < 8 and e is self.e:
                self.bg_until(lambda: (s, 2) in self.halo_done or (s, 0) in self.halo_done)
            return 'v_mfma_f32_32x32x16_bf16 %s, %s, %s, %s' % (S[n % 2], self.kfrag(s), self.qfrag(qb), cfun(s, qb))

        def pv(n, m):
            s, qb = blocks[n]
            if s < 8 and e is self.e:
                self.bg_until(lambda: (s, 1) in self.halo_done)
            c = O[qb]
            if qb in first:
                first.discard(qb)
                c = '0'
            return 'v_mfma_f32_32x32x16_bf16 %s, %s, %s, %s' % (O[qb], self.vfrag(s, m), P.sub(4 * m, 4), c)

        e(smf(0))
        pending = None
        for n in range(len(blocks)):
            s_ = S[n % 2]
            fl = list(fill_at.get(n, []))
            ex = ['v_exp_f32 %s, %s' % (s_[r], s_[r]) for r in range(16)]
            cv = ['v_cvt_pk_bf16_f32 %s, %s, %s' % (P[r], s_[2 * r], s_[2 * r + 1]) for r in range(8)]
            if n == 0 and len(blocks) > 1:
                e(smf(1))
                for f in fl:
                    f() if callable(f) else e(f)
                fl = []
            e(ex[0])
            e(ex[1])
            if pending:
                e(pending)
                pending = None
            for s in ex[2:5]:
                e(s)
            if n > 0 and n + 1 < len(blocks):
                e(smf(n + 1))
            for s in ex[5:8]:
                e(s)
            for s in cv[0:4]:
                e(s)
            e(ex[8])
            e(ex[9])
            e(pv(n, 0))
            for f in fl:
                f() if callable(f) else e(f)
            for s in ex[10:16]:
                e(s)
            for s in cv[4:8]:
                e(s)
            pending = pv(n, 1)
        return pending

    def attention(self):
        e, V, A = self.e, self.V, self.A
        t, vlane, vh = self.pt, self.vlane, self.vh
        ones = self.ones
        self.HK = V.alloc('HK', 32, at=128)
        S = [V.alloc('S0', 16, at=48), V.alloc('S1', 16, at=64)]
        P = V.alloc('P', 8, at=112)
        O = [V.alloc('O0', 16, at=80), V.alloc('O1', 16, at=96)]
        self.S, self.P, self.O = S, P, O
        first = {0, 1}
        own = [(9, 1), (8, 1), (8, 0)]
        vhk, vhv, vpf = V.alloc('vhk'), V.alloc('vhv'), V.alloc('vpf')
        vsr = V.alloc('vsr', 2)
        prep = ['v_add_u32 %s, s46, %s' % (vhk, self.vl16),
                'v_add_u32 %s, s46, %s' % (vhv, self.vidx16),
                'v_bfe_u32 %s, %s, 1, 2' % (t[0], vlane),
                'v_lshlrev_b32 %s, 12, %s' % (t[2], t[0]),
                'v_and_b32 %s, 1, %s' % (t[1], vlane),
                'v_lshl_add_u32 %s, %s, 7, %s' % (vpf, t[1], t[2]),
                'v_add_u32 %s, s4, %s' % (t[0], t[0]),
                'v_cmp_le_u32 s[54:55], 4, %s' % t[0],
                's_sub_u32 s98, s43, 32',
                's_lshl_b32 s98, s98, 9',
                's_lshl_b32 s99, s41, 8',
                's_add_u32 s98, s98, s99',
                's_add_u32 s53, s98, 0x%x' % WS_KVF]
        for n in range(4):
            prep += ['s_add_u32 s99, s4, %d' % n,
                     's_add_u32 s98, s44, %d' % ((n - 4) * 131072 & 0xffffffff),
                     's_cmp_ge_u32 s99, 4',
                     's_cselect_b32 s%d, s98, 0x%x' % (76 + n, OOB)]
        prep2 = ['v_lshl_add_u32 %s, %s, 9, %s' % (t[0], vh, self.vtrb),
                 'v_add_u32 %s, s46, %s' % (t[0], t[0]),
                 'v_add_u32 %s, %d, %s' % (t[0], L_SIDE, t[0]),
                 'v_lshl_add_u32 %s, %s, 6, %s' % (vsr[0], self.vq3, t[0]),
                 'v_xor_b32 %s, 64, %s' % (vsr[1], vsr[0]),
                 's_mul_i32 s98, s47, %d' % (112 * 2048),
                 's_lshl_b32 s99, s48, 13',
                 's_add_u32 s98, s98, s99',
                 's_add_u32 s98, s98, s101',
                 's_add_u32 s98, s98, s49',
                 's_add_u32 s91, s98, 0x%x' % WS_W2P,
                 's_lshl_b32 s98, s47, 9',
                 's_lshl_b32 s99, s48, 4',
                 's_add_u32 s98, s98, s99',
                 's_lshl_b32 s99, s3, 2',
                 's_add_u32 s98, s98, s99',
                 's_add_u32 s98, s98, s49',
                 's_add_u32 s80, s98, 0x%x' % WS_W2F,
                 's_lshl_b32 s99, s48, 12',
                 's_lshl_b32 s98, s47, 3',
                 's_add_u32 s98, s98, s99',
                 's_add_u32 s98, s98, s49',
                 's_add_u32 s98, s98, 0x%x' % WS_CSP,
                 's_cmp_eq_u32 s3, 0',
                 's_cselect_b32 s90, s98, 0x%x' % OOB]
        pend = self.attn_run(e, own, S, P, O, first, {0: prep, 2: prep2})
        sb, sm = S[0], S[1]
        self.bg_flush()
        self.pace(False)
        e.wait(vm=self.side_dma)
        for pc in (1, 0):
            for nt in range(2):
                for u in range(2):
                    e('ds_read_b64_tr_b16 %s, %s offset:%d' % (sb.sub(pc * 8 + nt * 4 + 2 * u, 2), vsr[nt],
                                                                pc * 2048 + u * 1024))
        e(pend)
        self.w2p_st = [e('buffer_store_dwordx4 %s, %s, s[32:35], s91 offen sc1' % (sb.sub(8, 4), self.vl16)),
                       e('buffer_store_dwordx4 %s, %s, s[32:35], s91 offen offset:1024 sc1' % (sb.sub(12, 4), self.vl16))]
        self.poll_issue(vpf, 's53', t[6])
        M = 'v_mfma_f32_4x4x4_16b_bf16 %s, %s, %s, %s'
        e(M % (sm.sub(0, 4), ones, sb.sub(0, 2), '0'))
        e(M % (sm.sub(4, 4), ones, sb.sub(4, 2), '0'))
        e('v_and_b32 %s, 31, %s' % (t[0], vlane))
        e(M % (sm.sub(0, 4), ones, sb.sub(2, 2), sm.sub(0, 4)))
        e(M % (sm.sub(4, 4), ones, sb.sub(6, 2), sm.sub(4, 4)))
        e('s_lshl_b32 s98, s3, 3')
        e('v_lshl_add_u32 %s, %s, 5, s98' % (t[0], t[0]))
        e('v_lshl_add_u32 %s, %s, 2, %s' % (t[0], vh, t[0]))
        cw = [e('ds_write_b32 %s, %s offset:%d' % (t[0], sm[0], L_CSW1)),
              e('ds_write_b32 %s, %s offset:%d' % (t[0], sm[4], L_CSW1 + 1024))]
        V.release('vsr', 'ones', 'resv_vw1')
        vw1, ops = self.img_voff('vw1', 3584)
        for s in ops:
            e(s)
        self.vw1 = vw1
        e('v_lshlrev_b32 %s, 5, %s' % (t[0], vlane))
        e('s_barrier', wait_lgkm=cw)
        e('ds_read_b128 %s, %s offset:%d' % (sb.sub(0, 4), t[0], L_CSW1))
        e('ds_read_b128 %s, %s offset:%d' % (sb.sub(4, 4), t[0], L_CSW1 + 16))
        e('s_and_b32 s47, s43, 15')
        e('s_min_u32 s48, s47, 13')
        e('s_lshl_b32 s49, s48, 8')
        e('v_lshlrev_b32 %s, 6, %s' % (t[1], vlane))
        e('v_pk_add_f32 %s, %s, %s' % (sb.sub(0, 2), sb.sub(0, 2), sb.sub(2, 2)))
        e('v_pk_add_f32 %s, %s, %s' % (sb.sub(4, 2), sb.sub(4, 2), sb.sub(6, 2)))
        e('v_pk_add_f32 %s, %s, %s' % (sb.sub(0, 2), sb.sub(0, 2), sb.sub(4, 2)))
        e('v_add_f32 %s, %s, %s' % (t[2], sb[0], sb[1]))
        e('v_mov_b32 %s, %s' % (t[3], self.vtag))
        cspub = lambda: e('buffer_store_dwordx2 %s, %s, s[32:35], s90 offen sc1' % (t.sub(2, 2), t[1]))
        self.stamp('halowait')
        e('v_cmp_ne_u32 vcc, s6, %s' % t[6])
        e('s_and_b64 vcc, vcc, s[54:55]')
        e('s_cbranch_vccz L_halook')
        self.poll(vpf, 's53', t.sub(6, 2), mask='s[54:55]')
        e('L_halook:')
        self.stamp('haloflag')
        items = []
        self.halo_done = set()
        for s in range(7, -1, -1):
            items.append(lambda s=s: e('buffer_load_dwordx4 %s, %s, s[32:35], s%d offen offset:%d sc1' % (
                self.kfrag(s), vhk, 76 + (s >> 1), (s & 1) * 2048)))
            for m in range(2):
                def f(s=s, m=m):
                    e('s_mov_b64 exec, s[38:39]')
                    e('buffer_load_dwordx4 %s, %s, s[32:35], s%d offen offset:%d sc1' % (
                        self.vfrag(s, m), vhv, 76 + (s >> 1), (s & 1) * 2048 + 1024 + 512 * m))
                    e('s_mov_b64 exec, -1')
                    self.halo_done.add((s, m))
                items.append(f)
        w1a_f, self.w1a_tok = self.img_dma(vw1, 's[20:23]', 3584, L_W1A, [0, 1, 2, 3], 's49')
        xr = V.alloc('xr', 8, at=120)
        self.xr = xr
        vpt = V.alloc('vpt', 4)

        def w2flag():
            e('buffer_store_dword %s, %s, s[32:35], s80 offen sc1' % (self.vtag, self.vflag), wait_vm=self.w2p_st)

        nb = self.o.get('halo_burst', 7)
        self.bg.extend(items)
        self.bg_flush(nb)
        ops = [
            'v_and_b32 %s, 31, %s' % (t[0], vlane),
            's_lshl_b32 s98, s4, 1',
            's_add_u32 s98, s98, s41',
            's_lshl_b32 s98, s98, 15',
            's_lshl_b32 s99, s40, 6',
            's_add_u32 s98, s98, s99',
            's_add_u32 s98, s98, s50',
            'v_lshl_add_u32 %s, %s, 10, s98' % (t[0], t[0]),
            'v_lshl_add_u32 %s, %s, 4, %s' % (self.vout, vh, t[0]),
            's_mul_i32 s98, s4, %d' % (2 * H1_GT),
            's_add_u32 s98, s98, 0x%x' % WS_H1,
            's_lshl_b32 s99, s5, 2',
            's_add_u32 s99, s99, s3',
            's_lshl_b32 s99, s99, 10',
            's_add_u32 s53, s98, s99',
            's_mul_i32 s99, s41, %d' % H1_GT,
            's_add_u32 s98, s98, s99',
            's_lshl_b32 s99, s40, 14',
            's_add_u32 s54, s98, s99',
            's_lshl_b32 s98, s4, 1',
            's_add_u32 s98, s98, s41',
            's_lshl_b32 s99, s5, 1',
            's_add_u32 s99, s99, s40',
            's_lshl_b32 s55, s98, 4',
            's_add_u32 s55, s55, s99',
            's_lshl_b32 s55, s55, 11',
            's_lshl_b32 s45, s98, 12',
            's_lshl_b32 s99, s5, 9',
            's_add_u32 s45, s45, s99',
            's_add_u32 s45, s45, 0x%x' % WS_ST2,
            'v_and_b32 %s, 7, %s' % (t[0], vlane),
            'v_lshlrev_b32 %s, 7, %s' % (t[0], t[0]),
            'v_mul_u32_u24 %s, %d, %s' % (t[4], H1_GT, self.vq3),
            'v_add3_u32 %s, %s, %s, s53' % (t[4], t[0], t[4]),
            'v_and_b32 %s, 0x180, %s' % (t[5], t[0]),
            'v_add_u32 %s, s45, %s' % (t[5], t[5]),
            'v_cmp_gt_u32 vcc, 16, %s' % vlane,
            'v_and_b32 %s, 15, %s' % (t[0], vlane),
            'v_lshlrev_b32 %s, 7, %s' % (vpt[1], t[0]),
            'v_cndmask_b32 %s, %s, %s, vcc' % (vpt[0], t[5], t[4]),
            'v_lshlrev_b32 %s, 2, %s' % (t[6], t[0]),
            'v_and_b32 %s, 31, %s' % (t[0], vlane),
            'v_lshlrev_b32 %s, 6, %s' % (t[0], t[0]),
            'v_lshl_add_u32 %s, %s, 5, %s' % (vpt[3], vh, t[0]),
            's_lshl_b32 s81, s48, 13',
            's_add_u32 s81, s81, s101',
            's_add_u32 s81, s81, 0x%x' % WS_CSP,
        ]
        self.pace(True)
        for x in ops:
            e(x)
        self.vcs = vpt[3]

        def pre0():
            e('s_mov_b64 exec, 0xfffff')
            e('buffer_load_dword %s, %s, s[32:35], 0 offen sc1' % (vpt[2], vpt[0]))
            e('s_mov_b64 exec, -1')

        def pre1():
            e('s_mov_b64 exec, 0xffff')
            e('buffer_load_dword %s, %s, s[28:31], s55 offen sc1' % (vpt[0], vpt[1]))
            e('s_mov_b64 exec, -1')

        def xres(k):
            def f():
                e('buffer_load_dwordx4 %s, %s, s[8:11], 0 offen offset:%d' % (xr.sub(4 * k, 4), self.vout, 32 * k))
                self.extra_gap = 192
            return f
        misc = [w2flag, cspub]
        if not self.o.get('force_sc1'):
            misc += [pre0, pre1]
        misc += [lambda: setattr(self, 'xccld', e('buffer_load_dword %s, %s, s[32:35], s52 offen sc1' % (t[7], t[6])))]
        self.bg.extend(misc + [xres(0), xres(1)] + w1a_f)

        def xcccheck():
            self.pace(False)
            assert self.xccld
            e('v_xor_b32 %s, s6, %s' % (t[7], t[7]))
            e('v_cmp_le_u32 vcc, 16, %s' % t[7])
            e('s_cbranch_vccnz L_xccspin')
            e('L_xccok:')
            e('v_cmp_ne_u32 vcc, s51, %s' % t[7])
            e('s_cmp_eq_u64 vcc, 0')
            e('s_cselect_b32 s7, 1, 0')
            if self.o.get('force_slow'):
                e('s_mov_b32 s7, 0')
            self.tail.append(
                'L_xccspin:\n    buffer_load_dword %s, %s, s[32:35], s52 offen sc1\n    s_add_u32 s96, s96, 1\n'
                '    s_cmp_gt_u32 s96, s97\n    s_waitcnt vmcnt(0)\n    v_xor_b32 %s, s6, %s\n'
                '    s_cbranch_scc1 L_xccok\n    v_cmp_le_u32 vcc, 16, %s\n    s_nop 1\n'
                '    s_cbranch_vccnz L_xccspin\n    s_branch L_xccok\n' % (t[7], t[6], t[7], t[7], t[7]))
            self.pace(True)

        blocks = []
        for s in range(7, 0, -1):
            blocks += [(s, 1), (s, 0)]
        blocks += [(0, 0)]
        vinf = self.vinf()
        pend = self.attn_run(e, blocks, S, P, O, first, {13: [xcccheck]})
        self.pace(False)
        e('s_mov_b32 s98, %s' % hexf(2.0 ** -40))
        e('s_mov_b32 s99, %s' % hexf(2.0 ** 40))
        e(pend)
        self.stamp('attn')
        for qb in (1, 0):
            o = O[qb]
            e('v_max3_f32 %s, abs(%s), abs(%s), abs(%s)' % (t[0], o[0], o[1], o[2]))
            e('v_max3_f32 %s, abs(%s), abs(%s), %s' % (t[0], o[3], o[4], t[0]))
            e('v_max3_f32 %s, abs(%s), abs(%s), %s' % (t[0], o[5], o[6], t[0]))
            e('v_max3_f32 %s, abs(%s), %s, %s' % (t[0], o[7], t[0], t[0]))
            e('v_cmp_nle_f32 vcc, s98, %s' % o[8])
            e('v_cmp_nge_f32 s[90:91], s99, %s' % o[8])
            e('v_cmp_nlt_f32 s[92:93], %s, %s' % (t[0], vinf))
            e('s_or_b64 vcc, vcc, s[90:91]')
            e('s_or_b64 vcc, vcc, s[92:93]')
            if self.o.get('force_fallback'):
                e('s_mov_b64 vcc, -1')
            e('s_cbranch_vccnz L_fallback')
        e('L_attn_ok:')
        rc = t.sub(0, 2)
        for qb in (1, 0):
            o = O[qb]
            e('v_rcp_f32 %s, %s' % (rc[0], o[8]))
            for r in range(0, 8, 2):
                e('v_pk_mul_f32 %s, %s, %s op_sel_hi:[1,0]' % (o.sub(r, 2), o.sub(r, 2), rc))
            for r in range(4):
                e('v_cvt_pk_bf16_f32 %s, %s, %s' % (P[4 * qb + r], o[2 * r], o[2 * r + 1]))
        e('s_add_u32 s99, s53, %d' % H1_GT)
        self.o_st = self.mode_stores(['buffer_store_dwordx4 %s, %s, s[32:35], s53 offen' % (P.sub(0, 4), self.vl16),
                                      'buffer_store_dwordx4 %s, %s, s[32:35], s99 offen' % (P.sub(4, 4), self.vl16)])
        self.fallback()
        print('bg left after attention:', len(self.bg), file=sys.stderr)
        V.release('S0', 'S1', 'O0', 'O1', 'Cl', 'Cu', 'HK', 'HV', 'vinf', 'vhk', 'vhv', 'vpf', 'idx16', 'swz', 'vwo')
        A.release('OWN')

    def vinf(self):
        if 'vinf' not in self.V.names:
            r = self.V.alloc('vinf')
            self._vinf = r
            self.e('v_mov_b32 %s, 0x7f800000' % r)
        return self._vinf

    def fallback(self):
        f = Emitter('fb')
        S, P, O, t = self.S, self.P, self.O, self.pt
        Cz = S[1]
        f('L_fallback:')
        f('s_nop 15')
        for qb in (0, 1):
            slots = list(range(qb + 8, qb - 1, -1))
            f('v_mov_b32 %s, 0xff800000' % t[0])
            for s in slots:
                if s < 8:
                    f('s_cmp_lt_u32 s4, %d' % (4 - (s >> 1)))
                    f('s_cbranch_scc1 L_fb_a%d_%d' % (qb, s))
                f('v_mfma_f32_32x32x16_bf16 %s, %s, %s, %s' % (S[0], self.kfrag(s), self.qfrag(qb), self.cmask(s, qb)))
                for r in range(0, 16, 2):
                    f('v_max3_f32 %s, %s, %s, %s' % (t[0], S[0][r], S[0][r + 1], t[0]))
                f('s_nop 7')
                f('L_fb_a%d_%d:' % (qb, s))
            f('v_mov_b32 %s, %s' % (t[1], t[0]))
            f('v_permlane32_swap_b32 %s, %s' % (t[0], t[1]))
            f('v_max_f32 %s, %s, %s' % (t[0], t[0], t[1]))
            for r in range(16):
                f('v_mov_b32 %s, 0' % O[qb][r])
            for s in slots:
                if s < 8:
                    f('s_cmp_lt_u32 s4, %d' % (4 - (s >> 1)))
                    f('s_cbranch_scc1 L_fb_b%d_%d' % (qb, s))
                f('v_mfma_f32_32x32x16_bf16 %s, %s, %s, %s' % (S[0], self.kfrag(s), self.qfrag(qb), self.cmask(s, qb)))
                for r in range(16):
                    f('v_sub_f32 %s, %s, %s' % (S[0][r], S[0][r], t[0]))
                for r in range(16):
                    f('v_exp_f32 %s, %s' % (S[0][r], S[0][r]))
                for r in range(8):
                    f('v_cvt_pk_bf16_f32 %s, %s, %s' % (P[r], S[0][2 * r], S[0][2 * r + 1]))
                for m in range(2):
                    f('v_mfma_f32_32x32x16_bf16 %s, %s, %s, %s' % (O[qb], self.vfrag(s, m), P.sub(4 * m, 4), O[qb]))
                f('s_nop 15')
                f('L_fb_b%d_%d:' % (qb, s))
        f('s_nop 15')
        f('s_branch L_attn_ok')
        self.cold = f.text()

    def w2_loads(self, lo, hi):
        e = self.e
        out = []
        for n in range(lo, hi):
            def f(n=n):
                p, m, b = n >> 2, (n >> 1) & 1, n & 1
                if n % 4 == 0 or n == lo:
                    e('s_lshl_b32 s88, s%d, 1' % (56 + p))
                    e('s_add_u32 s88, s88, s92')
                e('buffer_load_dwordx4 %s, %s, s[32:35], s88 offen offset:%d sc1' % (
                    self.W2.sub(n * 4, 4), self.vw2[b], m * 2048))
            out.append(f)
        return out

    def tagcheck(self, e, regs, tmp):
        e('v_min3_u32 %s, %s, %s, %s' % (tmp[0], regs[0], regs[1], regs[2]))
        e('v_max3_u32 %s, %s, %s, %s' % (tmp[1], regs[0], regs[1], regs[2]))
        k = 3
        while k < len(regs):
            b = regs[k + 1] if k + 1 < len(regs) else regs[k]
            e('v_min3_u32 %s, %s, %s, %s' % (tmp[0], regs[k], b, tmp[0]))
            e('v_max3_u32 %s, %s, %s, %s' % (tmp[1], regs[k], b, tmp[1]))
            k += 2
        e('v_xor_b32 %s, s6, %s' % (tmp[0], tmp[0]))
        e('v_xor_b32 %s, s6, %s' % (tmp[1], tmp[1]))
        e('v_or_b32 %s, %s, %s' % (tmp[0], tmp[0], tmp[1]))
        e('v_cmp_ne_u32 vcc, 0, %s' % tmp[0])

    def p3(self):
        e, V, A = self.e, self.V, self.A
        o = self.o
        t, vlane, vh = self.pt, self.vlane, self.vh
        self.W2 = A.alloc('W2', 224, at=0)
        WB = A.alloc('WB3', 32, at=224)
        self.WBa = WB
        H = V.alloc('hres', 16, at=240)
        self.H = H
        acc1 = V.alloc('acc1', 16, at=224)
        OF = V.alloc('OF', 64, at=128)
        cb = V.alloc('cb', 8, at=48)
        vwr = V.alloc('vwr', 2)
        vpo = V.alloc('vpo')
        xr = self.xr
        self.bg_flush()
        e('v_min_u32 %s, 55, %s' % (t[4], vlane))
        e('v_lshlrev_b32 %s, 3, %s' % (t[4], t[4]))
        e('s_lshl_b32 s98, s5, 9')
        e('s_add_u32 s93, s98, 0x%x' % WS_W2F)
        e('buffer_load_dwordx2 %s, %s, s[32:35], s93 offen sc1' % (t.sub(6, 2), t[4]))

        def csl(em):
            for k in range(2):
                em('buffer_load_dwordx4 %s, %s, s[32:35], s81 offen offset:%d sc1' % (cb.sub(4 * k, 4), self.vcs, 16 * k))
        csl(e)
        e('s_lshl_b32 s90, s4, 7')
        e('s_add_u32 s90, s90, 0x%x' % WS_OF)
        e('s_lshl_b32 s98, s5, 2')
        e('s_add_u32 s98, s98, s3')
        e('s_lshl_b32 s98, s98, 2')
        e('s_add_u32 s91, s98, s90')
        e('v_permlane32_swap_b32 %s, %s' % (xr[0], xr[2]))
        e('v_permlane32_swap_b32 %s, %s' % (xr[1], xr[3]))
        e('v_permlane32_swap_b32 %s, %s' % (xr[4], xr[6]))
        e('v_permlane32_swap_b32 %s, %s' % (xr[5], xr[7]))
        for k in range(8):
            e('v_lshlrev_b32 %s, 16, %s' % (H[2 * k], xr[k]))
            e('v_and_b32 %s, 0xffff0000, %s' % (H[2 * k + 1], xr[k]))
        V.release('xr')
        e('v_lshl_add_u32 %s, %s, 9, %s' % (t[0], vh, self.vtrb))
        self.vtr9 = V.alloc('vtr9')
        e('v_lshl_add_u32 %s, %s, 6, %s' % (self.vtr9, self.vq3, t[0]))
        e('s_lshl_b32 s98, s40, 6')
        e('v_xor_b32 %s, s98, %s' % (t[0], self.vtr9))
        e('s_lshl_b32 s98, s40, 15')
        e('s_add_u32 s98, s98, %d' % L_WO)
        e('v_add_u32 %s, s98, %s' % (vwr[0], t[0]))
        e('v_xor_b32 %s, 64, %s' % (vwr[1], vwr[0]))
        e('v_and_b32 %s, 15, %s' % (t[0], vlane))
        e('s_lshl_b32 s98, s40, 6')
        e('v_lshl_add_u32 %s, %s, 2, s98' % (vpo, t[0]))
        e('s_lshl_b32 s98, s40, 10')
        e('v_add_u32 %s, s98, %s' % (self.vw2[0], self.vl16))
        e('v_xor_b32 %s, 1024, %s' % (self.vw2[1], self.vw2[0]))
        e('s_mul_i32 s92, s5, %d' % (112 * 2048))
        e('s_add_u32 s92, s92, 0x%x' % WS_W2P)
        e.wait(vm=self.o_st)
        self.mode_stores(['buffer_store_dword %s, %s, s[32:35], s91 offen' % (self.vtag, self.vflag)])
        e('s_barrier', wait_vm=self.wo_tok + self.wo_tok3)
        self.stamp('opub')

        def wreads(s):
            out = []
            for u in (1, 0):
                buf = WB.sub((s % 4) * 8 + 4 * u, 4)
                for uu in range(2):
                    out.append('ds_read_b64_tr_b16 %s, %s offset:%d' % (buf.sub(2 * uu, 2), vwr[u], s * 2048 + uu * 1024))
            return out
        for s in wreads(0) + wreads(1):
            e(s)
        e('v_xor_b32 %s, s6, %s' % (t[6], t[6]))
        e('v_xor_b32 %s, s6, %s' % (t[7], t[7]))
        e('v_or_b32 %s, %s, %s' % (t[6], t[6], t[7]))
        e('v_cmp_ne_u32 vcc, 0, %s' % t[6])
        e('s_cbranch_vccz L_w2ok')
        self.poll(t[4], 's93', t.sub(6, 2), width=2)
        e('L_w2ok:')
        nB = o.get('w2_wb', 6)
        for f in self.w2_loads(0, nB):
            f()
        tags = [cb[k] for k in (1, 3, 5, 7)]
        self.tagcheck(e, tags, t.sub(2, 2))
        e('s_cbranch_vccnz L_csspin')
        e('L_csok:')
        f = Emitter('cs')
        f('L_csspin:')
        csl(f)
        f('s_add_u32 s96, s96, 1')
        f('s_cmp_gt_u32 s96, s97')
        f('s_waitcnt vmcnt(0)')
        f('s_cbranch_scc1 L_csok')
        self.tagcheck(f, tags, t.sub(2, 2))
        f('s_cbranch_vccnz L_csspin')
        f('s_branch L_csok')
        self.tail.append(f.text())
        e('v_add_f32 %s, %s, %s' % (cb[0], cb[0], cb[2]))
        e('v_add_f32 %s, %s, %s' % (cb[4], cb[4], cb[6]))
        e('v_add_f32 %s, %s, %s' % (cb[0], cb[0], cb[4]))
        e('v_mov_b32 %s, %s' % (cb[1], cb[0]))
        e('s_lshl_b32 s98, s3, 9')
        e('v_lshl_add_u32 %s, %s, 3, s98' % (t[0], vlane))
        e('v_permlane32_swap_b32 %s, %s' % (cb[0], cb[1]))
        e('v_add_f32 %s, %s, %s' % (cb[0], cb[0], cb[1]))
        e('v_mul_f32 %s, %s, %s' % (cb[0], self.hz, cb[0]))
        e('v_cvt_pk_bf16_f32 %s, %s, %s' % (cb[2], cb[0], cb[0]))
        e('v_and_b32 %s, 0xffff0000, %s' % (cb[1], cb[2]))
        e('v_sub_f32 %s, %s, %s' % (cb[1], cb[0], cb[1]))
        e('v_cvt_pk_bf16_f32 %s, %s, %s' % (cb[3], cb[1], cb[1]))
        caw = e('ds_write_b64 %s, %s offset:%d' % (t[0], cb.sub(2, 2), L_CA))
        vred = V.alloc('vred', 2)
        e('s_xor_b32 s98, s3, 1')
        e('s_lshl_b32 s98, s98, 12')
        e('s_add_u32 s98, s98, %d' % L_RED3)
        e('v_add_u32 %s, s98, %s' % (vred[0], self.vl16))
        e('s_add_u32 s98, s46, %d' % L_RED3)
        e('v_add_u32 %s, s98, %s' % (vred[1], self.vl16))
        V.release('vpt')
        self.poll(vpo, 's90', t.sub(6, 2))
        self.stamp('oflag')

        def old(u):
            if u % 4 == 0:
                e('s_add_u32 s98, s54, %d' % (u * 1024))
            e('buffer_load_dwordx4 %s, %s, s[32:35], s98 offen offset:%d sc1' % (OF.sub(4 * u, 4), self.vl16,
                                                                                (u % 4) * 1024))
        LA = o.get('la3', 6)
        for u in range(LA):
            old(u)
        n3 = o.get('w2_p3', 8)
        w2f = self.w2_loads(nB, nB + n3)
        self.w2_next = nB + n3
        for s in range(16):
            b = WB.sub((s % 4) * 8, 8)
            e('v_mfma_f32_32x32x16_bf16 %s, %s, %s, %s' % (acc1, b.sub(4, 4), OF.sub(4 * s, 4), '0' if s == 0 else acc1))
            rd = wreads(s + 2) if s + 2 < 16 else []
            for x in rd[:2]:
                e(x)
            if s + LA < 16:
                old(s + LA)
            elif w2f:
                w2f.pop(0)()
            e('v_mfma_f32_32x32x16_bf16 %s, %s, %s, %s' % (H, b.sub(0, 4), OF.sub(4 * s, 4), H))
            for x in rd[2:]:
                e(x)
        for f in w2f:
            f()
        wr = [e('ds_write_b128 %s, %s offset:%d' % (vred[0], acc1.sub(4 * g, 4), g * 1024)) for g in range(4)]
        e('s_barrier', wait_lgkm=wr + [caw], wait_vm=self.w1a_tok)
        for g in range(4):
            e('ds_read_b128 %s, %s offset:%d' % (acc1.sub(4 * g, 4), vred[1], g * 1024))
        e('s_lshr_b32 s98, s55, 15')
        e('s_lshl_b32 s98, s98, 7')
        e('s_bfe_u32 s99, s55, 0x4000b')
        e('s_lshl_b32 s99, s99, 2')
        e('s_add_u32 s98, s98, s99')
        e('s_add_u32 s91, s98, 0x%x' % WS_HF)
        e('v_lshl_add_u32 %s, %s, 29, %s' % (t[0], vh, self.vl16))
        e('s_lshl_b32 s98, s40, 3')
        e('s_add_u32 s45, s45, s98')
        PK = OF
        for g in range(4):
            for r in range(4 * g, 4 * g + 4, 2):
                e('v_pk_add_f32 %s, %s, %s' % (H.sub(r, 2), H.sub(r, 2), acc1.sub(r, 2)))
            for r in range(2 * g, 2 * g + 2):
                e('v_cvt_pk_bf16_f32 %s, %s, %s' % (PK[r], H[2 * r], H[2 * r + 1]))
        h_st = self.mode_stores(['buffer_store_dwordx4 %s, %s, s[28:31], s55 offen' % (PK.sub(0, 4), self.vl16),
                                 'buffer_store_dwordx4 %s, %s, s[28:31], s55 offen offset:1024' % (PK.sub(4, 4), self.vl16)])
        a = acc1
        e('v_pk_mul_f32 %s, %s, %s' % (a.sub(0, 2), H.sub(0, 2), H.sub(0, 2)))
        e('v_pk_add_f32 %s, %s, %s' % (a.sub(2, 2), H.sub(0, 2), H.sub(2, 2)))
        for r in range(2, 16, 2):
            e('v_pk_fma_f32 %s, %s, %s, %s' % (a.sub(0, 2), H.sub(r, 2), H.sub(r, 2), a.sub(0, 2)))
            if r >= 4:
                e('v_pk_add_f32 %s, %s, %s' % (a.sub(2, 2), a.sub(2, 2), H.sub(r, 2)))
        e('v_add_f32 %s, %s, %s' % (a[4], a[2], a[3]))
        e('v_add_f32 %s, %s, %s' % (a[5], a[0], a[1]))
        e('v_mov_b32 %s, %s' % (a[0], a[4]))
        e('v_mov_b32 %s, %s' % (a[1], a[5]))
        e('v_permlane32_swap_b32 %s, %s' % (a[0], a[4]))
        e('v_permlane32_swap_b32 %s, %s' % (a[1], a[5]))
        e('v_pk_add_f32 %s, %s, %s' % (a.sub(4, 2), a.sub(4, 2), a.sub(0, 2)))
        h_st += self.mode_stores(['buffer_store_dwordx2 %s, %s, s[32:35], s45 offen' % (a.sub(4, 2), t[0])])
        e('s_add_u32 s49, s49, 128')
        w1b_f, self.w1b_tok = self.img_dma(self.vw1, 's[20:23]', 3584, L_W1B, [0, 1, 2, 3], 's49')
        nb = o.get('w1b_early', 8)
        for f in w1b_f[:nb]:
            f()
        self.w1b_rest = w1b_f[nb:]
        self.h_st = h_st
        V.release('acc1', 'OF', 'vwr', 'vpo', 'vred', 'P', 'trb', 'q3', 'cb')

    def p4(self):
        e, V, A = self.e, self.V, self.A
        o = self.o
        t, vlane, vh = self.pt, self.vlane, self.vh
        WB = self.WBa
        HF = V.alloc('HF', 128, at=48)
        acc = [V.alloc('acc%d' % k, 16, at=176 + 16 * k) for k in range(4)]
        self.HF, self.acc = HF, acc
        vA = V.alloc('vA', 2)
        cz = [V.alloc('cA%d' % k, 6, 2) for k in range(2)]
        cA = [cz[0].sub(0, 2), cz[0].sub(4, 2), cz[1].sub(0, 2), cz[1].sub(4, 2)]
        cT = [cz[0].sub(0, 4), cz[0].sub(2, 4), cz[1].sub(0, 4), cz[1].sub(2, 4)]
        vst = V.alloc('vst')
        e('v_add_u32 %s, %d, %s' % (vA[0], L_W1A, self.vtr9))
        e('v_xor_b32 %s, 64, %s' % (vA[1], vA[0]))
        V.release('vtr9')
        e('v_lshlrev_b32 %s, 3, %s' % (t[2], vlane))
        for tl in range(4):
            e('ds_read_b64 %s, %s offset:%d' % (cA[tl], t[2], L_CA + 512 * tl))

        def wreads(tl, s, slot):
            buf = WB.sub(slot * 4, 4)
            return ['ds_read_b64_tr_b16 %s, %s offset:%d' % (buf.sub(2 * uu, 2), vA[tl & 1], s * 2048 + uu * 1024)
                    for uu in range(2)]
        RA = 4
        seq1 = [(tl, s) for s in range(32) for tl in (0, 1)]
        for n in range(RA):
            for x in wreads(seq1[n][0], seq1[n][1], n):
                e(x)
        for k in range(2):
            e('v_mov_b32 %s, 0' % cz[k][2])
            e('v_mov_b32 %s, 0' % cz[k][3])
        e('s_lshr_b32 s98, s4, 1')
        e('s_lshl_b32 s98, s98, 2')
        e('s_add_u32 s53, s98, s3')
        e('s_lshl_b32 s44, s53, 15')
        e('s_lshl_b32 s90, s53, 7')
        e('s_add_u32 s90, s90, 0x%x' % WS_HF)
        e('v_and_b32 %s, 15, %s' % (t[1], vlane))
        e('v_lshlrev_b32 %s, 2, %s' % (t[1], t[1]))
        e.wait(vm=self.h_st)
        self.mode_stores(['buffer_store_dword %s, %s, s[32:35], s91 offen' % (self.vtag, self.vflag)])
        self.stamp('hpub')
        e('s_lshl_b32 s45, s53, 12')
        e('s_add_u32 s45, s45, 0x%x' % WS_ST2)
        e('s_cmp_lt_u32 s47, 14')
        e('s_cselect_b32 s99, 0, 0x%x' % OOB)
        e('s_mul_i32 s54, s53, %d' % H1_GT)
        e('s_lshl_b32 s98, s48, 13')
        e('s_add_u32 s54, s54, s98')
        e('s_add_u32 s54, s54, 0x%x' % WS_H1)
        e('s_add_u32 s54, s54, s99')
        e('s_mul_i32 s55, s53, 384')
        e('s_lshl_b32 s98, s48, 2')
        e('s_add_u32 s55, s55, s98')
        e('s_add_u32 s55, s55, 0x%x' % WS_H1F)
        e('s_add_u32 s55, s55, s99')
        e('v_and_b32 %s, 31, %s' % (t[0], vlane))
        e('v_lshlrev_b32 %s, 4, %s' % (t[0], t[0]))
        e('v_lshl_add_u32 %s, %s, 11, %s' % (vst, vh, t[0]))
        self.poll(t[1], 's90', t.sub(6, 2))
        self.stamp('hflag')
        sb = acc[2]

        def hld(s):
            if s % 4 == 0:
                e('s_add_u32 s98, s44, %d' % (s * 1024))
            e('buffer_load_dwordx4 %s, %s, s[28:31], s98 offen offset:%d sc1' % (HF.sub(4 * s, 4), self.vl16,
                                                                                (s % 4) * 1024))
        q = []
        SAT = o.get('stat_at', 20)
        for s in range(32):
            if s == SAT:
                for k in range(4):
                    q.append(lambda k=k: e('buffer_load_dwordx4 %s, %s, s[32:35], s45 offen offset:%d sc1' % (
                        sb.sub(4 * k, 4), vst, k * 512)))
            q.append(lambda s=s: hld(s))
        q += self.w1b_rest
        LA = o.get('la4', 6)
        for _ in range(LA):
            q.pop(0)()
        mB = V.alloc('mB2', 4, 2)
        sc = V.alloc('sc', 2, 2)

        def stats_ops():
            a = sb
            ops = []
            for k in (0, 1):
                ops += ['v_add_f32 %s, %s, %s' % (a[k], a[k], a[k + 2]),
                        'v_add_f32 %s, %s, %s' % (a[k + 4], a[k + 4], a[k + 6]),
                        'v_add_f32 %s, %s, %s' % (a[k + 8], a[k + 8], a[k + 10]),
                        'v_add_f32 %s, %s, %s' % (a[k + 12], a[k + 12], a[k + 14]),
                        'v_add_f32 %s, %s, %s' % (a[k], a[k], a[k + 4]),
                        'v_add_f32 %s, %s, %s' % (a[k + 8], a[k + 8], a[k + 12]),
                        'v_add_f32 %s, %s, %s' % (a[k], a[k], a[k + 8]),
                        'v_mov_b32 %s, %s' % (a[k + 2], a[k])]
            ops += ['s_nop 0',
                    'v_permlane32_swap_b32 %s, %s' % (a[0], a[2]),
                    'v_permlane32_swap_b32 %s, %s' % (a[1], a[3]),
                    'v_add_f32 %s, %s, %s' % (a[0], a[0], a[2]),
                    'v_add_f32 %s, %s, %s' % (a[1], a[1], a[3]),
                    'v_mul_f32 %s, %s, %s' % (a[0], hexf(-1.0 / 512), a[0]),
                    'v_mul_f32 %s, %s, %s' % (a[1], hexf(1.0 / 512), a[1]),
                    'v_fma_f32 %s, -%s, %s, %s' % (a[1], a[0], a[0], a[1]),
                    'v_max_f32 %s, 0, %s' % (a[1], a[1]),
                    'v_add_f32 %s, %s, %s' % (a[1], hexf(1e-5), a[1]),
                    'v_rsq_f32 %s, %s' % (sc[0], a[1]),
                    'v_sqrt_f32 %s, %s' % (sc[1], a[1])]
            ops += self.aug_ops(mB, a[0], a[2], False)[:-2]
            ops += ['v_mov_b32 %s, %s' % (mB[2], mB[0]), 'v_mov_b32 %s, %s' % (mB[3], mB[0]),
                    'v_mul_f32 %s, %s, %s' % (sc[0], hexf(-LOG2E), sc[0])]
            return ops

        def aug(tl):
            return 'v_mfma_f32_32x32x16_bf16 %s, %s, %s, %s' % (acc[tl], cT[tl], mB, acc[tl])

        et = t.sub(2, 4)
        self.h1_st = {}

        def epi(tl, packed=False):
            ops = []
            a = acc[tl]
            PK = a
            for r in range(0, 16, 2):
                x, y = et[(r // 2 % 2) * 2], et[(r // 2 % 2) * 2 + 1]
                ops += ['v_mul_f32 %s, %s, %s' % (x, sc[0], a[r]), 'v_mul_f32 %s, %s, %s' % (y, sc[0], a[r + 1]),
                        'v_exp_f32 %s, %s' % (x, x), 'v_exp_f32 %s, %s' % (y, y),
                        'v_fma_f32 %s, %s, %s, %s' % (x, x, sc[1], sc[1]),
                        'v_fma_f32 %s, %s, %s, %s' % (y, y, sc[1], sc[1]),
                        'v_rcp_f32 %s, %s' % (x, x), 'v_rcp_f32 %s, %s' % (y, y),
                        'v_mul_f32 %s, %s, %s' % (a[r], a[r], x),
                        'v_mul_f32 %s, %s, %s' % (a[r + 1], a[r + 1], y),
                        'v_cvt_pk_bf16_f32 %s, %s, %s' % (PK[r // 2], a[r], a[r + 1])]
                if r in (6, 14):
                    ops.append(store(tl, r // 8))
            return ops

        def epi_packed(tl):
            ops = []
            a = acc[tl]
            for r in range(0, 16, 4):
                u, v = et.sub(0, 2), et.sub(2, 2)
                ops += ['v_pk_mul_f32 %s, %s, %s op_sel_hi:[1,0]' % (u, a.sub(r, 2), sc),
                        'v_pk_mul_f32 %s, %s, %s op_sel_hi:[1,0]' % (v, a.sub(r + 2, 2), sc)]
                ops += ['v_exp_f32 %s, %s' % (et[k], et[k]) for k in range(4)]
                ops += ['v_pk_fma_f32 %s, %s, %s, %s op_sel:[0,1,1] op_sel_hi:[1,1,1]' % (u, u, sc, sc),
                        'v_pk_fma_f32 %s, %s, %s, %s op_sel:[0,1,1] op_sel_hi:[1,1,1]' % (v, v, sc, sc)]
                ops += ['v_rcp_f32 %s, %s' % (et[k], et[k]) for k in range(4)]
                ops += ['v_pk_mul_f32 %s, %s, %s' % (a.sub(r, 2), a.sub(r, 2), u),
                        'v_pk_mul_f32 %s, %s, %s' % (a.sub(r + 2, 2), a.sub(r + 2, 2), v),
                        'v_cvt_pk_bf16_f32 %s, %s, %s' % (a[r // 2], a[r], a[r + 1]),
                        'v_cvt_pk_bf16_f32 %s, %s, %s' % (a[r // 2 + 1], a[r + 2], a[r + 3])]
                if r in (4, 12):
                    ops.append(store(tl, r // 8))
            return ops

        def store(tl, m):
            def st():
                h, e.hook = e.hook, None
                if m == 0:
                    e('s_add_u32 s93, s54, %d' % (tl * 2048))
                tok = e('buffer_store_dwordx4 %s, %s, s[32:35], s93 offen offset:%d sc1' % (
                    acc[tl].sub(4 * m, 4), self.vl16, m * 1024))
                e.hook = h
                self.extra_gap = o.get('stgap', 64)
                self.h1_st.setdefault(tl, []).append(tok)
            return st

        def flag(part, tiles):
            def f():
                w = []
                for tl in tiles:
                    w += self.h1_st[tl]
                e.wait(vm=w)
                self.mode_stores(['buffer_store_dword %s, %s, s[32:35], s55 offen offset:%d' % (
                    self.vtag, self.vflag, part * 128)])
            return f

        so = stats_ops()
        S0 = 64 - (len(so) + 2) // 3 - 1
        for n, (tl, s) in enumerate(seq1):
            e('v_mfma_f32_32x32x16_bf16 %s, %s, %s, %s' % (acc[tl], WB.sub((n % 8) * 4, 4), HF.sub(4 * s, 4),
                                                           '0' if s == 0 else acc[tl]))
            if n + RA < 64:
                for x in wreads(seq1[n + RA][0], seq1[n + RA][1], (n + RA) % 8):
                    e(x)
            if (n % 2 == 0 or (SAT - LA) * 2 <= n < (SAT - LA) * 2 + 8) and q:
                q.pop(0)()
            if n >= S0:
                for x in so[(n - S0) * 3:(n - S0) * 3 + 3]:
                    e(x)
        for f in q:
            f()
        V.release('vw1')
        e(aug(0))
        e(aug(1))
        self.stamp('p4a')
        e('v_subrev_u32 %s, %d, %s' % (vA[0], L_W1A - L_W1B, vA[0]))
        e('v_subrev_u32 %s, %d, %s' % (vA[1], L_W1A - L_W1B, vA[1]))
        self.vh1 = V.alloc('vh1', 2)
        vpf = V.alloc('vpf5')
        self.vpf5 = vpf
        setup = ['s_mul_i32 s98, s41, %d' % H1_GT,
                 'v_add_u32 %s, s98, %s' % (self.vh1[0], self.vl16),
                 's_xor_b32 s98, s41, 1',
                 's_mul_i32 s98, s98, %d' % H1_GT,
                 'v_add_u32 %s, s98, %s' % (self.vh1[1], self.vl16),
                 's_mul_i32 s44, s4, %d' % (2 * H1_GT),
                 's_add_u32 s44, s44, 0x%x' % WS_H1,
                 'v_and_b32 %s, 15, %s' % (t[0], vlane),
                 'v_min_u32 %s, 13, %s' % (t[0], t[0]),
                 'v_bfe_u32 %s, %s, 4, 1' % (t[1], vlane),
                 'v_mul_u32_u24 %s, 384, %s' % (t[1], t[1]),
                 'v_lshl_add_u32 %s, %s, 2, %s' % (vpf, t[0], t[1]),
                 's_mul_i32 s45, s4, 768',
                 's_add_u32 s45, s45, 0x%x' % WS_H1F]
        for x in setup:
            e(x)
        e0 = epi(0)
        pre = o.get('epi_pre', 22)
        self.bg.extend(self.w2_loads(self.w2_next, 56))
        self.pace(True)
        for x in e0[:pre]:
            x() if callable(x) else e(x)
        self.pace(False)
        e('s_barrier', wait_vm=self.w1b_tok)
        self.pace(True)
        seq2 = [(2, s) for s in range(32)] + [(3, s) for s in range(32)]
        for n in range(RA):
            for x in wreads(seq2[n][0], seq2[n][1], n):
                e(x)
        for x in e0[pre:pre + 11]:
            x() if callable(x) else e(x)
        e1 = epi(1)
        cut = o.get('epi_cut', 45)
        fillA = e0[pre + 11:] + e1[:cut]
        fillB = e1[cut:] + epi(2)

        def run(seq, base, fill, extra, lo):
            pos = 0
            for k in range(32):
                n = base + k
                tl, s = seq[n]
                e('v_mfma_f32_32x32x16_bf16 %s, %s, %s, %s' % (acc[tl], WB.sub((n % 8) * 4, 4), HF.sub(4 * s, 4),
                                                               '0' if s == 0 else acc[tl]))
                if n + RA < 64:
                    for x in wreads(seq[n + RA][0], seq[n + RA][1], (n + RA) % 8):
                        e(x)
                upto = (len(fill) * (k + 1) + 31) // 32
                while pos < upto:
                    f = fill[pos]
                    f() if callable(f) else e(f)
                    pos += 1
                for f in extra.get(k, []):
                    f() if callable(f) else e(f)
        run(seq2, 0, fillA, {}, 0)
        e(aug(2))
        self.stamp('t2')
        run(seq2, 32, fillB, {o.get('flagA_at', 24): [flag(0, [0, 1])]}, 0)
        e(aug(3))
        self.stamp('t3')
        print('bg left after tile 3:', len(self.bg), file=sys.stderr)
        ep = epi_packed(3)
        pa = o.get('pollA_at', 20)
        for k, x in enumerate(ep):
            x() if callable(x) else e(x)
            if k == pa:
                self.bg.appendleft(lambda: self.poll_issue(vpf, 's45', t[6], 0))
        self.bg_flush()
        self.pace(False)
        self.flagB = flag(1, [2])
        self.flagC = flag(2, [3])
        self.stamp('p4end')
        V.release('vA', 'cA0', 'cA1', 'vst', 'mB2', 'sc')

    def h1_item(self, n):
        e = self.e
        p, m, a = n >> 2, (n >> 1) & 1, n & 1
        if n % 4 == 0:
            e('s_add_u32 s89, s%d, s44' % (56 + p))
        e('buffer_load_dwordx4 %s, %s, s[32:35], s89 offen offset:%d sc1' % (
            self.HF.sub((n % 32) * 4, 4), self.vh1[a], m * 1024))

    def p5(self):
        e, V, A = self.e, self.V, self.A
        o = self.o
        t = self.pt
        acc = [self.H, self.acc[0], self.acc[1], self.acc[2]]
        HF, W2 = self.HF, self.W2
        vr = V.alloc('vr5', 4)

        def mf(p):
            out = []
            for m in range(2):
                for a in range(2):
                    for b in range(2):
                        u = 2 * a + b
                        c = '0' if (p == 0 and m == 0 and u != 0) else acc[u]
                        out.append('v_mfma_f32_32x32x16_bf16 %s, %s, %s, %s' % (
                            acc[u], W2.sub((p * 4 + m * 2 + b) * 4, 4), HF.sub(((p % 8) * 4 + m * 2 + a) * 4, 4), c))
            return out
        self.poll_check(self.vpf5, 's45', t[6], 0)
        LA = o.get('la5', 8)
        for n in range(LA):
            self.h1_item(n)
            if n == 1:
                self.flagB()
        nxt = LA
        extra = {}

        def add(k, f):
            extra.setdefault(k, []).append(f)
        add(o.get('flagC_at', 6), self.flagC)
        add(24 - LA - 8, lambda: self.poll_issue(self.vpf5, 's45', t[6], 128))
        add(24 - LA - 1, lambda: self.poll_check(self.vpf5, 's45', t[6], 128))
        add(40 - LA - 8, lambda: self.poll_issue(self.vpf5, 's45', t[7], 256))
        add(40 - LA - 1, lambda: self.poll_check(self.vpf5, 's45', t[7], 256))

        def addr():
            for u in range(1, 4):
                e('s_xor_b32 s98, s3, %d' % u)
                e('s_mul_i32 s98, s98, 12288')
                e('s_add_u32 s98, s98, %d' % (L_RED5 + (u - 1) * 4096))
                e('v_add_u32 %s, s98, %s' % (vr[u], self.vl16))
            e('s_mul_i32 s98, s3, 12288')
            e('s_add_u32 s98, s98, %d' % L_RED5)
            e('v_add_u32 %s, s98, %s' % (vr[0], self.vl16))
        add(50, addr)
        slot = 0
        for p in range(13):
            for k, s in enumerate(mf(p)):
                e(s)
                if k % 2 == 0:
                    if nxt < 56:
                        self.h1_item(nxt)
                        nxt += 1
                    for f in extra.get(slot, []):
                        f()
                    slot += 1
        last = mf(13)
        for k in [3, 7, 2, 6, 1, 5, 0, 4]:
            e(last[k])
        self.stamp('p5mm')
        wr = []
        for u in (3, 2, 1):
            for g in range(4):
                wr.append(e('ds_write_b128 %s, %s offset:%d' % (vr[u], acc[u].sub(4 * g, 4), g * 1024)))
        e('s_barrier', wait_lgkm=wr)
        for g in range(4):
            for u in (1, 2, 3):
                e('ds_read_b128 %s, %s offset:%d' % (acc[u].sub(4 * g, 4), vr[0], (u - 1) * 4096 + g * 1024))
        PK = HF
        fl = self.o.get('out_flags', '')
        for hf in range(2):
            for g in (2 * hf, 2 * hf + 1):
                for u in (1, 2, 3):
                    for r in range(4 * g, 4 * g + 4, 2):
                        e('v_pk_add_f32 %s, %s, %s' % (acc[0].sub(r, 2), acc[0].sub(r, 2), acc[u].sub(r, 2)))
                for r in range(2 * g, 2 * g + 2):
                    e('v_cvt_pk_bf16_f32 %s, %s, %s' % (PK[r], acc[0][2 * r], acc[0][2 * r + 1]))
            e('v_permlane32_swap_b32 %s, %s' % (PK[4 * hf], PK[4 * hf + 2]))
            e('v_permlane32_swap_b32 %s, %s' % (PK[4 * hf + 1], PK[4 * hf + 3]))
            e('buffer_store_dwordx4 %s, %s, s[28:31], 0 offen offset:%d %s' % (PK.sub(4 * hf, 4), self.vout, 32 * hf, fl))

    def finish(self):
        e = self.e
        t = self.pt
        if self.o.get('stamps'):
            self.stamp('end')
            self.stamp('dummy')
            e('s_waitcnt vmcnt(0) lgkmcnt(0)')
            e('s_memrealtime s[82:83]')
            e('s_lshl_b32 s98, s2, 2')
            e('s_add_u32 s98, s98, s3')
            e('s_lshl_b32 s98, s98, 7')
            e('s_add_u32 s98, s98, 0x%x' % WS_STAMP)
            for k, r in ((27, 's82'), (28, 's94'), (29, 's96'), (30, 's7'), (31, 's51')):
                e('v_writelane_b32 %s, %s, %d' % (self.vstamp, r, k))
            e('v_lshlrev_b32 %s, 2, %s' % (t[0], self.vlane))
            e('v_lshl_add_u32 %s, %s, 29, %s' % (t[0], self.vh, t[0]))
            e('buffer_store_dword %s, %s, s[32:35], s98 offen' % (self.vstamp, t[0]))
        e('s_cmp_gt_u32 s96, s97')
        e('s_cbranch_scc0 L_end')
        e('v_mov_b32 %s, 16' % t[0])
        e('v_mov_b32 %s, 0xdead' % t[1])
        e('global_store_dword %s, %s, s[36:37]' % (t[0], t[1]))
        e('L_end:')
        e('s_endpgm')

    def text(self):
        hdr = open('sequential_preLN__sliding_block__dense_activation_silu__prompt.s.ref').read()
        head = [l for l in hdr.split('\n') if l.startswith(';') and '@launch' not in l]
        out = '\n'.join(head) + '\n'
        if self.stamp_names:
            out += '; stamps %s\n' % ','.join(self.stamp_names[:-1])
        out += '; @launch grid=(256,1,1) block=(256,1,1) lds=%d\n' % LDS_BYTES
        out += '.amdgcn_target "amdgcn-amd-amdhsa--gfx950"\n.text\n.globl %s\n.p2align 8\n.type %s,@function\n%s:\n' % (
            KNAME, KNAME, KNAME)
        out += self.e.text()
        for tl in self.tail:
            out += tl
        out += 'L_codeend:\n'
        out += self.cold
        out += '.p2align 6\n.type L_tab,@object\nL_tab:\n'
        for row in p5_table():
            vals = [(8 * jj + 2 * tl) * 1024 for jj, tl in row] + [0, 0]
            out += '    .long ' + ', '.join(str(v) for v in vals) + '\n'
        out += '.size L_tab, 256\n'
        out += '.section .rodata,"a"\n.p2align 6\n.amdhsa_kernel %s\n' % KNAME
        out += '  .amdhsa_next_free_vgpr 512\n  .amdhsa_next_free_sgpr 102\n  .amdhsa_accum_offset 256\n'
        out += '  .amdhsa_group_segment_fixed_size 0\n  .amdhsa_kernarg_size 72\n  .amdhsa_user_sgpr_count 2\n'
        out += '  .amdhsa_user_sgpr_kernarg_segment_ptr 1\n  .amdhsa_system_sgpr_workgroup_id_x 1\n.end_amdhsa_kernel\n'
        return out


def parse_opts(args):
    o = {}
    for a in args:
        if '=' in a:
            k, v = a.split('=', 1)
            try:
                v = int(v)
            except ValueError:
                pass
            o[k] = v
        else:
            o[a] = 1
    return o


if __name__ == '__main__':
    path = sys.argv[1]
    g = Gen(parse_opts(sys.argv[2:]))
    txt = g.build()
    open(path, 'w').write(txt)
    print('wrote', path, len(txt), 'bytes; model cycles', g.e.now, 'stamps', ','.join(g.stamp_names[:-1]))
```

```python
import sys
import struct
import collections
from emit import Emitter, Regs, R, Ins

KNAME = 'sequential_preLN__sliding_block__dense_activation_silu__prompt_kernel'

WS_EPOCH = 0
WS_XCC = 0x1000
WS_KVF = 0x10000
WS_W2F = 0x30000
WS_OF = 0x32000
WS_HF = 0x33000
WS_H1F = 0x36000
WS_CSP = 0x40000
WS_ST2 = 0x60000
WS_KV = 0x100000
WS_W2P = 0x500000
WS_H1 = 0x700000
WS_STAMP = 0xF00000
WS_DUMP = 0x1000000
WS_BYTES = 0x10000000
OOB = 0x20000000
H1_GT = 112 * 1024

K = 1024
L_ST = 0
L_CS = 2048
L_CSW1 = 5120
L_RS = 7168
L_CA = 8 * K
L_QX = 8 * K
L_RING = 16 * K
SLOT = 24 * K
L_WQ = 64 * K
L_WO = 16 * K
L_W1A = 80 * K
L_W1B = 16 * K
L_SIDE = 128 * K
L_KX = 144 * K
L_VX = 152 * K
L_RED3 = 144 * K
L_RED5 = 80 * K
LDS_BYTES = 160 * K

LOG2E = 1.4426950408889634
SPIN_LIMIT = 400000


def f2u(x):
    return struct.unpack('<I', struct.pack('<f', x))[0]


def hexf(x):
    return '0x%08x' % f2u(x)


def p5_table():
    tab = []
    for kq in range(4):
        by = {t: [jj for jj in range(14) if (kq + jj) % 4 == t] for t in range(4)}
        early = sorted([(jj, t) for t in (0, 1) for jj in by[t]], key=lambda x: (x[1], x[0]))
        mid = [(jj, 2) for jj in by[2]]
        late = [(jj, 3) for jj in by[3]]
        first, extra = early[:6], early[6:]
        while len(mid) < 4:
            mid.insert(0, extra.pop(0))
        while len(late) < 4:
            late.insert(0, extra.pop(0))
        assert not extra
        tab.append(first + mid + late)
    return tab


class Gen:
    def __init__(self, opts):
        self.o = opts
        self.e = Emitter()
        self.tail = []
        self.V = Regs('v', 1, 256)
        self.V.small_hi = 48
        self.A = Regs('a', 0, 256)
        self.nstamp = 0
        self.npoll = 0
        self.nslow = 0
        self.stamp_names = []
        self.bg = collections.deque()
        self.gap = opts.get('gap', 64)
        self.extra_gap = 0
        self.nasync = 0

    def _hook(self):
        e = self.e
        if self.bg and e.now - e.last_vm >= self.gap + self.extra_gap:
            self.extra_gap = 0
            self.bg.popleft()()

    def pace(self, on):
        self.e.hook = self._hook if on else None

    def bg_flush(self, n=None):
        e = self.e
        h, e.hook = e.hook, None
        k = 0
        while self.bg and (n is None or k < n):
            self.bg.popleft()()
            k += 1
        e.hook = h

    def bg_until(self, cond):
        e = self.e
        h, e.hook = e.hook, None
        while not cond():
            self.bg.popleft()()
        e.hook = h

    def poll_issue(self, voff, soff, vtmp, imm=0):
        self.e('buffer_load_dword %s, %s, s[32:35], %s offen offset:%d sc1' % (vtmp, voff, soff, imm))

    def poll_check(self, voff, soff, vtmp, imm=0):
        e = self.e
        h, e.hook = e.hook, None
        k = self.nasync
        self.nasync += 1
        e('v_cmp_ne_u32 vcc, s6, %s' % vtmp)
        e('s_cbranch_vccnz L_aspin%d' % k)
        e('L_aok%d:' % k)
        e.hook = h
        self.tail.append(
            'L_aspin%d:\n    buffer_load_dword %s, %s, s[32:35], %s offen offset:%d sc1\n    s_add_u32 s96, s96, 1\n'
            '    s_cmp_gt_u32 s96, s97\n    s_waitcnt vmcnt(0)\n    s_cbranch_scc1 L_aok%d\n'
            '    v_cmp_ne_u32 vcc, s6, %s\n    s_nop 1\n    s_cbranch_vccnz L_aspin%d\n    s_branch L_aok%d\n'
            % (k, vtmp, voff, soff, imm, k, vtmp, k, k))

    def stamp(self, name):
        if not self.o.get('stamps'):
            return
        k = self.nstamp
        assert k < 28
        if k > 0:
            self.e('v_writelane_b32 %s, s%d, %d' % (self.vstamp, 72 + 2 * ((k - 1) & 1), k - 1))
        self.e('s_memtime s[%d:%d]' % (72 + 2 * (k & 1), 73 + 2 * (k & 1)))
        self.stamp_names.append(name)
        self.nstamp += 1

    def poll(self, voff, soff, vtmp, mask=None, width=1, imm=0, xor_lt=None):
        e = self.e
        k = self.npoll
        self.npoll += 1
        hook, e.hook = e.hook, None
        e('L_poll%d:' % k)
        if width == 1:
            e('buffer_load_dword %s, %s, s[32:35], %s offen offset:%d sc1' % (vtmp[0], voff, soff, imm))
        else:
            e('buffer_load_dwordx2 %s, %s, s[32:35], %s offen offset:%d sc1' % (vtmp.sub(0, 2), voff, soff, imm))
        e('s_add_u32 s96, s96, 1')
        e('s_cmp_gt_u32 s96, s97')
        e('s_cbranch_scc1 L_pdone%d' % k)
        e('s_waitcnt vmcnt(0)')
        if xor_lt is not None:
            e('v_xor_b32 %s, s6, %s' % (vtmp[0], vtmp[0]))
            e('v_cmp_le_u32 vcc, %d, %s' % (xor_lt, vtmp[0]))
        elif width == 1:
            e('v_cmp_ne_u32 vcc, s6, %s' % vtmp[0])
        else:
            e('v_xor_b32 %s, s6, %s' % (vtmp[0], vtmp[0]))
            e('v_xor_b32 %s, s6, %s' % (vtmp[1], vtmp[1]))
            e('v_or_b32 %s, %s, %s' % (vtmp[0], vtmp[0], vtmp[1]))
            e('v_cmp_ne_u32 vcc, 0, %s' % vtmp[0])
        if mask is not None:
            e('s_and_b64 vcc, vcc, %s' % mask)
        e('s_cbranch_vccnz L_poll%d' % k)
        e('L_pdone%d:' % k)
        e('s_waitcnt vmcnt(0)')
        e.hook = hook

    def mode_stores(self, stores):
        e = self.e
        if self.o.get('force_sc1'):
            return [e(s + ' sc1') for s in stores]
        k = self.nslow
        self.nslow += 1
        hook, e.hook = e.hook, None
        e('s_cmp_eq_u32 s7, 0')
        e('s_cbranch_scc1 L_slow%d' % k)
        toks = [e(s) for s in stores]
        e('L_back%d:' % k)
        e.hook = hook
        t = 'L_slow%d:\n    s_nop 4\n' % k
        for s in stores:
            t += '    ' + s + ' sc1\n'
        t += '    s_nop 1\n    s_branch L_back%d\n' % k
        self.tail.append(t)
        return toks

    @staticmethod
    def weave(e, main, fill, per=None, lead=0):
        def put(x):
            if callable(x):
                x()
            else:
                e(x)
        fill = list(fill)
        n = len(main)
        pos = 0
        for k, m in enumerate(main):
            put(m)
            if per is None:
                upto = (len(fill) * (k + 1) + n - 1) // n
            else:
                upto = min(len(fill), pos + (per[k] if isinstance(per, (list, tuple)) else per))
            while pos < upto:
                put(fill[pos])
                pos += 1
        while pos < len(fill):
            put(fill[pos])
            pos += 1

    def dump_v(self, regs, slot, nregs_total=None):
        e = self.e
        e('s_lshl_b32 s98, s2, 2')
        e('s_add_u32 s98, s98, s3')
        e('s_lshl_b32 s98, s98, 14')
        e('s_add_u32 s98, s98, 0x%x' % (WS_DUMP + slot * 0x1000000))
        t = self.V.alloc('dump_t', 2)
        e('v_lshlrev_b32 %s, 2, %s' % (t[0], self.vlane))
        for k, r in enumerate(regs):
            src = r
            if r.kind == 'a':
                e('v_accvgpr_read_b32 %s, %s' % (t[1], r))
                src = t[1]
            e('buffer_store_dword %s, %s, s[32:35], s98 offen offset:%d' % (src, t[0], (k % 16) * 256))
            if k % 16 == 15:
                e('s_add_u32 s98, s98, 4096')
            e('s_waitcnt vmcnt(0)')
        self.V.release('dump_t')

    def build(self):
        stop = self.o.get('stop', '')
        self.cold = ''
        for name, fn in (('pro', self.prologue), ('kv', self.p1_kv), ('p1', self.p1_q), ('attn', self.attention),
                         ('p3', self.p3), ('p4', self.p4), ('p5', self.p5)):
            fn()
            if name == stop:
                break
        self.finish()
        return self.text()

    def prologue(self):
        e, V, A = self.e, self.V, self.A
        o = self.o
        e('s_load_dwordx4 s[40:43], s[0:1], 0')
        e('s_cmp_ge_u32 s2, 256')
        e('s_cbranch_scc1 L_end')
        if o.get('stamps'):
            e('s_memrealtime s[94:95]')
            self.vstamp = R('v', 0, 1)
        self.stamp('start')
        self.vlane = V.alloc('lane', at=1)
        self.vflag = V.alloc('flagoff', at=3)
        self.vtag = V.alloc('tag', at=12)
        self.vh = V.alloc('h', at=13)
        self.hz = V.alloc('hz', at=14)
        self.vout = V.alloc('vout', at=15)
        self.vw2 = V.alloc('vw2', 2, at=16)
        V.alloc('resv_vw1', 4, at=18)
        self.vl16 = V.alloc('l16', at=2)
        vlane, vl16 = self.vlane, self.vl16
        t = V.alloc('pt', 8, 2, at=4)
        self.pt = t
        e('v_lshrrev_b32 %s, 6, v0' % t[0])
        e('v_and_b32 %s, 63, v0' % vlane)
        e('v_readfirstlane_b32 s3, %s' % t[0])
        if o.get('spread'):
            e('s_lshr_b32 s4, s2, 3')
            e('s_and_b32 s5, s2, 7')
        else:
            e('s_and_b32 s4, s2, 7')
            e('s_lshl_b32 s4, s4, 2')
            e('s_lshr_b32 s5, s2, 6')
            e('s_add_u32 s4, s4, s5')
            e('s_bfe_u32 s5, s2, 0x30003')
        self.vxA, self.vxB = V.alloc('xA'), V.alloc('xB')
        self.vwA, self.vwB, self.vwQ = V.alloc('wA'), V.alloc('wB'), V.alloc('wQ')
        self.vsw = V.alloc('swz')
        e('v_lshrrev_b32 %s, 3, %s' % (t[3], vlane))
        e('v_and_b32 %s, 7, %s' % (t[4], vlane))
        e('v_lshrrev_b32 %s, 4, %s' % (t[5], vlane))
        e('s_lshl_b32 s98, s4, 6')
        e('s_lshl_b32 s99, s3, 4')
        e('s_add_u32 s98, s98, s99')
        e('v_add_lshl_u32 %s, %s, s98, 10' % (t[6], t[3]))
        e('v_xor_b32 %s, %s, %s' % (t[7], t[4], t[5]))
        e('v_lshl_add_u32 %s, %s, 4, %s' % (self.vxA, t[7], t[6]))
        e('v_and_b32 %s, 1, %s' % (t[5], t[5]))
        e('v_lshlrev_b32 %s, 2, %s' % (t[5], t[5]))
        e('v_xor_b32 %s, %s, %s' % (t[4], t[4], t[5]))
        e('v_lshlrev_b32 %s, 4, %s' % (self.vsw, t[4]))
        e('v_add_u32 %s, s99, %s' % (t[2], t[3]))
        e('v_mul_u32_u24 %s, 3072, %s' % (t[2], t[2]))
        e('s_lshl_b32 s98, s5, 7')
        e('v_add3_u32 %s, %s, s98, %s' % (self.vwA, t[2], self.vsw))
        e('s_mul_i32 s100, s3, 6144')
        if o.get('rot'):
            e('s_lshl_b32 s85, s4, 1')
            e('s_add_u32 s85, s85, s5')
        e('s_mov_b32 s10, 0x%x' % (2048 * 1024))
        e('s_mov_b32 s11, 0x20000')
        e('s_mov_b32 s14, 0x%x' % (512 * 3072))
        e('s_mov_b32 s15, 0x20000')
        e('v_xor_b32 %s, 64, %s' % (self.vxB, self.vxA))
        e('v_add_u32 %s, %d, %s' % (self.vxB, 8192 - 3072, self.vxB))
        e('v_add_u32 %s, %d, %s' % (self.vwB, 24576 + 1024, self.vwA))
        for base, src in ((8, 40), (12, 42)):
            e('s_mov_b32 s%d, s%d' % (base, src))
            e('s_and_b32 s%d, s%d, 0xffff' % (base + 1, src + 1))
        self.kv_dma = {c: [] for c in range(8)}
        self.wq_dma = []
        self.dmaq = []
        for c in range(8):
            self.dmaq += self.chunk_items(c)
        for c in range(8):
            self.dmaq += self.wq_items(c)
        self.dma_pos = 0
        self.release_dma(o.get('win', 14))
        self.stamp('dma0')
        self.bg_flush(4)
        e('s_load_dwordx8 s[44:51], s[0:1], 16')
        e('s_load_dwordx4 s[52:55], s[0:1], 48')
        e('s_load_dwordx2 s[32:33], s[0:1], 64')
        e('s_getpc_b64 s[92:93]')
        e('L_pc:')
        e('s_and_b32 s58, s2, 8')
        e('s_lshr_b32 s58, s58, 1')
        e('s_add_u32 s58, s58, s3')
        e('s_lshl_b32 s58, s58, 12')
        e('v_and_b32 %s, 31, %s' % (t[1], vlane))
        e('v_lshl_add_u32 %s, %s, 7, s58' % (t[1], t[1]))
        e('v_min_u32 %s, L_codeend-L_pc-4, %s' % (t[1], t[1]))
        self.vdummy = V.alloc('dummy')
        e('global_load_dword %s, %s, s[92:93]' % (self.vdummy, t[1]))
        e('s_lshl_b32 s59, s3, 6')
        e('s_add_u32 s92, s92, s59')
        e('s_addc_u32 s93, s93, 0')
        e('s_add_u32 s92, s92, L_tab-L_pc')
        e('s_addc_u32 s93, s93, 0')
        e('s_load_dwordx16 s[56:71], s[92:93], 0')
        self.pace(True)
        e('v_lshlrev_b32 %s, 4, %s' % (vl16, vlane))
        e('v_add_u32 %s, %d, %s' % (self.vwQ, 24576 - 1024, self.vwA))
        e('s_lshl_b32 s101, s3, 11')
        e('s_mov_b32 s38, 0x0000ffff')
        e('s_mov_b32 s39, 0x0000ffff')
        e('s_mov_b32 s96, 0')
        e('s_mov_b32 s97, %d' % SPIN_LIMIT)
        e('v_cmp_eq_u32 vcc, 0, %s' % vlane)
        e('v_mov_b32 %s, 0x%x' % (t[0], OOB))
        e('v_cndmask_b32 %s, %s, 0, vcc' % (self.vflag, t[0]))

    def late_args(self):
        e, t = self.e, self.pt
        for base, src, nbytes in ((16, 44, 512 * 1024), (20, 48, 512 * 3584), (24, 50, 1792 * 1024),
                                  (28, 52, 2048 * 1024)):
            e('s_mov_b32 s%d, s%d' % (base, src))
            e('s_and_b32 s%d, s%d, 0xffff' % (base + 1, src + 1))
            e('s_mov_b32 s%d, 0x%x' % (base + 2, nbytes))
            e('s_mov_b32 s%d, 0x20000' % (base + 3))
        e('s_and_b32 s33, s33, 0xffff')
        e('s_mov_b32 s34, 0x%x' % WS_BYTES)
        e('s_mov_b32 s35, 0x20000')
        e('s_mov_b64 s[36:37], s[54:55]')
        self.pace(False)
        e('s_or_b32 s98, s2, s3')
        e('s_cmp_lg_u32 s98, 0')
        e('s_cbranch_scc1 L_notag')
        e('s_load_dword s98, s[32:33], 0')
        e('s_waitcnt lgkmcnt(0)')
        e('s_mul_i32 s98, s98, 0x9E3779B1')
        e('s_add_u32 s98, s98, 0x7F4A7C15')
        e('s_cmp_lt_u32 s98, 16')
        e('s_cselect_b32 s98, 0x2545F491, s98')
        e('v_mov_b32 %s, s98' % t[0])
        e('v_mov_b32 %s, 0' % t[1])
        e('s_mov_b64 exec, 1')
        e.raw('    global_store_dword %s, %s, s[36:37] sc1' % (t[1], t[0]))
        e.raw('    buffer_store_dword %s, %s, s[32:35], 0 offen sc1' % (t[0], t[1]))
        e('s_mov_b64 exec, -1')
        e('s_nop 1')
        e('L_notag:')
        self.pace(True)

    def release_dma(self, upto):
        upto = min(upto, len(self.dmaq))
        while self.dma_pos < upto:
            self.bg.append(self.dmaq[self.dma_pos])
            self.dma_pos += 1

    def chunk_soff(self, c, need_x):
        e = self.e
        if self.o.get('rot'):
            e('s_add_u32 s87, s85, %d' % c)
            e('s_and_b32 s87, s87, 7')
            if need_x:
                e('s_lshl_b32 s86, s87, 7')
            e('s_mul_i32 s87, s87, 196608')
        else:
            if need_x:
                e('s_mov_b32 s86, %d' % (c * 128))
            e('s_mov_b32 s87, %d' % (c * 196608))

    def chunk_items(self, c):
        e = self.e
        base = L_RING + (c % 6) * SLOT
        tk = self.kv_dma[c]

        def i0():
            e('s_add_u32 m0, s100, %d' % base)
            self.chunk_soff(c, True)
            tk.append(e('buffer_load_dwordx4 %s, s[8:11], s86 offen lds' % self.vxA))

        def i4():
            e('s_add_u32 m0, s100, %d' % (base + 4096))
            tk.append(e('buffer_load_dwordx4 %s, s[12:15], s87 offen lds' % self.vwB))
        return [i0,
                lambda: tk.append(e('buffer_load_dwordx4 %s, s[12:15], s87 offen offset:1024 lds' % self.vwA)),
                lambda: tk.append(e('buffer_load_dwordx4 %s, s[12:15], s87 offen offset:2048 lds' % self.vwA)),
                lambda: tk.append(e('buffer_load_dwordx4 %s, s[8:11], s86 offen offset:3072 lds' % self.vxB)),
                i4,
                lambda: tk.append(e('buffer_load_dwordx4 %s, s[12:15], s87 offen offset:1024 lds' % self.vwB))]

    def wq_items(self, c):
        e = self.e

        def i0():
            e('s_add_u32 m0, s101, %d' % (L_WQ + c * 8192))
            self.chunk_soff(c, False)
            self.wq_dma.append(e('buffer_load_dwordx4 %s, s[12:15], s87 offen lds' % self.vwA))
        return [i0, lambda: self.wq_dma.append(
            e('buffer_load_dwordx4 %s, s[12:15], s87 offen offset:1024 lds' % self.vwQ))]

    def p1_kv(self):
        e, V, A = self.e, self.V, self.A
        t = self.pt
        vlane = self.vlane
        WIN = self.o.get('win', 14)
        e('s_and_b32 s40, s3, 1')
        e('s_lshr_b32 s41, s3, 1')
        e('s_lshl_b32 s42, s40, 1')
        e('s_or_b32 s42, s42, s41')
        vx = V.alloc('vx', 4)
        vw = V.alloc('vw', 4)
        self.vtrb = V.alloc('trb')
        self.vq3 = V.alloc('q3')
        vh = self.vh
        e('v_lshrrev_b32 %s, 5, %s' % (vh, vlane))
        e('v_bfe_u32 %s, %s, 3, 1' % (self.vq3, vlane))
        e('v_bfe_u32 %s, %s, 2, 2' % (t[0], vlane))
        e('v_lshlrev_b32 %s, 7, %s' % (t[0], t[0]))
        e('v_bfe_u32 %s, %s, 4, 1' % (t[1], vlane))
        e('v_lshl_add_u32 %s, %s, 5, %s' % (t[0], t[1], t[0]))
        e('v_and_b32 %s, 3, %s' % (t[1], vlane))
        e('v_lshl_add_u32 %s, %s, 3, %s' % (self.vtrb, t[1], t[0]))
        e('v_xor_b32 %s, s41, %s' % (t[1], self.vq3))
        e('v_lshl_add_u32 %s, %s, 6, %s' % (t[1], t[1], self.vtrb))
        e('v_mul_u32_u24 %s, 3072, %s' % (t[2], vh))
        e('v_add_u32 %s, %s, %s' % (t[1], t[1], t[2]))
        e('v_bfe_u32 %s, %s, 4, 1' % (t[2], vlane))
        e('s_lshl_b32 s98, s40, 1')
        e('v_add_u32 %s, s98, %s' % (t[2], t[2]))
        e('v_mul_u32_u24 %s, 6144, %s' % (t[2], t[2]))
        e('v_mul_u32_u24 %s, 3072, %s' % (t[3], self.vq3))
        e('v_and_b32 %s, 7, %s' % (t[7], vlane))
        e('v_lshlrev_b32 %s, 7, %s' % (t[7], t[7]))
        e('v_add3_u32 %s, %s, %s, %s' % (t[2], t[2], t[3], t[7]))
        e('v_add_u32 %s, %d, %s' % (t[2], L_RING, t[2]))
        e('v_bfe_u32 %s, %s, 1, 3' % (t[3], vlane))
        for p in range(4):
            e('s_xor_b32 s98, s42, %d' % p)
            e('s_mul_i32 s99, s98, 6144')
            e('s_add_u32 s99, s99, %d' % L_RING)
            e('v_add_u32 %s, s99, %s' % (vw[p], t[1]))
            e('s_lshl_b32 s98, s98, 1')
            e('v_add_u32 %s, s98, %s' % (t[7], vh))
            e('v_xor_b32 %s, %s, %s' % (t[7], t[7], t[3]))
            e('v_lshl_add_u32 %s, %s, 4, %s' % (vx[p], t[7], t[2]))
        ones = V.alloc('ones', 2, 2)
        self.ones = ones
        e('v_mov_b32 %s, 0x3f803f80' % ones[0])
        e('v_mov_b32 %s, 0x3f803f80' % ones[1])
        X = A.alloc('X', 128, at=0)
        self.X = X
        accK = V.alloc('accK', 16, at=48)
        accV = V.alloc('accV', 16, at=64)
        sm = V.alloc('smalls', 16, at=80)
        WB = V.alloc('WB', 32, at=96)
        self.HV = V.alloc('HV', 64, at=192)
        self.OWN = A.alloc('OWN', 32, at=224)
        for n in range(4):
            e('s_add_u32 s98, s4, %d' % n)
            e('s_cmp_ge_u32 s98, 4')
            e('s_cselect_b32 s98, 0x3f803f80, 0')
            for r in range(16):
                e('v_mov_b32 %s, s98' % self.HV[n * 16 + r])
        for r in range(16):
            e('v_accvgpr_write_b32 %s, %s' % (self.OWN[8 + r], ones[0]))
        self.late_args()
        a0, a1 = V.alloc('a0', 2), V.alloc('a1', 2)
        e('v_and_b32 %s, 31, %s' % (t[0], vlane))
        e('s_lshl_b32 s98, s40, 10')
        e('v_lshl_add_u32 %s, %s, 5, s98' % (a0[0], t[0]))
        e('s_lshl_b32 s98, s41, 4')
        e('v_lshl_add_u32 %s, %s, 3, s98' % (t[1], vh))
        e('v_add_u32 %s, %s, %s' % (a0[1], a0[0], t[1]))
        e('s_lshl_b32 s98, s41, 9')
        e('v_lshl_add_u32 %s, %s, 4, s98' % (a1[0], t[0]))
        e('s_lshl_b32 s98, s40, 3')
        e('v_lshl_add_u32 %s, %s, 2, s98' % (t[1], vh))
        e('v_add_u32 %s, %s, %s' % (a1[1], a1[0], t[1]))
        e('v_sub_u32 %s, 1, %s' % (self.hz, vh))
        e('v_cvt_f32_u32 %s, %s' % (self.hz, self.hz))
        rsa = V.alloc('rsa', 2, at=164)
        e('s_lshl_b32 s98, s3, 7')
        e('v_lshl_add_u32 %s, %s, 2, s98' % (rsa[0], t[0]))
        e('v_lshl_add_u32 %s, %s, 4, s98' % (rsa[1], vh))
        vkg, vvg, vkx, vvx = (V.alloc('vkg', at=160), V.alloc('vvg', at=161), V.alloc('vkx', at=162),
                              V.alloc('vvx', at=163))
        e('s_lshl_b32 s98, s41, 13')
        e('s_lshl_b32 s99, s40, 11')
        e('s_add_u32 s98, s98, s99')
        e('v_add_u32 %s, s98, %s' % (vkg, self.vl16))
        e('v_and_b32 %s, 15, %s' % (t[0], vlane))
        e('v_lshl_add_u32 %s, %s, 4, %s' % (t[0], vh, t[0]))
        self.vidx16 = V.alloc('idx16')
        e('v_lshlrev_b32 %s, 4, %s' % (self.vidx16, t[0]))
        e('v_bfe_u32 %s, %s, 4, 1' % (t[1], vlane))
        e('v_lshl_add_u32 %s, %s, 12, %s' % (t[2], t[1], self.vidx16))
        e('v_add_u32 %s, s98, %s' % (vvg, t[2]))
        e('s_lshr_b32 s98, s98, 1')
        e('v_add_u32 %s, s98, %s' % (vkx, self.vl16))
        e('v_lshl_add_u32 %s, %s, 11, %s' % (t[2], t[1], self.vidx16))
        e('v_add_u32 %s, s98, %s' % (vvx, t[2]))
        e('v_add_u32 %s, %d, %s' % (vvx, L_VX, vvx))
        self.vqx = self.vw2[0]
        e('v_add_u32 %s, %d, %s' % (self.vqx, L_QX, vkx))
        e('v_add_u32 %s, %d, %s' % (vkx, L_KX, vkx))
        e('s_lshl_b32 s43, s4, 3')
        e('s_add_u32 s43, s43, s5')
        e('s_lshl_b32 s44, s43, 14')
        e('s_add_u32 s44, s44, 0x%x' % WS_KV)
        e('s_add_u32 s45, s44, 4096')
        e('s_lshl_b32 s46, s3, 12')
        vt = self.vw2[1]
        e('v_mov_b32 %s, 0' % vt)

        state = {'shift': 0}

        def slot_off(c):
            return (c % 6) * SLOT

        def reads(p_abs):
            c, p = divmod(p_abs, 4)
            off = slot_off(c) - state['shift']
            buf = WB.sub((p_abs % 4) * 8, 8)
            assert 0 <= off and off + 5632 + 512 < 65536, off
            return [
                'ds_read_b128 %s, %s offset:%d' % (X.sub(4 * p_abs, 4), vx[p], off),
                'ds_read_b64_tr_b16 %s, %s offset:%d' % (buf.sub(0, 2), vw[p], off + 1024),
                'ds_read_b64_tr_b16 %s, %s offset:%d' % (buf.sub(2, 2), vw[p], off + 1024 + 512),
                'ds_read_b64_tr_b16 %s, %s offset:%d' % (buf.sub(4, 2), vw[p], off + 2048),
                'ds_read_b64_tr_b16 %s, %s offset:%d' % (buf.sub(6, 2), vw[p], off + 2048 + 512),
            ]

        def shift_ops(c, p):
            want = (slot_off(c) // (2 * SLOT)) * 2 * SLOT
            prev = (slot_off(c - 1) // (2 * SLOT)) * 2 * SLOT if c else 0
            state['shift'] = want
            d = want - prev
            if d == 0:
                return []
            f = 'v_add_u32 %s, %d, %s' if d > 0 else 'v_subrev_u32 %s, %d, %s'
            return [f % (vx[p], abs(d), vx[p]), f % (vw[p], abs(d), vw[p])]

        def bigs(p_abs):
            buf = WB.sub((p_abs % 4) * 8, 8)
            x = X.sub(4 * p_abs, 4)
            c0 = '0' if p_abs == 0 else None
            return ['v_mfma_f32_32x32x16_bf16 %s, %s, %s, %s' % (accK, buf.sub(0, 4), x, c0 or accK),
                    'v_mfma_f32_32x32x16_bf16 %s, %s, %s, %s' % (accV, x, buf.sub(4, 4), c0 or accV)]

        def smalls(p_abs):
            p = p_abs % 4
            buf = WB.sub((p_abs % 4) * 8, 8)
            x = X.sub(4 * p_abs, 4)
            first = p_abs == 0
            M = 'v_mfma_f32_4x4x4_16b_bf16 %s, %s, %s, %s'
            a = []
            b = []
            if p & 1 == 0:
                a += [M % (sm.sub(0, 4), x.sub(0, 2), x.sub(0, 2), '0' if first else sm.sub(0, 4)),
                      M % (sm.sub(4, 4), ones, x.sub(0, 2), '0' if first else sm.sub(4, 4))]
                b += [M % (sm.sub(0, 4), x.sub(2, 2), x.sub(2, 2), sm.sub(0, 4)),
                      M % (sm.sub(4, 4), ones, x.sub(2, 2), sm.sub(4, 4))]
            if p & 2 == 0:
                a += [M % (sm.sub(8, 4), ones, buf.sub(0, 2), '0' if first else sm.sub(8, 4)),
                      M % (sm.sub(12, 4), ones, buf.sub(4, 2), '0' if first else sm.sub(12, 4))]
                b += [M % (sm.sub(8, 4), ones, buf.sub(2, 2), sm.sub(8, 4)),
                      M % (sm.sub(12, 4), ones, buf.sub(6, 2), sm.sub(12, 4))]
            if len(a) == 2:
                return a + ['s_nop 0'] + b
            return a + b

        last_read = [None]

        def barrier_for(c):
            self.bg_until(lambda: len(self.kv_dma[c]) == 6)
            self.pace(False)
            e('s_barrier', wait_vm=self.kv_dma[c], wait_lgkm=[last_read[0]] if last_read[0] else None)
            self.pace(True)
            if self.o.get('chunkstamps'):
                self.stamp('c%d' % c)
            lim = 6 * (c + 1) + WIN
            space = {0: 36, 1: 42, 2: 48, 3: 54, 4: 60}.get(c, 64)
            self.release_dma(min(lim, space))
            if c == 5:
                self.bg.append(lambda: setattr(self, 'tagld', e(
                    'global_load_dword %s, %s, s[36:37] sc1' % (self.vtag, vt))))

        def rd(p_abs):
            c, p = divmod(p_abs, 4)
            out = shift_ops(c, p)
            return out + reads(p_abs)

        barrier_for(0)
        self.stamp('chunk0')
        for s in rd(0) + rd(1):
            last_read[0] = e(s)
        for p_abs in range(28):
            nxt = p_abs + 2
            if nxt % 4 == 0:
                barrier_for(nxt // 4)
            r = rd(nxt)
            big = bigs(p_abs)
            e(big[0])
            h = len(r) - 2
            for s in r[:h]:
                last_read[0] = e(s)
            e(big[1])
            for s in r[h:]:
                last_read[0] = e(s)
            for s in smalls(p_abs):
                e(s)
        for s in rd(30)[:] + rd(31):
            last_read[0] = e(s)
        lr = last_read[0]
        for p_abs in (28, 29, 30):
            for s in smalls(p_abs):
                e(s)
        big_rest = bigs(28) + bigs(29) + bigs(30) + bigs(31)
        e(big_rest[0])
        e('s_mov_b32 s98, 0xaaaaaaaa')
        e('s_mov_b32 s99, 0xaaaaaaaa')
        e('s_mov_b32 vcc_lo, 0xcccccccc')
        e('s_mov_b32 vcc_hi, 0xcccccccc')
        e('v_cndmask_b32 %s, %s, %s, s[98:99]' % (t[2], sm[0], sm[1]))
        e('v_cndmask_b32 %s, %s, %s, s[98:99]' % (t[3], sm[2], sm[3]))
        e('v_cndmask_b32 %s, %s, %s, vcc' % (sm[5], t[2], t[3]))
        adds = [e('ds_write_b64 %s, %s offset:%d' % (a0[1], sm.sub(4, 2), L_ST)),
                e('ds_write_b32 %s, %s offset:%d' % (a1[1], sm[8], L_CS + 1024)),
                e('ds_write_b32 %s, %s offset:%d' % (a1[1], sm[12], L_CS + 2048))]
        e(big_rest[1])
        self.pace(False)
        e('s_barrier', wait_lgkm=adds + [lr])
        self.pace(True)
        self.release_dma(64)
        stb = V.alloc('stb', 16, at=128)
        e('ds_read_b128 %s, %s offset:%d' % (stb.sub(0, 4), a0[0], L_ST))
        e('ds_read_b128 %s, %s offset:%d' % (stb.sub(4, 4), a0[0], L_ST + 16))
        e(big_rest[2])
        e('ds_read_b128 %s, %s offset:%d' % (stb.sub(8, 4), a1[0], L_CS + 1024))
        e('ds_read_b128 %s, %s offset:%d' % (stb.sub(12, 4), a1[0], L_CS + 2048))
        self.csaddr = a1
        st = V.alloc('st', 2, at=156)
        csk, csv = V.alloc('csk', at=158), V.alloc('csv', at=159)
        mB = V.alloc('mB', 4, at=152)
        cK = V.alloc('cK', 4, at=144)
        cV = V.alloc('cV', 4, at=148)
        rs = V.alloc('rs', 2, 2)
        self.mB, self.rs = mB, rs
        rT = sm
        chain = [
            'v_add_f32 %s, %s, %s' % (stb[0], stb[0], stb[2]),
            'v_add_f32 %s, %s, %s' % (stb[1], stb[1], stb[3]),
            'v_add_f32 %s, %s, %s' % (stb[4], stb[4], stb[6]),
            'v_add_f32 %s, %s, %s' % (stb[5], stb[5], stb[7]),
            'v_add_f32 %s, %s, %s' % (st[0], stb[0], stb[4]),
            'v_add_f32 %s, %s, %s' % (st[1], stb[1], stb[5]),
            'v_mul_f32 %s, %s, %s' % (st[0], hexf(-1.0 / 512), st[0]),
            'v_mul_f32 %s, %s, %s' % (st[1], hexf(1.0 / 512), st[1]),
            'v_fma_f32 %s, -%s, %s, %s' % (st[1], st[0], st[0], st[1]),
            'v_max_f32 %s, 0, %s' % (st[1], st[1]),
            'v_add_f32 %s, %s, %s' % (st[1], hexf(1e-5), st[1]),
            'v_rsq_f32 %s, %s' % (rs[0], st[1]),
            'v_add_f32 %s, %s, %s' % (stb[8], stb[8], stb[9]),
            lambda: setattr(self, 'rsw', e('ds_write_b32 %s, %s offset:%d' % (rsa[0], rs[0], L_RS))),
            'v_add_f32 %s, %s, %s' % (stb[10], stb[10], stb[11]),
            'v_add_f32 %s, %s, %s' % (stb[12], stb[12], stb[13]),
            'v_add_f32 %s, %s, %s' % (stb[14], stb[14], stb[15]),
            'v_add_f32 %s, %s, %s' % (csk, stb[8], stb[10]),
            'v_add_f32 %s, %s, %s' % (csv, stb[12], stb[14]),
        ]
        aug = self.aug_ops(mB, st[0], t[6], False) + \
            ['v_mul_f32 %s, %s, %s' % (csk, self.hz, csk), 'v_mul_f32 %s, %s, %s' % (csv, self.hz, csv)] + \
            self.aug_ops(cK, csk, t[6], True) + self.aug_ops(cV, csv, t[7], True)

        def rdT(g):
            return lambda: e('ds_read_b128 %s, %s offset:%d' % (rT.sub(4 * g, 4), rsa[1], L_RS + 32 * g),
                             wait_lgkm=[self.rsw] if g == 0 else None)
        self.weave(e, big_rest[3:], chain + aug[:7] + [rdT(0), rdT(1)] + aug[7:12] + [rdT(2), rdT(3)] + aug[12:])
        e('v_mfma_f32_32x32x16_bf16 %s, %s, %s, %s' % (accK, cK, mB, accK))
        e('v_mfma_f32_32x32x16_bf16 %s, %s, %s, %s' % (accV, mB, cV, accV))
        self.pace(False)
        PK = WB
        st_tok = []
        for hd in range(2):
            for r in range(8 * hd, 8 * hd + 8):
                e('v_mul_f32 %s, %s, %s' % (accK[r], rs[0], accK[r]))
            for r in range(4 * hd, 4 * hd + 4):
                e('v_cvt_pk_bf16_f32 %s, %s, %s' % (PK[r], accK[2 * r], accK[2 * r + 1]))
            st_tok.append(e('buffer_store_dwordx4 %s, %s, s[32:35], s%d offen sc1' % (PK.sub(4 * hd, 4), vkg, 44 + hd)))
        for m in range(2):
            for r in range(8 * m, 8 * m + 8, 2):
                e('v_pk_mul_f32 %s, %s, %s' % (accV.sub(r, 2), accV.sub(r, 2), rT.sub(r, 2)))
            for r in range(4 * m, 4 * m + 4):
                e('v_cvt_pk_bf16_f32 %s, %s, %s' % (PK[8 + r], accV[2 * r], accV[2 * r + 1]))
            st_tok.append(e('buffer_store_dwordx4 %s, %s, s[32:35], s44 offen offset:%d sc1' % (
                PK.sub(8 + 4 * m, 4), vvg, 1024 + 512 * m)))
        self.kv_st = st_tok
        self.stamp('kvpub')
        self.xw = [e('ds_write_b128 %s, %s' % (vkx, PK.sub(0, 4))),
                   e('ds_write_b128 %s, %s offset:2048' % (vkx, PK.sub(4, 4))),
                   e('ds_write_b128 %s, %s' % (vvx, PK.sub(8, 4))),
                   e('ds_write_b128 %s, %s offset:512' % (vvx, PK.sub(12, 4)))]
        V.release('accK', 'accV', 'st', 'csk', 'csv', 'cK', 'cV', 'stb', 'vkg', 'vvg', 'vkx', 'vvx', 'rsa',
                  'xA', 'xB', 'wB', 'vx', 'a0')
        self.vw, self.WB, self.sm, self.vt = vw, WB, sm, vt

    def aug_ops(self, dst, val, tmp, dup):
        ops = ['v_cvt_pk_bf16_f32 %s, %s, %s' % (dst[0], val, val),
               'v_and_b32 %s, 0xffff0000, %s' % (tmp, dst[0]),
               'v_sub_f32 %s, %s, %s' % (tmp, val, tmp)]
        if dup:
            ops += ['v_cvt_pk_bf16_f32 %s, %s, %s' % (dst[1], tmp, tmp)]
        else:
            ops += ['v_cvt_pk_bf16_f32 %s, %s, %s' % (dst[0], val, tmp),
                    'v_mov_b32 %s, %s' % (dst[1], dst[0])]
        ops += ['v_mov_b32 %s, 0' % dst[2], 'v_mov_b32 %s, 0' % dst[3]]
        return ops

    def img_dma(self, vq, srd, stride, lds_base, groups, sbase):
        e = self.e
        out = []
        toks = []
        for g in groups:
            for k in range(4):
                def f(g=g, k=k):
                    if k == 0:
                        e('s_add_u32 m0, s46, %d' % (lds_base + g * 16384))
                        e('s_add_u32 s87, %s, %d' % (sbase, g * 128 * stride))
                    toks.append(e('buffer_load_dwordx4 %s, %s, s87 offen offset:%d lds' % (vq[k], srd, k * 1024)))
                out.append(f)
        return out, toks

    def img_voff(self, name, stride):
        e, V = self.e, self.V
        vq = V.alloc(name, 4)
        ops = ['v_lshrrev_b32 %s, 3, %s' % (vq[0], self.vlane),
               's_lshl_b32 s98, s3, 5',
               'v_add_u32 %s, s98, %s' % (vq[0], vq[0]),
               'v_mul_u32_u24 %s, %d, %s' % (vq[0], stride, vq[0]),
               'v_add_u32 %s, %s, %s' % (vq[0], vq[0], self.vsw)]
        for k in range(1, 4):
            ops.append('v_add_u32 %s, %d, %s' % (vq[k], k * (8 * stride - 1024), vq[0]))
        return vq, ops

    def p1_q(self):
        e, V, A = self.e, self.V, self.A
        t, vlane, vh = self.pt, self.vlane, self.vh
        vw, WB, sm, X, ones = self.vw, self.WB, self.sm, self.X, self.ones
        self.pace(True)
        e('v_xor_b32 %s, s41, %s' % (t[1], self.vq3))
        e('v_lshl_add_u32 %s, %s, 6, %s' % (t[1], t[1], self.vtrb))
        e('v_lshl_add_u32 %s, %s, 10, %s' % (t[1], vh, t[1]))
        for p in range(4):
            e('s_xor_b32 s98, s42, %d' % p)
            e('s_lshl_b32 s98, s98, 11')
            e('s_add_u32 s98, s98, %d' % L_WQ)
            e('v_add_u32 %s, s98, %s' % (vw[p], t[1]))
        vwo, ops = self.img_voff('vwo', 1024)
        for s in ops:
            e(s)
        self.vwo = vwo
        e('s_mul_i32 s47, s43, 2341')
        e('s_lshr_b32 s47, s47, 16')
        e('s_mul_i32 s98, s47, 28')
        e('s_sub_u32 s48, s43, s98')
        e('s_cmp_lt_u32 s43, 224')
        e('s_cselect_b32 s49, 0, 0x%x' % OOB)
        vs = V.alloc('vside', 4, at=128)
        e('v_lshrrev_b32 %s, 3, %s' % (t[0], vlane))
        e('s_lshl_b32 s98, s3, 4')
        e('v_add_u32 %s, s98, %s' % (t[0], t[0]))
        e('v_mul_u32_u24 %s, 3584, %s' % (vs[0], t[0]))
        e('v_add_u32 %s, %s, %s' % (vs[0], vs[0], self.vsw))
        e('v_add_u32 %s, %d, %s' % (vs[1], 8 * 3584 - 1024, vs[0]))
        e('v_lshl_add_u32 %s, %s, 10, %s' % (vs[2], t[0], self.vsw))
        e('v_add_u32 %s, %d, %s' % (vs[3], 8192 - 1024, vs[2]))
        e('s_mul_i32 s98, s47, %d' % (64 * 3584))
        e('s_lshl_b32 s99, s48, 7')
        e('s_add_u32 s98, s98, s99')
        e('s_add_u32 s90, s98, s49')
        e('s_lshl_b32 s99, s48, 16')
        e('s_lshl_b32 s98, s47, 7')
        e('s_add_u32 s98, s98, s99')
        e('s_add_u32 s91, s98, s49')
        e('s_lshl_b32 s50, s5, 7')
        side = []
        self.side_dma = side

        def sd0():
            e('s_add_u32 m0, s46, %d' % (L_SIDE + 2048))
            e('s_nop 0')
            side.append(e('buffer_load_dwordx4 %s, s[24:27], s91 offen lds' % vs[2]))

        def sd2():
            e('s_add_u32 m0, s46, %d' % L_SIDE)
            e('s_nop 0')
            side.append(e('buffer_load_dwordx4 %s, s[20:23], s90 offen lds' % vs[0]))
        side_items = [sd0, lambda: side.append(e('buffer_load_dwordx4 %s, s[24:27], s91 offen offset:1024 lds' % vs[3])),
                      sd2, lambda: side.append(e('buffer_load_dwordx4 %s, s[20:23], s90 offen offset:1024 lds' % vs[1]))]
        wo_f, self.wo_tok = self.img_dma(vwo, 's[16:19]', 1024, L_WO, [0, 1, 2], 's50')
        wo_f3, wo_tok3 = self.img_dma(vwo, 's[16:19]', 1024, L_WO, [3], 's50')
        self.wo_tok3 = wo_tok3
        accQ = V.alloc('accQ', 16, at=48)
        QB = V.alloc('QB', 16, at=64)

        def reads(p_abs):
            c, p = divmod(p_abs, 4)
            buf = QB.sub((p_abs % 4) * 4, 4)
            return ['ds_read_b64_tr_b16 %s, %s offset:%d' % (buf.sub(0, 2), vw[p], c * 8192),
                    'ds_read_b64_tr_b16 %s, %s offset:%d' % (buf.sub(2, 2), vw[p], c * 8192 + 512)]

        def big(p_abs):
            buf = QB.sub((p_abs % 4) * 4, 4)
            return 'v_mfma_f32_32x32x16_bf16 %s, %s, %s, %s' % (accQ, buf, X.sub(4 * p_abs, 4),
                                                                '0' if p_abs == 0 else accQ)

        def smalls(p_abs):
            if p_abs & 2:
                return []
            buf = QB.sub((p_abs % 4) * 4, 4)
            M = 'v_mfma_f32_4x4x4_16b_bf16 %s, %s, %s, %s'
            return [M % (sm.sub(0, 4), ones, buf.sub(0, 2), '0' if p_abs == 0 else sm.sub(0, 4)),
                    M % (sm.sub(4, 4), ones, buf.sub(2, 2), '0' if p_abs == 0 else sm.sub(4, 4))]

        self.bg_flush()
        self.pace(False)
        e('s_barrier', wait_vm=self.wq_dma)
        self.stamp('wq')
        self.bg.extend(side_items + wo_f)
        self.pace(True)
        for s in reads(0) + reads(1) + reads(2):
            e(s)
        Cl = V.alloc('Cl', 16, at=160)
        Cu = V.alloc('Cu', 16, at=176)
        self.Cl, self.Cu = Cl, Cu
        BIG = 2.0 ** 100
        fill = ['v_and_b32 %s, 31, %s' % (t[0], vlane),
                'v_lshlrev_b32 %s, 2, %s' % (t[1], vh),
                'v_sub_u32 %s, %s, %s' % (t[0], t[0], t[1]),
                'v_cvt_f32_i32 %s, %s' % (t[0], t[0]),
                'v_mov_b32 %s, %s' % (t[1], hexf(BIG)),
                'v_mov_b32 %s, %s' % (t[2], hexf(-BIG))]
        for r in range(16):
            cr = (r & 3) + 8 * (r >> 2)
            fill += ['v_fmaak_f32 %s, %s, %s, %s' % (Cl[r], t[0], t[1], hexf(-cr * BIG)),
                     'v_fmaak_f32 %s, %s, %s, %s' % (Cu[r], t[0], t[2], hexf((cr - 1) * BIG)),
                     'v_min_f32 %s, 0, %s' % (Cl[r], Cl[r]),
                     'v_min_f32 %s, 0, %s' % (Cu[r], Cu[r])]

        def tag_and_flag():
            vt = self.vt
            self.pace(False)
            e('v_cmp_eq_u32 vcc, 0, %s' % self.vtag)
            e('s_lshl_b32 s98, s43, 2')
            e('s_cbranch_vccnz L_tagspin')
            e('L_tagok:')
            self.tail.append(
                'L_tagspin:\n    global_load_dword %s, %s, s[36:37] sc1\n    s_add_u32 s96, s96, 1\n'
                '    s_cmp_gt_u32 s96, s97\n    s_waitcnt vmcnt(0)\n    s_cbranch_scc1 L_tagok\n'
                '    v_cmp_eq_u32 vcc, 0, %s\n    s_nop 1\n    s_cbranch_vccnz L_tagspin\n    s_branch L_tagok\n'
                % (self.vtag, vt, self.vtag))
            e('s_add_u32 s98, s98, s3')
            e('s_lshl_b32 s98, s98, 7')
            e('s_add_u32 s98, s98, 0x%x' % WS_KVF)
            e('buffer_store_dword %s, %s, s[32:35], s98 offen sc1' % (self.vtag, self.vflag), wait_vm=self.kv_st)
            self.stamp('kvflag')
            e('v_readfirstlane_b32 s6, %s' % self.vtag)
            self.pace(True)

        def xccpub():
            vt = self.vt
            e('s_getreg_b32 s51, hwreg(HW_REG_XCC_ID, 0, 4)')
            e('s_lshr_b32 s98, s43, 4')
            e('s_lshl_b32 s52, s98, 7')
            e('s_add_u32 s52, s52, 0x%x' % WS_XCC)
            e('s_and_b32 s98, s43, 15')
            e('s_lshl_b32 s98, s98, 2')
            e('s_add_u32 s98, s98, s52')
            e('s_cmp_eq_u32 s3, 0')
            e('s_cselect_b32 s98, s98, 0x%x' % OOB)
            e('v_xor_b32 %s, s51, %s' % (vt, self.vtag))
            e('buffer_store_dword %s, %s, s[32:35], s98 offen sc1' % (vt, self.vflag))

        nfill = len(fill)
        pos = 0
        FLAG_AT = self.o.get('kvflag_at', 10)
        for p_abs in range(28):
            e(big(p_abs))
            for s in reads(p_abs + 3):
                e(s)
            upto = min(nfill, (nfill * (p_abs + 1) + 25) // 26)
            while pos < upto:
                e(fill[pos])
                pos += 1
            if p_abs == FLAG_AT:
                tag_and_flag()
            if p_abs == FLAG_AT + 2:
                xccpub()
            for s in smalls(p_abs):
                e(s)
        for s in smalls(28):
            e(s)
        lr = None
        for s in smalls(29):
            e(s)
        for s in reads(31):
            lr = e(s)
        e(big(28))
        e('v_add_f32 %s, %s, %s' % (t[3], sm[0], sm[4]))
        ad = e('ds_write_b32 %s, %s offset:%d' % (self.csaddr[1], t[3], L_CS))
        e(big(29))
        self.pace(False)
        e('s_barrier', wait_lgkm=[ad, lr])
        self.bg.extend(wo_f3)
        self.pace(True)
        cq4 = sm.sub(8, 4)
        cQ = V.alloc('cQ', 4, at=144)
        e('ds_read_b128 %s, %s offset:%d' % (cq4, self.csaddr[0], L_CS))
        e(big(30))
        vr = V.alloc('vr', 3, at=132)
        e('v_add_u32 %s, s101, %s' % (vr[0], self.vl16))
        e('v_add_u32 %s, %d, %s' % (vr[1], L_KX, vr[0]))
        e('v_add_u32 %s, s101, %s' % (vr[2], self.vidx16))
        e('v_add_u32 %s, %d, %s' % (vr[2], L_VX, vr[2]))
        e('v_mul_f32 %s, %s, %s' % (self.rs[0], hexf(0.25 * LOG2E), self.rs[0]))
        e(big(31))
        e('v_add_f32 %s, %s, %s' % (cq4[0], cq4[0], cq4[1]))
        e('v_add_f32 %s, %s, %s' % (cq4[2], cq4[2], cq4[3]))
        e('v_add_f32 %s, %s, %s' % (cq4[0], cq4[0], cq4[2]))
        e('v_mul_f32 %s, %s, %s' % (cq4[0], self.hz, cq4[0]))
        for s in self.aug_ops(cQ, cq4[0], t[3], True):
            e(s)
        e('v_mfma_f32_32x32x16_bf16 %s, %s, %s, %s' % (accQ, cQ, self.mB, accQ))
        OWN = self.OWN
        e('ds_read_b128 %s, %s offset:1024' % (OWN.sub(4, 4), vr[1]))
        e('ds_read_b128 %s, %s' % (OWN.sub(0, 4), vr[1]))
        self.pace(False)
        e('s_mov_b64 exec, s[38:39]')
        e('ds_read_b128 %s, %s offset:1024' % (OWN.sub(16, 4), vr[2]))
        e('ds_read_b128 %s, %s offset:1536' % (OWN.sub(20, 4), vr[2]))
        e('ds_read_b128 %s, %s' % (OWN.sub(8, 4), vr[2]))
        e('ds_read_b128 %s, %s offset:512' % (OWN.sub(12, 4), vr[2]))
        e('s_mov_b64 exec, -1')
        self.pace(True)
        w = []
        for hd in range(2):
            for r in range(8 * hd, 8 * hd + 8, 2):
                e('v_pk_mul_f32 %s, %s, %s op_sel_hi:[1,0]' % (accQ.sub(r, 2), accQ.sub(r, 2), self.rs))
            for r in range(4 * hd, 4 * hd + 4):
                e('v_cvt_pk_bf16_f32 %s, %s, %s' % (QB[r], accQ[2 * r], accQ[2 * r + 1]))
            w.append(e('ds_write_b128 %s, %s offset:%d' % (self.vqx, QB.sub(4 * hd, 4), 2048 * hd)))
        self.pace(False)
        e('s_barrier', wait_lgkm=w)
        self.pace(True)
        e('ds_read_b128 %s, %s offset:%d' % (OWN.sub(28, 4), vr[0], L_QX + 1024))
        e('ds_read_b128 %s, %s offset:%d' % (OWN.sub(24, 4), vr[0], L_QX))
        self.stamp('qdone')
        assert len(side) == 4, 'side DMAs must be issued before their address registers are released'
        V.release('accQ', 'QB', 'cQ', 'vr', 'mB', 'rs', 'a1', 'vw', 'wA', 'wQ', 'WB', 'dummy', 'smalls', 'vside')
        A.release('X')

    def kfrag(self, s):
        return self.HK.sub(4 * s, 4) if s < 8 else self.OWN.sub(4 * (s - 8), 4)

    def vfrag(self, s, m):
        return self.HV.sub(8 * s + 4 * m, 4) if s < 8 else self.OWN.sub(8 + 8 * (s - 8) + 4 * m, 4)

    def qfrag(self, qb):
        return self.OWN.sub(24 + 4 * qb, 4)

    def cmask(self, s, qb):
        if s == qb:
            return str(self.Cu)
        if s == qb + 8:
            return str(self.Cl)
        return '0'

    def attn_run(self, e, blocks, S, P, O, first, fill_at, cfun=None, last_pv=True):
        cfun = cfun or self.cmask

        def smf(n):
            s, qb = blocks[n]
            if s < 8 and e is self.e:
                self.bg_until(lambda: (s, 2) in self.halo_done or (s, 0) in self.halo_done)
            return 'v_mfma_f32_32x32x16_bf16 %s, %s, %s, %s' % (S[n % 2], self.kfrag(s), self.qfrag(qb), cfun(s, qb))

        def pv(n, m):
            s, qb = blocks[n]
            if s < 8 and e is self.e:
                self.bg_until(lambda: (s, 1) in self.halo_done)
            c = O[qb]
            if qb in first:
                first.discard(qb)
                c = '0'
            return 'v_mfma_f32_32x32x16_bf16 %s, %s, %s, %s' % (O[qb], self.vfrag(s, m), P.sub(4 * m, 4), c)

        e(smf(0))
        pending = None
        for n in range(len(blocks)):
            s_ = S[n % 2]
            fl = list(fill_at.get(n, []))
            ex = ['v_exp_f32 %s, %s' % (s_[r], s_[r]) for r in range(16)]
            cv = ['v_cvt_pk_bf16_f32 %s, %s, %s' % (P[r], s_[2 * r], s_[2 * r + 1]) for r in range(8)]
            if n == 0 and len(blocks) > 1:
                e(smf(1))
                for f in fl:
                    f() if callable(f) else e(f)
                fl = []
            e(ex[0])
            e(ex[1])
            if pending:
                e(pending)
                pending = None
            for s in ex[2:5]:
                e(s)
            if n > 0 and n + 1 < len(blocks):
                e(smf(n + 1))
            for s in ex[5:8]:
                e(s)
            for s in cv[0:4]:
                e(s)
            e(ex[8])
            e(ex[9])
            e(pv(n, 0))
            for f in fl:
                f() if callable(f) else e(f)
            for s in ex[10:16]:
                e(s)
            for s in cv[4:8]:
                e(s)
            pending = pv(n, 1)
        return pending

    def attention(self):
        e, V, A = self.e, self.V, self.A
        t, vlane, vh = self.pt, self.vlane, self.vh
        ones = self.ones
        self.HK = V.alloc('HK', 32, at=128)
        S = [V.alloc('S0', 16, at=48), V.alloc('S1', 16, at=64)]
        P = V.alloc('P', 8, at=112)
        O = [V.alloc('O0', 16, at=80), V.alloc('O1', 16, at=96)]
        self.S, self.P, self.O = S, P, O
        first = {0, 1}
        own = [(9, 1), (8, 1), (8, 0)]
        vhk, vhv, vpf = V.alloc('vhk'), V.alloc('vhv'), V.alloc('vpf')
        vsr = V.alloc('vsr', 2)
        prep = ['v_add_u32 %s, s46, %s' % (vhk, self.vl16),
                'v_add_u32 %s, s46, %s' % (vhv, self.vidx16),
                'v_bfe_u32 %s, %s, 1, 2' % (t[0], vlane),
                'v_lshlrev_b32 %s, 12, %s' % (t[2], t[0]),
                'v_and_b32 %s, 1, %s' % (t[1], vlane),
                'v_lshl_add_u32 %s, %s, 7, %s' % (vpf, t[1], t[2]),
                'v_add_u32 %s, s4, %s' % (t[0], t[0]),
                'v_cmp_le_u32 s[54:55], 4, %s' % t[0],
                's_sub_u32 s98, s43, 32',
                's_lshl_b32 s98, s98, 9',
                's_lshl_b32 s99, s41, 8',
                's_add_u32 s98, s98, s99',
                's_add_u32 s53, s98, 0x%x' % WS_KVF]
        for n in range(4):
            prep += ['s_add_u32 s99, s4, %d' % n,
                     's_add_u32 s98, s44, %d' % ((n - 4) * 131072 & 0xffffffff),
                     's_cmp_ge_u32 s99, 4',
                     's_cselect_b32 s%d, s98, 0x%x' % (76 + n, OOB)]
        prep2 = ['v_lshl_add_u32 %s, %s, 9, %s' % (t[0], vh, self.vtrb),
                 'v_add_u32 %s, s46, %s' % (t[0], t[0]),
                 'v_add_u32 %s, %d, %s' % (t[0], L_SIDE, t[0]),
                 'v_lshl_add_u32 %s, %s, 6, %s' % (vsr[0], self.vq3, t[0]),
                 'v_xor_b32 %s, 64, %s' % (vsr[1], vsr[0]),
                 's_mul_i32 s98, s47, %d' % (112 * 2048),
                 's_lshl_b32 s99, s48, 13',
                 's_add_u32 s98, s98, s99',
                 's_add_u32 s98, s98, s101',
                 's_add_u32 s98, s98, s49',
                 's_add_u32 s91, s98, 0x%x' % WS_W2P,
                 's_lshl_b32 s98, s47, 9',
                 's_lshl_b32 s99, s48, 4',
                 's_add_u32 s98, s98, s99',
                 's_lshl_b32 s99, s3, 2',
                 's_add_u32 s98, s98, s99',
                 's_add_u32 s98, s98, s49',
                 's_add_u32 s80, s98, 0x%x' % WS_W2F,
                 's_lshl_b32 s99, s48, 12',
                 's_lshl_b32 s98, s47, 3',
                 's_add_u32 s98, s98, s99',
                 's_add_u32 s98, s98, s49',
                 's_add_u32 s98, s98, 0x%x' % WS_CSP,
                 's_cmp_eq_u32 s3, 0',
                 's_cselect_b32 s90, s98, 0x%x' % OOB]
        pend = self.attn_run(e, own, S, P, O, first, {0: prep, 2: prep2})
        sb, sm = S[0], S[1]
        self.bg_flush()
        self.pace(False)
        e.wait(vm=self.side_dma)
        for pc in (1, 0):
            for nt in range(2):
                for u in range(2):
                    e('ds_read_b64_tr_b16 %s, %s offset:%d' % (sb.sub(pc * 8 + nt * 4 + 2 * u, 2), vsr[nt],
                                                                pc * 2048 + u * 1024))
        e(pend)
        self.w2p_st = [e('buffer_store_dwordx4 %s, %s, s[32:35], s91 offen sc1' % (sb.sub(8, 4), self.vl16)),
                       e('buffer_store_dwordx4 %s, %s, s[32:35], s91 offen offset:1024 sc1' % (sb.sub(12, 4), self.vl16))]
        self.poll_issue(vpf, 's53', t[6])
        M = 'v_mfma_f32_4x4x4_16b_bf16 %s, %s, %s, %s'
        e(M % (sm.sub(0, 4), ones, sb.sub(0, 2), '0'))
        e(M % (sm.sub(4, 4), ones, sb.sub(4, 2), '0'))
        e('v_and_b32 %s, 31, %s' % (t[0], vlane))
        e(M % (sm.sub(0, 4), ones, sb.sub(2, 2), sm.sub(0, 4)))
        e(M % (sm.sub(4, 4), ones, sb.sub(6, 2), sm.sub(4, 4)))
        e('s_lshl_b32 s98, s3, 3')
        e('v_lshl_add_u32 %s, %s, 5, s98' % (t[0], t[0]))
        e('v_lshl_add_u32 %s, %s, 2, %s' % (t[0], vh, t[0]))
        cw = [e('ds_write_b32 %s, %s offset:%d' % (t[0], sm[0], L_CSW1)),
              e('ds_write_b32 %s, %s offset:%d' % (t[0], sm[4], L_CSW1 + 1024))]
        V.release('vsr', 'ones', 'resv_vw1')
        vw1, ops = self.img_voff('vw1', 3584)
        for s in ops:
            e(s)
        self.vw1 = vw1
        e('v_lshlrev_b32 %s, 5, %s' % (t[0], vlane))
        e('s_barrier', wait_lgkm=cw)
        e('ds_read_b128 %s, %s offset:%d' % (sb.sub(0, 4), t[0], L_CSW1))
        e('ds_read_b128 %s, %s offset:%d' % (sb.sub(4, 4), t[0], L_CSW1 + 16))
        e('s_and_b32 s47, s43, 15')
        e('s_min_u32 s48, s47, 13')
        e('s_lshl_b32 s49, s48, 8')
        e('v_lshlrev_b32 %s, 6, %s' % (t[1], vlane))
        e('v_pk_add_f32 %s, %s, %s' % (sb.sub(0, 2), sb.sub(0, 2), sb.sub(2, 2)))
        e('v_pk_add_f32 %s, %s, %s' % (sb.sub(4, 2), sb.sub(4, 2), sb.sub(6, 2)))
        e('v_pk_add_f32 %s, %s, %s' % (sb.sub(0, 2), sb.sub(0, 2), sb.sub(4, 2)))
        e('v_add_f32 %s, %s, %s' % (t[2], sb[0], sb[1]))
        e('v_mov_b32 %s, %s' % (t[3], self.vtag))
        cspub = lambda: e('buffer_store_dwordx2 %s, %s, s[32:35], s90 offen sc1' % (t.sub(2, 2), t[1]))
        self.stamp('halowait')
        e('v_cmp_ne_u32 vcc, s6, %s' % t[6])
        e('s_and_b64 vcc, vcc, s[54:55]')
        e('s_cbranch_vccz L_halook')
        self.poll(vpf, 's53', t.sub(6, 2), mask='s[54:55]')
        e('L_halook:')
        self.stamp('haloflag')
        items = []
        self.halo_done = set()
        for s in range(7, -1, -1):
            items.append(lambda s=s: e('buffer_load_dwordx4 %s, %s, s[32:35], s%d offen offset:%d sc1' % (
                self.kfrag(s), vhk, 76 + (s >> 1), (s & 1) * 2048)))
            for m in range(2):
                def f(s=s, m=m):
                    e('s_mov_b64 exec, s[38:39]')
                    e('buffer_load_dwordx4 %s, %s, s[32:35], s%d offen offset:%d sc1' % (
                        self.vfrag(s, m), vhv, 76 + (s >> 1), (s & 1) * 2048 + 1024 + 512 * m))
                    e('s_mov_b64 exec, -1')
                    self.halo_done.add((s, m))
                items.append(f)
        w1a_f, self.w1a_tok = self.img_dma(vw1, 's[20:23]', 3584, L_W1A, [0, 1, 2, 3], 's49')
        xr = V.alloc('xr', 8, at=120)
        self.xr = xr
        vpt = V.alloc('vpt', 4)

        def w2flag():
            e('buffer_store_dword %s, %s, s[32:35], s80 offen sc1' % (self.vtag, self.vflag), wait_vm=self.w2p_st)

        nb = self.o.get('halo_burst', 7)
        self.bg.extend(items)
        self.bg_flush(nb)
        ops = [
            'v_and_b32 %s, 31, %s' % (t[0], vlane),
            's_lshl_b32 s98, s4, 1',
            's_add_u32 s98, s98, s41',
            's_lshl_b32 s98, s98, 15',
            's_lshl_b32 s99, s40, 6',
            's_add_u32 s98, s98, s99',
            's_add_u32 s98, s98, s50',
            'v_lshl_add_u32 %s, %s, 10, s98' % (t[0], t[0]),
            'v_lshl_add_u32 %s, %s, 4, %s' % (self.vout, vh, t[0]),
            's_mul_i32 s98, s4, %d' % (2 * H1_GT),
            's_add_u32 s98, s98, 0x%x' % WS_H1,
            's_lshl_b32 s99, s5, 2',
            's_add_u32 s99, s99, s3',
            's_lshl_b32 s99, s99, 10',
            's_add_u32 s53, s98, s99',
            's_mul_i32 s99, s41, %d' % H1_GT,
            's_add_u32 s98, s98, s99',
            's_lshl_b32 s99, s40, 14',
            's_add_u32 s54, s98, s99',
            's_lshl_b32 s98, s4, 1',
            's_add_u32 s98, s98, s41',
            's_lshl_b32 s99, s5, 1',
            's_add_u32 s99, s99, s40',
            's_lshl_b32 s55, s98, 4',
            's_add_u32 s55, s55, s99',
            's_lshl_b32 s55, s55, 11',
            's_lshl_b32 s45, s98, 12',
            's_lshl_b32 s99, s5, 9',
            's_add_u32 s45, s45, s99',
            's_add_u32 s45, s45, 0x%x' % WS_ST2,
            'v_and_b32 %s, 7, %s' % (t[0], vlane),
            'v_lshlrev_b32 %s, 7, %s' % (t[0], t[0]),
            'v_mul_u32_u24 %s, %d, %s' % (t[4], H1_GT, self.vq3),
            'v_add3_u32 %s, %s, %s, s53' % (t[4], t[0], t[4]),
            'v_and_b32 %s, 0x180, %s' % (t[5], t[0]),
            'v_add_u32 %s, s45, %s' % (t[5], t[5]),
            'v_cmp_gt_u32 vcc, 16, %s' % vlane,
            'v_and_b32 %s, 15, %s' % (t[0], vlane),
            'v_lshlrev_b32 %s, 7, %s' % (vpt[1], t[0]),
            'v_cndmask_b32 %s, %s, %s, vcc' % (vpt[0], t[5], t[4]),
            'v_lshlrev_b32 %s, 2, %s' % (t[6], t[0]),
            'v_and_b32 %s, 31, %s' % (t[0], vlane),
            'v_lshlrev_b32 %s, 6, %s' % (t[0], t[0]),
            'v_lshl_add_u32 %s, %s, 5, %s' % (vpt[3], vh, t[0]),
            's_lshl_b32 s81, s48, 13',
            's_add_u32 s81, s81, s101',
            's_add_u32 s81, s81, 0x%x' % WS_CSP,
        ]
        self.pace(True)
        for x in ops:
            e(x)
        self.vcs = vpt[3]

        def pre0():
            e('s_mov_b64 exec, 0xfffff')
            e('buffer_load_dword %s, %s, s[32:35], 0 offen sc1' % (vpt[2], vpt[0]))
            e('s_mov_b64 exec, -1')

        def pre1():
            e('s_mov_b64 exec, 0xffff')
            e('buffer_load_dword %s, %s, s[28:31], s55 offen sc1' % (vpt[0], vpt[1]))
            e('s_mov_b64 exec, -1')

        def xres(k):
            def f():
                e('buffer_load_dwordx4 %s, %s, s[8:11], 0 offen offset:%d' % (xr.sub(4 * k, 4), self.vout, 32 * k))
                self.extra_gap = 192
            return f
        misc = [w2flag, cspub]
        if not self.o.get('force_sc1'):
            misc += [pre0, pre1]
        misc += [lambda: setattr(self, 'xccld', e('buffer_load_dword %s, %s, s[32:35], s52 offen sc1' % (t[7], t[6])))]
        self.bg.extend(misc + [xres(0), xres(1)] + w1a_f)

        def xcccheck():
            self.pace(False)
            assert self.xccld
            e('v_xor_b32 %s, s6, %s' % (t[7], t[7]))
            e('v_cmp_le_u32 vcc, 16, %s' % t[7])
            e('s_cbranch_vccnz L_xccspin')
            e('L_xccok:')
            e('v_cmp_ne_u32 vcc, s51, %s' % t[7])
            e('s_cmp_eq_u64 vcc, 0')
            e('s_cselect_b32 s7, 1, 0')
            if self.o.get('force_slow'):
                e('s_mov_b32 s7, 0')
            self.tail.append(
                'L_xccspin:\n    buffer_load_dword %s, %s, s[32:35], s52 offen sc1\n    s_add_u32 s96, s96, 1\n'
                '    s_cmp_gt_u32 s96, s97\n    s_waitcnt vmcnt(0)\n    v_xor_b32 %s, s6, %s\n'
                '    s_cbranch_scc1 L_xccok\n    v_cmp_le_u32 vcc, 16, %s\n    s_nop 1\n'
                '    s_cbranch_vccnz L_xccspin\n    s_branch L_xccok\n' % (t[7], t[6], t[7], t[7], t[7]))
            self.pace(True)

        blocks = []
        for s in range(7, 0, -1):
            blocks += [(s, 1), (s, 0)]
        blocks += [(0, 0)]
        vinf = self.vinf()
        pend = self.attn_run(e, blocks, S, P, O, first, {13: [xcccheck]})
        self.pace(False)
        e('s_mov_b32 s98, %s' % hexf(2.0 ** -40))
        e('s_mov_b32 s99, %s' % hexf(2.0 ** 40))
        e(pend)
        self.stamp('attn')
        for qb in (1, 0):
            o = O[qb]
            e('v_max3_f32 %s, abs(%s), abs(%s), abs(%s)' % (t[0], o[0], o[1], o[2]))
            e('v_max3_f32 %s, abs(%s), abs(%s), %s' % (t[0], o[3], o[4], t[0]))
            e('v_max3_f32 %s, abs(%s), abs(%s), %s' % (t[0], o[5], o[6], t[0]))
            e('v_max3_f32 %s, abs(%s), %s, %s' % (t[0], o[7], t[0], t[0]))
            e('v_cmp_nle_f32 vcc, s98, %s' % o[8])
            e('v_cmp_nge_f32 s[90:91], s99, %s' % o[8])
            e('v_cmp_nlt_f32 s[92:93], %s, %s' % (t[0], vinf))
            e('s_or_b64 vcc, vcc, s[90:91]')
            e('s_or_b64 vcc, vcc, s[92:93]')
            if self.o.get('force_fallback'):
                e('s_mov_b64 vcc, -1')
            e('s_cbranch_vccnz L_fallback')
        e('L_attn_ok:')
        rc = t.sub(0, 2)
        for qb in (1, 0):
            o = O[qb]
            e('v_rcp_f32 %s, %s' % (rc[0], o[8]))
            for r in range(0, 8, 2):
                e('v_pk_mul_f32 %s, %s, %s op_sel_hi:[1,0]' % (o.sub(r, 2), o.sub(r, 2), rc))
            for r in range(4):
                e('v_cvt_pk_bf16_f32 %s, %s, %s' % (P[4 * qb + r], o[2 * r], o[2 * r + 1]))
        e('s_add_u32 s99, s53, %d' % H1_GT)
        self.o_st = self.mode_stores(['buffer_store_dwordx4 %s, %s, s[32:35], s53 offen' % (P.sub(0, 4), self.vl16),
                                      'buffer_store_dwordx4 %s, %s, s[32:35], s99 offen' % (P.sub(4, 4), self.vl16)])
        self.fallback()
        print('bg left after attention:', len(self.bg), file=sys.stderr)
        V.release('S0', 'S1', 'O0', 'O1', 'Cl', 'Cu', 'HK', 'HV', 'vinf', 'vhk', 'vhv', 'vpf', 'idx16', 'swz', 'vwo')
        A.release('OWN')

    def vinf(self):
        if 'vinf' not in self.V.names:
            r = self.V.alloc('vinf')
            self._vinf = r
            self.e('v_mov_b32 %s, 0x7f800000' % r)
        return self._vinf

    def fallback(self):
        f = Emitter('fb')
        S, P, O, t = self.S, self.P, self.O, self.pt
        Cz = S[1]
        f('L_fallback:')
        f('s_nop 15')
        for qb in (0, 1):
            slots = list(range(qb + 8, qb - 1, -1))
            f('v_mov_b32 %s, 0xff800000' % t[0])
            for s in slots:
                if s < 8:
                    f('s_cmp_lt_u32 s4, %d' % (4 - (s >> 1)))
                    f('s_cbranch_scc1 L_fb_a%d_%d' % (qb, s))
                f('v_mfma_f32_32x32x16_bf16 %s, %s, %s, %s' % (S[0], self.kfrag(s), self.qfrag(qb), self.cmask(s, qb)))
                for r in range(0, 16, 2):
                    f('v_max3_f32 %s, %s, %s, %s' % (t[0], S[0][r], S[0][r + 1], t[0]))
                f('s_nop 7')
                f('L_fb_a%d_%d:' % (qb, s))
            f('v_mov_b32 %s, %s' % (t[1], t[0]))
            f('v_permlane32_swap_b32 %s, %s' % (t[0], t[1]))
            f('v_max_f32 %s, %s, %s' % (t[0], t[0], t[1]))
            for r in range(16):
                f('v_mov_b32 %s, 0' % O[qb][r])
            for s in slots:
                if s < 8:
                    f('s_cmp_lt_u32 s4, %d' % (4 - (s >> 1)))
                    f('s_cbranch_scc1 L_fb_b%d_%d' % (qb, s))
                f('v_mfma_f32_32x32x16_bf16 %s, %s, %s, %s' % (S[0], self.kfrag(s), self.qfrag(qb), self.cmask(s, qb)))
                for r in range(16):
                    f('v_sub_f32 %s, %s, %s' % (S[0][r], S[0][r], t[0]))
                for r in range(16):
                    f('v_exp_f32 %s, %s' % (S[0][r], S[0][r]))
                for r in range(8):
                    f('v_cvt_pk_bf16_f32 %s, %s, %s' % (P[r], S[0][2 * r], S[0][2 * r + 1]))
                for m in range(2):
                    f('v_mfma_f32_32x32x16_bf16 %s, %s, %s, %s' % (O[qb], self.vfrag(s, m), P.sub(4 * m, 4), O[qb]))
                f('s_nop 15')
                f('L_fb_b%d_%d:' % (qb, s))
        f('s_nop 15')
        f('s_branch L_attn_ok')
        self.cold = f.text()

    def w2_loads(self, lo, hi):
        e = self.e
        out = []
        for n in range(lo, hi):
            def f(n=n):
                p, m, b = n >> 2, (n >> 1) & 1, n & 1
                if n % 4 == 0 or n == lo:
                    e('s_lshl_b32 s88, s%d, 1' % (56 + p))
                    e('s_add_u32 s88, s88, s92')
                e('buffer_load_dwordx4 %s, %s, s[32:35], s88 offen offset:%d sc1' % (
                    self.W2.sub(n * 4, 4), self.vw2[b], m * 2048))
            out.append(f)
        return out

    def tagcheck(self, e, regs, tmp):
        e('v_min3_u32 %s, %s, %s, %s' % (tmp[0], regs[0], regs[1], regs[2]))
        e('v_max3_u32 %s, %s, %s, %s' % (tmp[1], regs[0], regs[1], regs[2]))
        k = 3
        while k < len(regs):
            b = regs[k + 1] if k + 1 < len(regs) else regs[k]
            e('v_min3_u32 %s, %s, %s, %s' % (tmp[0], regs[k], b, tmp[0]))
            e('v_max3_u32 %s, %s, %s, %s' % (tmp[1], regs[k], b, tmp[1]))
            k += 2
        e('v_xor_b32 %s, s6, %s' % (tmp[0], tmp[0]))
        e('v_xor_b32 %s, s6, %s' % (tmp[1], tmp[1]))
        e('v_or_b32 %s, %s, %s' % (tmp[0], tmp[0], tmp[1]))
        e('v_cmp_ne_u32 vcc, 0, %s' % tmp[0])

    def p3(self):
        e, V, A = self.e, self.V, self.A
        o = self.o
        t, vlane, vh = self.pt, self.vlane, self.vh
        self.W2 = A.alloc('W2', 224, at=0)
        WB = A.alloc('WB3', 32, at=224)
        self.WBa = WB
        H = V.alloc('hres', 16, at=240)
        self.H = H
        acc1 = V.alloc('acc1', 16, at=224)
        OF = V.alloc('OF', 64, at=128)
        cb = V.alloc('cb', 8, at=48)
        vwr = V.alloc('vwr', 2)
        vpo = V.alloc('vpo')
        xr = self.xr
        self.bg_flush()
        e('v_min_u32 %s, 55, %s' % (t[4], vlane))
        e('v_lshlrev_b32 %s, 3, %s' % (t[4], t[4]))
        e('s_lshl_b32 s98, s5, 9')
        e('s_add_u32 s93, s98, 0x%x' % WS_W2F)
        e('buffer_load_dwordx2 %s, %s, s[32:35], s93 offen sc1' % (t.sub(6, 2), t[4]))

        def csl(em):
            for k in range(2):
                em('buffer_load_dwordx4 %s, %s, s[32:35], s81 offen offset:%d sc1' % (cb.sub(4 * k, 4), self.vcs, 16 * k))
        csl(e)
        e('s_lshl_b32 s90, s4, 7')
        e('s_add_u32 s90, s90, 0x%x' % WS_OF)
        e('s_lshl_b32 s98, s5, 2')
        e('s_add_u32 s98, s98, s3')
        e('s_lshl_b32 s98, s98, 2')
        e('s_add_u32 s91, s98, s90')
        e('v_permlane32_swap_b32 %s, %s' % (xr[0], xr[2]))
        e('v_permlane32_swap_b32 %s, %s' % (xr[1], xr[3]))
        e('v_permlane32_swap_b32 %s, %s' % (xr[4], xr[6]))
        e('v_permlane32_swap_b32 %s, %s' % (xr[5], xr[7]))
        for k in range(8):
            e('v_lshlrev_b32 %s, 16, %s' % (H[2 * k], xr[k]))
            e('v_and_b32 %s, 0xffff0000, %s' % (H[2 * k + 1], xr[k]))
        V.release('xr')
        e('v_lshl_add_u32 %s, %s, 9, %s' % (t[0], vh, self.vtrb))
        self.vtr9 = V.alloc('vtr9')
        e('v_lshl_add_u32 %s, %s, 6, %s' % (self.vtr9, self.vq3, t[0]))
        e('s_lshl_b32 s98, s40, 6')
        e('v_xor_b32 %s, s98, %s' % (t[0], self.vtr9))
        e('s_lshl_b32 s98, s40, 15')
        e('s_add_u32 s98, s98, %d' % L_WO)
        e('v_add_u32 %s, s98, %s' % (vwr[0], t[0]))
        e('v_xor_b32 %s, 64, %s' % (vwr[1], vwr[0]))
        e('v_and_b32 %s, 15, %s' % (t[0], vlane))
        e('s_lshl_b32 s98, s40, 6')
        e('v_lshl_add_u32 %s, %s, 2, s98' % (vpo, t[0]))
        e('s_lshl_b32 s98, s40, 10')
        e('v_add_u32 %s, s98, %s' % (self.vw2[0], self.vl16))
        e('v_xor_b32 %s, 1024, %s' % (self.vw2[1], self.vw2[0]))
        e('s_mul_i32 s92, s5, %d' % (112 * 2048))
        e('s_add_u32 s92, s92, 0x%x' % WS_W2P)
        e.wait(vm=self.o_st)
        self.mode_stores(['buffer_store_dword %s, %s, s[32:35], s91 offen' % (self.vtag, self.vflag)])
        e('s_barrier', wait_vm=self.wo_tok + self.wo_tok3)
        self.stamp('opub')

        def wreads(s):
            out = []
            for u in (1, 0):
                buf = WB.sub((s % 4) * 8 + 4 * u, 4)
                for uu in range(2):
                    out.append('ds_read_b64_tr_b16 %s, %s offset:%d' % (buf.sub(2 * uu, 2), vwr[u], s * 2048 + uu * 1024))
            return out
        for s in wreads(0) + wreads(1):
            e(s)
        e('v_xor_b32 %s, s6, %s' % (t[6], t[6]))
        e('v_xor_b32 %s, s6, %s' % (t[7], t[7]))
        e('v_or_b32 %s, %s, %s' % (t[6], t[6], t[7]))
        e('v_cmp_ne_u32 vcc, 0, %s' % t[6])
        e('s_cbranch_vccz L_w2ok')
        self.poll(t[4], 's93', t.sub(6, 2), width=2)
        e('L_w2ok:')
        nB = o.get('w2_wb', 6)
        for f in self.w2_loads(0, nB):
            f()
        tags = [cb[k] for k in (1, 3, 5, 7)]
        self.tagcheck(e, tags, t.sub(2, 2))
        e('s_cbranch_vccnz L_csspin')
        e('L_csok:')
        f = Emitter('cs')
        f('L_csspin:')
        csl(f)
        f('s_add_u32 s96, s96, 1')
        f('s_cmp_gt_u32 s96, s97')
        f('s_waitcnt vmcnt(0)')
        f('s_cbranch_scc1 L_csok')
        self.tagcheck(f, tags, t.sub(2, 2))
        f('s_cbranch_vccnz L_csspin')
        f('s_branch L_csok')
        self.tail.append(f.text())
        e('v_add_f32 %s, %s, %s' % (cb[0], cb[0], cb[2]))
        e('v_add_f32 %s, %s, %s' % (cb[4], cb[4], cb[6]))
        e('v_add_f32 %s, %s, %s' % (cb[0], cb[0], cb[4]))
        e('v_mov_b32 %s, %s' % (cb[1], cb[0]))
        e('s_lshl_b32 s98, s3, 9')
        e('v_lshl_add_u32 %s, %s, 3, s98' % (t[0], vlane))
        e('v_permlane32_swap_b32 %s, %s' % (cb[0], cb[1]))
        e('v_add_f32 %s, %s, %s' % (cb[0], cb[0], cb[1]))
        e('v_mul_f32 %s, %s, %s' % (cb[0], self.hz, cb[0]))
        e('v_cvt_pk_bf16_f32 %s, %s, %s' % (cb[2], cb[0], cb[0]))
        e('v_and_b32 %s, 0xffff0000, %s' % (cb[1], cb[2]))
        e('v_sub_f32 %s, %s, %s' % (cb[1], cb[0], cb[1]))
        e('v_cvt_pk_bf16_f32 %s, %s, %s' % (cb[3], cb[1], cb[1]))
        caw = e('ds_write_b64 %s, %s offset:%d' % (t[0], cb.sub(2, 2), L_CA))
        vred = V.alloc('vred', 2)
        e('s_xor_b32 s98, s3, 1')
        e('s_lshl_b32 s98, s98, 12')
        e('s_add_u32 s98, s98, %d' % L_RED3)
        e('v_add_u32 %s, s98, %s' % (vred[0], self.vl16))
        e('s_add_u32 s98, s46, %d' % L_RED3)
        e('v_add_u32 %s, s98, %s' % (vred[1], self.vl16))
        V.release('vpt')
        self.poll(vpo, 's90', t.sub(6, 2))
        self.stamp('oflag')

        def old(u):
            if u % 4 == 0:
                e('s_add_u32 s98, s54, %d' % (u * 1024))
            e('buffer_load_dwordx4 %s, %s, s[32:35], s98 offen offset:%d sc1' % (OF.sub(4 * u, 4), self.vl16,
                                                                                (u % 4) * 1024))
        LA = o.get('la3', 6)
        for u in range(LA):
            old(u)
        n3 = o.get('w2_p3', 8)
        w2f = self.w2_loads(nB, nB + n3)
        self.w2_next = nB + n3
        for s in range(16):
            b = WB.sub((s % 4) * 8, 8)
            e('v_mfma_f32_32x32x16_bf16 %s, %s, %s, %s' % (acc1, b.sub(4, 4), OF.sub(4 * s, 4), '0' if s == 0 else acc1))
            rd = wreads(s + 2) if s + 2 < 16 else []
            for x in rd[:2]:
                e(x)
            if s + LA < 16:
                old(s + LA)
            elif w2f:
                w2f.pop(0)()
            e('v_mfma_f32_32x32x16_bf16 %s, %s, %s, %s' % (H, b.sub(0, 4), OF.sub(4 * s, 4), H))
            for x in rd[2:]:
                e(x)
        for f in w2f:
            f()
        wr = [e('ds_write_b128 %s, %s offset:%d' % (vred[0], acc1.sub(4 * g, 4), g * 1024)) for g in range(4)]
        e('s_barrier', wait_lgkm=wr + [caw], wait_vm=self.w1a_tok)
        for g in range(4):
            e('ds_read_b128 %s, %s offset:%d' % (acc1.sub(4 * g, 4), vred[1], g * 1024))
        e('s_lshr_b32 s98, s55, 15')
        e('s_lshl_b32 s98, s98, 7')
        e('s_bfe_u32 s99, s55, 0x4000b')
        e('s_lshl_b32 s99, s99, 2')
        e('s_add_u32 s98, s98, s99')
        e('s_add_u32 s91, s98, 0x%x' % WS_HF)
        e('v_lshl_add_u32 %s, %s, 29, %s' % (t[0], vh, self.vl16))
        e('s_lshl_b32 s98, s40, 3')
        e('s_add_u32 s45, s45, s98')
        PK = OF
        for g in range(4):
            for r in range(4 * g, 4 * g + 4, 2):
                e('v_pk_add_f32 %s, %s, %s' % (H.sub(r, 2), H.sub(r, 2), acc1.sub(r, 2)))
            for r in range(2 * g, 2 * g + 2):
                e('v_cvt_pk_bf16_f32 %s, %s, %s' % (PK[r], H[2 * r], H[2 * r + 1]))
        h_st = self.mode_stores(['buffer_store_dwordx4 %s, %s, s[28:31], s55 offen' % (PK.sub(0, 4), self.vl16),
                                 'buffer_store_dwordx4 %s, %s, s[28:31], s55 offen offset:1024' % (PK.sub(4, 4), self.vl16)])
        a = acc1
        e('v_pk_mul_f32 %s, %s, %s' % (a.sub(0, 2), H.sub(0, 2), H.sub(0, 2)))
        e('v_pk_add_f32 %s, %s, %s' % (a.sub(2, 2), H.sub(0, 2), H.sub(2, 2)))
        for r in range(2, 16, 2):
            e('v_pk_fma_f32 %s, %s, %s, %s' % (a.sub(0, 2), H.sub(r, 2), H.sub(r, 2), a.sub(0, 2)))
            if r >= 4:
                e('v_pk_add_f32 %s, %s, %s' % (a.sub(2, 2), a.sub(2, 2), H.sub(r, 2)))
        e('v_add_f32 %s, %s, %s' % (a[4], a[2], a[3]))
        e('v_add_f32 %s, %s, %s' % (a[5], a[0], a[1]))
        e('v_mov_b32 %s, %s' % (a[0], a[4]))
        e('v_mov_b32 %s, %s' % (a[1], a[5]))
        e('v_permlane32_swap_b32 %s, %s' % (a[0], a[4]))
        e('v_permlane32_swap_b32 %s, %s' % (a[1], a[5]))
        e('v_pk_add_f32 %s, %s, %s' % (a.sub(4, 2), a.sub(4, 2), a.sub(0, 2)))
        h_st += self.mode_stores(['buffer_store_dwordx2 %s, %s, s[32:35], s45 offen' % (a.sub(4, 2), t[0])])
        e('s_add_u32 s49, s49, 128')
        w1b_f, self.w1b_tok = self.img_dma(self.vw1, 's[20:23]', 3584, L_W1B, [0, 1, 2, 3], 's49')
        nb = o.get('w1b_early', 8)
        for f in w1b_f[:nb]:
            f()
        self.w1b_rest = w1b_f[nb:]
        self.h_st = h_st
        V.release('acc1', 'OF', 'vwr', 'vpo', 'vred', 'P', 'trb', 'q3', 'cb')

    def p4(self):
        e, V, A = self.e, self.V, self.A
        o = self.o
        t, vlane, vh = self.pt, self.vlane, self.vh
        WB = self.WBa
        HF = V.alloc('HF', 128, at=48)
        acc = [V.alloc('acc%d' % k, 16, at=176 + 16 * k) for k in range(4)]
        self.HF, self.acc = HF, acc
        vA = V.alloc('vA', 2)
        cz = [V.alloc('cA%d' % k, 6, 2) for k in range(2)]
        cA = [cz[0].sub(0, 2), cz[0].sub(4, 2), cz[1].sub(0, 2), cz[1].sub(4, 2)]
        cT = [cz[0].sub(0, 4), cz[0].sub(2, 4), cz[1].sub(0, 4), cz[1].sub(2, 4)]
        vst = V.alloc('vst')
        e('v_add_u32 %s, %d, %s' % (vA[0], L_W1A, self.vtr9))
        e('v_xor_b32 %s, 64, %s' % (vA[1], vA[0]))
        V.release('vtr9')
        e('v_lshlrev_b32 %s, 3, %s' % (t[2], vlane))
        for tl in range(4):
            e('ds_read_b64 %s, %s offset:%d' % (cA[tl], t[2], L_CA + 512 * tl))

        def wreads(tl, s, slot):
            buf = WB.sub(slot * 4, 4)
            return ['ds_read_b64_tr_b16 %s, %s offset:%d' % (buf.sub(2 * uu, 2), vA[tl & 1], s * 2048 + uu * 1024)
                    for uu in range(2)]
        RA = 4
        seq1 = [(tl, s) for s in range(32) for tl in (0, 1)]
        for n in range(RA):
            for x in wreads(seq1[n][0], seq1[n][1], n):
                e(x)
        for k in range(2):
            e('v_mov_b32 %s, 0' % cz[k][2])
            e('v_mov_b32 %s, 0' % cz[k][3])
        e('s_lshr_b32 s98, s4, 1')
        e('s_lshl_b32 s98, s98, 2')
        e('s_add_u32 s53, s98, s3')
        e('s_lshl_b32 s44, s53, 15')
        e('s_lshl_b32 s90, s53, 7')
        e('s_add_u32 s90, s90, 0x%x' % WS_HF)
        e('v_and_b32 %s, 15, %s' % (t[1], vlane))
        e('v_lshlrev_b32 %s, 2, %s' % (t[1], t[1]))
        e.wait(vm=self.h_st)
        self.mode_stores(['buffer_store_dword %s, %s, s[32:35], s91 offen' % (self.vtag, self.vflag)])
        self.stamp('hpub')
        e('s_lshl_b32 s45, s53, 12')
        e('s_add_u32 s45, s45, 0x%x' % WS_ST2)
        e('s_cmp_lt_u32 s47, 14')
        e('s_cselect_b32 s99, 0, 0x%x' % OOB)
        e('s_mul_i32 s54, s53, %d' % H1_GT)
        e('s_lshl_b32 s98, s48, 13')
        e('s_add_u32 s54, s54, s98')
        e('s_add_u32 s54, s54, 0x%x' % WS_H1)
        e('s_add_u32 s54, s54, s99')
        e('s_mul_i32 s55, s53, 384')
        e('s_lshl_b32 s98, s48, 2')
        e('s_add_u32 s55, s55, s98')
        e('s_add_u32 s55, s55, 0x%x' % WS_H1F)
        e('s_add_u32 s55, s55, s99')
        e('v_and_b32 %s, 31, %s' % (t[0], vlane))
        e('v_lshlrev_b32 %s, 4, %s' % (t[0], t[0]))
        e('v_lshl_add_u32 %s, %s, 11, %s' % (vst, vh, t[0]))
        self.poll(t[1], 's90', t.sub(6, 2))
        self.stamp('hflag')
        sb = acc[2]

        def hld(s):
            if s % 4 == 0:
                e('s_add_u32 s98, s44, %d' % (s * 1024))
            e('buffer_load_dwordx4 %s, %s, s[28:31], s98 offen offset:%d sc1' % (HF.sub(4 * s, 4), self.vl16,
                                                                                (s % 4) * 1024))
        q = []
        SAT = o.get('stat_at', 20)
        for s in range(32):
            if s == SAT:
                for k in range(4):
                    q.append(lambda k=k: e('buffer_load_dwordx4 %s, %s, s[32:35], s45 offen offset:%d sc1' % (
                        sb.sub(4 * k, 4), vst, k * 512)))
            q.append(lambda s=s: hld(s))
        q += self.w1b_rest
        LA = o.get('la4', 6)
        for _ in range(LA):
            q.pop(0)()
        mB = V.alloc('mB2', 4, 2)
        sc = V.alloc('sc', 2, 2)

        def stats_ops():
            a = sb
            ops = []
            for k in (0, 1):
                ops += ['v_add_f32 %s, %s, %s' % (a[k], a[k], a[k + 2]),
                        'v_add_f32 %s, %s, %s' % (a[k + 4], a[k + 4], a[k + 6]),
                        'v_add_f32 %s, %s, %s' % (a[k + 8], a[k + 8], a[k + 10]),
                        'v_add_f32 %s, %s, %s' % (a[k + 12], a[k + 12], a[k + 14]),
                        'v_add_f32 %s, %s, %s' % (a[k], a[k], a[k + 4]),
                        'v_add_f32 %s, %s, %s' % (a[k + 8], a[k + 8], a[k + 12]),
                        'v_add_f32 %s, %s, %s' % (a[k], a[k], a[k + 8]),
                        'v_mov_b32 %s, %s' % (a[k + 2], a[k])]
            ops += ['s_nop 0',
                    'v_permlane32_swap_b32 %s, %s' % (a[0], a[2]),
                    'v_permlane32_swap_b32 %s, %s' % (a[1], a[3]),
                    'v_add_f32 %s, %s, %s' % (a[0], a[0], a[2]),
                    'v_add_f32 %s, %s, %s' % (a[1], a[1], a[3]),
                    'v_mul_f32 %s, %s, %s' % (a[0], hexf(-1.0 / 512), a[0]),
                    'v_mul_f32 %s, %s, %s' % (a[1], hexf(1.0 / 512), a[1]),
                    'v_fma_f32 %s, -%s, %s, %s' % (a[1], a[0], a[0], a[1]),
                    'v_max_f32 %s, 0, %s' % (a[1], a[1]),
                    'v_add_f32 %s, %s, %s' % (a[1], hexf(1e-5), a[1]),
                    'v_rsq_f32 %s, %s' % (sc[0], a[1]),
                    'v_sqrt_f32 %s, %s' % (sc[1], a[1])]
            ops += self.aug_ops(mB, a[0], a[2], False)[:-2]
            ops += ['v_mov_b32 %s, %s' % (mB[2], mB[0]), 'v_mov_b32 %s, %s' % (mB[3], mB[0]),
                    'v_mul_f32 %s, %s, %s' % (sc[0], hexf(-LOG2E), sc[0])]
            return ops

        def aug(tl):
            return 'v_mfma_f32_32x32x16_bf16 %s, %s, %s, %s' % (acc[tl], cT[tl], mB, acc[tl])

        et = t.sub(2, 4)
        self.h1_st = {}

        def epi(tl, packed=False):
            ops = []
            a = acc[tl]
            PK = a
            for r in range(0, 16, 2):
                x, y = et[(r // 2 % 2) * 2], et[(r // 2 % 2) * 2 + 1]
                ops += ['v_mul_f32 %s, %s, %s' % (x, sc[0], a[r]), 'v_mul_f32 %s, %s, %s' % (y, sc[0], a[r + 1]),
                        'v_exp_f32 %s, %s' % (x, x), 'v_exp_f32 %s, %s' % (y, y),
                        'v_fma_f32 %s, %s, %s, %s' % (x, x, sc[1], sc[1]),
                        'v_fma_f32 %s, %s, %s, %s' % (y, y, sc[1], sc[1]),
                        'v_rcp_f32 %s, %s' % (x, x), 'v_rcp_f32 %s, %s' % (y, y),
                        'v_mul_f32 %s, %s, %s' % (a[r], a[r], x),
                        'v_mul_f32 %s, %s, %s' % (a[r + 1], a[r + 1], y),
                        'v_cvt_pk_bf16_f32 %s, %s, %s' % (PK[r // 2], a[r], a[r + 1])]
                if r in (6, 14):
                    ops.append(store(tl, r // 8))
            return ops

        def epi_packed(tl):
            ops = []
            a = acc[tl]
            for r in range(0, 16, 4):
                u, v = et.sub(0, 2), et.sub(2, 2)
                ops += ['v_pk_mul_f32 %s, %s, %s op_sel_hi:[1,0]' % (u, a.sub(r, 2), sc),
                        'v_pk_mul_f32 %s, %s, %s op_sel_hi:[1,0]' % (v, a.sub(r + 2, 2), sc)]
                ops += ['v_exp_f32 %s, %s' % (et[k], et[k]) for k in range(4)]
                ops += ['v_pk_fma_f32 %s, %s, %s, %s op_sel:[0,1,1] op_sel_hi:[1,1,1]' % (u, u, sc, sc),
                        'v_pk_fma_f32 %s, %s, %s, %s op_sel:[0,1,1] op_sel_hi:[1,1,1]' % (v, v, sc, sc)]
                ops += ['v_rcp_f32 %s, %s' % (et[k], et[k]) for k in range(4)]
                ops += ['v_pk_mul_f32 %s, %s, %s' % (a.sub(r, 2), a.sub(r, 2), u),
                        'v_pk_mul_f32 %s, %s, %s' % (a.sub(r + 2, 2), a.sub(r + 2, 2), v),
                        'v_cvt_pk_bf16_f32 %s, %s, %s' % (a[r // 2], a[r], a[r + 1]),
                        'v_cvt_pk_bf16_f32 %s, %s, %s' % (a[r // 2 + 1], a[r + 2], a[r + 3])]
                if r in (4, 12):
                    ops.append(store(tl, r // 8))
            return ops

        def store(tl, m):
            def st():
                h, e.hook = e.hook, None
                if m == 0:
                    e('s_add_u32 s93, s54, %d' % (tl * 2048))
                tok = e('buffer_store_dwordx4 %s, %s, s[32:35], s93 offen offset:%d sc1' % (
                    acc[tl].sub(4 * m, 4), self.vl16, m * 1024))
                e.hook = h
                self.extra_gap = o.get('stgap', 64)
                self.h1_st.setdefault(tl, []).append(tok)
            return st

        def flag(part, tiles):
            def f():
                w = []
                for tl in tiles:
                    w += self.h1_st[tl]
                e.wait(vm=w)
                self.mode_stores(['buffer_store_dword %s, %s, s[32:35], s55 offen offset:%d' % (
                    self.vtag, self.vflag, part * 128)])
            return f

        so = stats_ops()
        S0 = 64 - (len(so) + 2) // 3 - 1
        for n, (tl, s) in enumerate(seq1):
            e('v_mfma_f32_32x32x16_bf16 %s, %s, %s, %s' % (acc[tl], WB.sub((n % 8) * 4, 4), HF.sub(4 * s, 4),
                                                           '0' if s == 0 else acc[tl]))
            if n + RA < 64:
                for x in wreads(seq1[n + RA][0], seq1[n + RA][1], (n + RA) % 8):
                    e(x)
            if (n % 2 == 0 or (SAT - LA) * 2 <= n < (SAT - LA) * 2 + 8) and q:
                q.pop(0)()
            if n >= S0:
                for x in so[(n - S0) * 3:(n - S0) * 3 + 3]:
                    e(x)
        for f in q:
            f()
        V.release('vw1')
        e(aug(0))
        e(aug(1))
        self.stamp('p4a')
        e('v_subrev_u32 %s, %d, %s' % (vA[0], L_W1A - L_W1B, vA[0]))
        e('v_subrev_u32 %s, %d, %s' % (vA[1], L_W1A - L_W1B, vA[1]))
        self.vh1 = V.alloc('vh1', 2)
        vpf = V.alloc('vpf5')
        self.vpf5 = vpf
        setup = ['s_mul_i32 s98, s41, %d' % H1_GT,
                 'v_add_u32 %s, s98, %s' % (self.vh1[0], self.vl16),
                 's_xor_b32 s98, s41, 1',
                 's_mul_i32 s98, s98, %d' % H1_GT,
                 'v_add_u32 %s, s98, %s' % (self.vh1[1], self.vl16),
                 's_mul_i32 s44, s4, %d' % (2 * H1_GT),
                 's_add_u32 s44, s44, 0x%x' % WS_H1,
                 'v_and_b32 %s, 15, %s' % (t[0], vlane),
                 'v_min_u32 %s, 13, %s' % (t[0], t[0]),
                 'v_bfe_u32 %s, %s, 4, 1' % (t[1], vlane),
                 'v_mul_u32_u24 %s, 384, %s' % (t[1], t[1]),
                 'v_lshl_add_u32 %s, %s, 2, %s' % (vpf, t[0], t[1]),
                 's_mul_i32 s45, s4, 768',
                 's_add_u32 s45, s45, 0x%x' % WS_H1F]
        for x in setup:
            e(x)
        e0 = epi(0)
        pre = o.get('epi_pre', 22)
        self.bg.extend(self.w2_loads(self.w2_next, 56))
        self.pace(True)
        for x in e0[:pre]:
            x() if callable(x) else e(x)
        self.pace(False)
        e('s_barrier', wait_vm=self.w1b_tok)
        self.pace(True)
        seq2 = [(2, s) for s in range(32)] + [(3, s) for s in range(32)]
        for n in range(RA):
            for x in wreads(seq2[n][0], seq2[n][1], n):
                e(x)
        for x in e0[pre:pre + 11]:
            x() if callable(x) else e(x)
        e1 = epi(1)
        cut = o.get('epi_cut', 45)
        fillA = e0[pre + 11:] + e1[:cut]
        fillB = e1[cut:] + epi(2)

        def run(seq, base, fill, extra, lo):
            pos = 0
            for k in range(32):
                n = base + k
                tl, s = seq[n]
                e('v_mfma_f32_32x32x16_bf16 %s, %s, %s, %s' % (acc[tl], WB.sub((n % 8) * 4, 4), HF.sub(4 * s, 4),
                                                               '0' if s == 0 else acc[tl]))
                if n + RA < 64:
                    for x in wreads(seq[n + RA][0], seq[n + RA][1], (n + RA) % 8):
                        e(x)
                upto = (len(fill) * (k + 1) + 31) // 32
                while pos < upto:
                    f = fill[pos]
                    f() if callable(f) else e(f)
                    pos += 1
                for f in extra.get(k, []):
                    f() if callable(f) else e(f)
        run(seq2, 0, fillA, {}, 0)
        e(aug(2))
        self.stamp('t2')
        run(seq2, 32, fillB, {o.get('flagA_at', 24): [flag(0, [0, 1])]}, 0)
        e(aug(3))
        self.stamp('t3')
        print('bg left after tile 3:', len(self.bg), file=sys.stderr)
        ep = epi_packed(3)
        pa = o.get('pollA_at', 20)
        for k, x in enumerate(ep):
            x() if callable(x) else e(x)
            if k == pa:
                self.bg.appendleft(lambda: self.poll_issue(vpf, 's45', t[6], 0))
        self.bg_flush()
        self.pace(False)
        self.flagB = flag(1, [2])
        self.flagC = flag(2, [3])
        self.stamp('p4end')
        V.release('vA', 'cA0', 'cA1', 'vst', 'mB2', 'sc')

    def h1_item(self, n):
        e = self.e
        p, m, a = n >> 2, (n >> 1) & 1, n & 1
        if n % 4 == 0:
            e('s_add_u32 s89, s%d, s44' % (56 + p))
        e('buffer_load_dwordx4 %s, %s, s[32:35], s89 offen offset:%d sc1' % (
            self.HF.sub((n % 32) * 4, 4), self.vh1[a], m * 1024))

    def p5(self):
        e, V, A = self.e, self.V, self.A
        o = self.o
        t = self.pt
        acc = [self.H, self.acc[0], self.acc[1], self.acc[2]]
        HF, W2 = self.HF, self.W2
        vr = V.alloc('vr5', 4)

        def mf(p):
            out = []
            for m in range(2):
                for a in range(2):
                    for b in range(2):
                        u = 2 * a + b
                        c = '0' if (p == 0 and m == 0 and u != 0) else acc[u]
                        out.append('v_mfma_f32_32x32x16_bf16 %s, %s, %s, %s' % (
                            acc[u], W2.sub((p * 4 + m * 2 + b) * 4, 4), HF.sub(((p % 8) * 4 + m * 2 + a) * 4, 4), c))
            return out
        self.poll_check(self.vpf5, 's45', t[6], 0)
        LA = o.get('la5', 8)
        for n in range(LA):
            self.h1_item(n)
            if n == 1:
                self.flagB()
        nxt = LA
        extra = {}

        def add(k, f):
            extra.setdefault(k, []).append(f)
        add(o.get('flagC_at', 6), self.flagC)
        add(24 - LA - 8, lambda: self.poll_issue(self.vpf5, 's45', t[6], 128))
        add(24 - LA - 1, lambda: self.poll_check(self.vpf5, 's45', t[6], 128))
        add(40 - LA - 8, lambda: self.poll_issue(self.vpf5, 's45', t[7], 256))
        add(40 - LA - 1, lambda: self.poll_check(self.vpf5, 's45', t[7], 256))

        def addr():
            for u in range(1, 4):
                e('s_xor_b32 s98, s3, %d' % u)
                e('s_mul_i32 s98, s98, 12288')
                e('s_add_u32 s98, s98, %d' % (L_RED5 + (u - 1) * 4096))
                e('v_add_u32 %s, s98, %s' % (vr[u], self.vl16))
            e('s_mul_i32 s98, s3, 12288')
            e('s_add_u32 s98, s98, %d' % L_RED5)
            e('v_add_u32 %s, s98, %s' % (vr[0], self.vl16))
        add(50, addr)
        slot = 0
        for p in range(13):
            for k, s in enumerate(mf(p)):
                e(s)
                if k % 2 == 0:
                    if nxt < 56:
                        self.h1_item(nxt)
                        nxt += 1
                    for f in extra.get(slot, []):
                        f()
                    slot += 1
        last = mf(13)
        for k in [3, 7, 2, 6, 1, 5, 0, 4]:
            e(last[k])
        self.stamp('p5mm')
        wr = []
        for u in (3, 2, 1):
            for g in range(4):
                wr.append(e('ds_write_b128 %s, %s offset:%d' % (vr[u], acc[u].sub(4 * g, 4), g * 1024)))
        e('s_barrier', wait_lgkm=wr)
        for g in range(4):
            for u in (1, 2, 3):
                e('ds_read_b128 %s, %s offset:%d' % (acc[u].sub(4 * g, 4), vr[0], (u - 1) * 4096 + g * 1024))
        PK = HF
        fl = self.o.get('out_flags', '')
        for hf in range(2):
            for g in (2 * hf, 2 * hf + 1):
                for u in (1, 2, 3):
                    for r in range(4 * g, 4 * g + 4, 2):
                        e('v_pk_add_f32 %s, %s, %s' % (acc[0].sub(r, 2), acc[0].sub(r, 2), acc[u].sub(r, 2)))
                for r in range(2 * g, 2 * g + 2):
                    e('v_cvt_pk_bf16_f32 %s, %s, %s' % (PK[r], acc[0][2 * r], acc[0][2 * r + 1]))
            e('v_permlane32_swap_b32 %s, %s' % (PK[4 * hf], PK[4 * hf + 2]))
            e('v_permlane32_swap_b32 %s, %s' % (PK[4 * hf + 1], PK[4 * hf + 3]))
            e('buffer_store_dwordx4 %s, %s, s[28:31], 0 offen offset:%d %s' % (PK.sub(4 * hf, 4), self.vout, 32 * hf, fl))

    def finish(self):
        e = self.e
        t = self.pt
        if self.o.get('stamps'):
            self.stamp('end')
            self.stamp('dummy')
            e('s_waitcnt vmcnt(0) lgkmcnt(0)')
            e('s_memrealtime s[82:83]')
            e('s_lshl_b32 s98, s2, 2')
            e('s_add_u32 s98, s98, s3')
            e('s_lshl_b32 s98, s98, 7')
            e('s_add_u32 s98, s98, 0x%x' % WS_STAMP)
            for k, r in ((27, 's82'), (28, 's94'), (29, 's96'), (30, 's7'), (31, 's51')):
                e('v_writelane_b32 %s, %s, %d' % (self.vstamp, r, k))
            e('v_lshlrev_b32 %s, 2, %s' % (t[0], self.vlane))
            e('v_lshl_add_u32 %s, %s, 29, %s' % (t[0], self.vh, t[0]))
            e('buffer_store_dword %s, %s, s[32:35], s98 offen' % (self.vstamp, t[0]))
            if self.o.get('dbgstamps'):
                e('s_not_b32 s98, s94')
                e('v_mov_b32 %s, s98' % t[2])
                e('v_mov_b32 %s, s82' % t[3])
                e('v_mov_b32 %s, 4' % t[4])
                e('s_mov_b64 exec, 1')
                e.raw('    global_atomic_umax %s, %s, s[36:37]' % (t[4], t[2]))
                e.raw('    global_atomic_umax %s, %s, s[36:37] offset:4' % (t[4], t[3]))
                e('s_mov_b64 exec, -1')
                e('s_cmp_lg_u32 s2, %d' % self.o.get('dbgwg', 100))
                e('s_cbranch_scc1 L_nodbg')
                e('s_cmp_lg_u32 s3, 0')
                e('s_cbranch_scc1 L_nodbg')
                e('v_readlane_b32 s98, %s, 0' % self.vstamp)
                e('s_sub_u32 s99, s82, s94')
                e('v_subrev_u32 %s, s98, %s' % (self.vstamp, self.vstamp))
                sel = self.o.get('dbgsel', 'dma0,chunk0,kvpub,qdone,attn,oflag,hflag,p4a,p4end,p5mm,end').split(',')
                e('v_mov_b32 %s, s99' % t[2])
                e('v_mov_b32 %s, 12' % t[4])
                e.raw('    global_store_dword %s, %s, s[36:37]' % (t[4], t[2]))
                for k, nm in enumerate(sel):
                    e('v_readlane_b32 s98, %s, %d' % (self.vstamp, self.stamp_names.index(nm)))
                    e('s_nop 3')
                    e('v_mov_b32 %s, s98' % t[2])
                    e('v_mov_b32 %s, %d' % (t[4], 20 + 4 * k))
                    e.raw('    global_store_dword %s, %s, s[36:37]' % (t[4], t[2]))
                    e('s_nop 1')
                e('L_nodbg:')
        e('s_cmp_gt_u32 s96, s97')
        e('s_cbranch_scc0 L_end')
        e('v_mov_b32 %s, 16' % t[0])
        e('v_mov_b32 %s, 0xdead' % t[1])
        e('global_store_dword %s, %s, s[36:37]' % (t[0], t[1]))
        e('L_end:')
        e('s_endpgm')

    def text(self):
        hdr = open('sequential_preLN__sliding_block__dense_activation_silu__prompt.s.ref').read()
        head = [l for l in hdr.split('\n') if l.startswith(';') and '@launch' not in l]
        out = '\n'.join(head) + '\n'
        if self.stamp_names:
            out += '; stamps %s\n' % ','.join(self.stamp_names[:-1])
        out += '; @launch grid=(256,1,1) block=(256,1,1) lds=%d\n' % LDS_BYTES
        out += '.amdgcn_target "amdgcn-amd-amdhsa--gfx950"\n.text\n.globl %s\n.p2align 8\n.type %s,@function\n%s:\n' % (
            KNAME, KNAME, KNAME)
        out += self.e.text()
        for tl in self.tail:
            out += tl
        out += 'L_codeend:\n'
        out += self.cold
        out += '.p2align 6\n.type L_tab,@object\nL_tab:\n'
        for row in p5_table():
            vals = [(8 * jj + 2 * tl) * 1024 for jj, tl in row] + [0, 0]
            out += '    .long ' + ', '.join(str(v) for v in vals) + '\n'
        out += '.size L_tab, 256\n'
        out += '.section .rodata,"a"\n.p2align 6\n.amdhsa_kernel %s\n' % KNAME
        out += '  .amdhsa_next_free_vgpr 512\n  .amdhsa_next_free_sgpr 102\n  .amdhsa_accum_offset 256\n'
        out += '  .amdhsa_group_segment_fixed_size 0\n  .amdhsa_kernarg_size 72\n  .amdhsa_user_sgpr_count 2\n'
        out += '  .amdhsa_user_sgpr_kernarg_segment_ptr 1\n  .amdhsa_system_sgpr_workgroup_id_x 1\n.end_amdhsa_kernel\n'
        return out


def parse_opts(args):
    o = {}
    for a in args:
        if '=' in a:
            k, v = a.split('=', 1)
            try:
                v = int(v)
            except ValueError:
                pass
            o[k] = v
        else:
            o[a] = 1
    return o


if __name__ == '__main__':
    path = sys.argv[1]
    g = Gen(parse_opts(sys.argv[2:]))
    txt = g.build()
    open(path, 'w').write(txt)
    print('wrote', path, len(txt), 'bytes; model cycles', g.e.now, 'stamps', ','.join(g.stamp_names[:-1]))
```

```python
import sys
import struct
import collections
from emit import Emitter, Regs, R, Ins

KNAME = 'sequential_preLN__sliding_block__dense_activation_silu__prompt_kernel'

WS_EPOCH = 0
WS_XCC = 0x1000
WS_KVF = 0x10000
WS_W2F = 0x30000
WS_OF = 0x32000
WS_HF = 0x33000
WS_H1F = 0x36000
WS_CSP = 0x40000
WS_ST2 = 0x60000
WS_KV = 0x100000
WS_W2P = 0x500000
WS_H1 = 0x700000
WS_STAMP = 0xF00000
WS_DUMP = 0x1000000
WS_BYTES = 0x10000000
OOB = 0x20000000
H1_GT = 112 * 1024

K = 1024
L_ST = 0
L_CS = 2048
L_CSW1 = 5120
L_RS = 7168
L_CA = 8 * K
L_QX = 8 * K
L_RING = 16 * K
SLOT = 24 * K
L_WQ = 64 * K
L_WO = 16 * K
L_W1A = 80 * K
L_W1B = 16 * K
L_SIDE = 128 * K
L_KX = 144 * K
L_VX = 152 * K
L_RED3 = 144 * K
L_RED5 = 80 * K
LDS_BYTES = 160 * K

LOG2E = 1.4426950408889634
SPIN_LIMIT = 400000


def f2u(x):
    return struct.unpack('<I', struct.pack('<f', x))[0]


def hexf(x):
    return '0x%08x' % f2u(x)


def p5_table():
    tab = []
    for kq in range(4):
        by = {t: [jj for jj in range(14) if (kq + jj) % 4 == t] for t in range(4)}
        early = sorted([(jj, t) for t in (0, 1) for jj in by[t]], key=lambda x: (x[1], x[0]))
        mid = [(jj, 2) for jj in by[2]]
        late = [(jj, 3) for jj in by[3]]
        first, extra = early[:6], early[6:]
        while len(mid) < 4:
            mid.insert(0, extra.pop(0))
        while len(late) < 4:
            late.insert(0, extra.pop(0))
        assert not extra
        tab.append(first + mid + late)
    return tab


class Gen:
    def __init__(self, opts):
        self.o = opts
        self.e = Emitter()
        self.tail = []
        self.V = Regs('v', 1, 256)
        self.V.small_hi = 48
        self.A = Regs('a', 0, 256)
        self.nstamp = 0
        self.npoll = 0
        self.nslow = 0
        self.stamp_names = []
        self.bg = collections.deque()
        self.gap = opts.get('gap', 64)
        self.extra_gap = 0
        self.nasync = 0

    def _hook(self):
        e = self.e
        if self.bg and e.now - e.last_vm >= self.gap + self.extra_gap:
            self.extra_gap = 0
            self.bg.popleft()()

    def pace(self, on):
        self.e.hook = self._hook if on else None

    def bg_flush(self, n=None):
        e = self.e
        h, e.hook = e.hook, None
        k = 0
        while self.bg and (n is None or k < n):
            self.bg.popleft()()
            k += 1
        e.hook = h

    def bg_until(self, cond):
        e = self.e
        h, e.hook = e.hook, None
        while not cond():
            self.bg.popleft()()
        e.hook = h

    def poll_issue(self, voff, soff, vtmp, imm=0):
        self.e('buffer_load_dword %s, %s, s[32:35], %s offen offset:%d sc1' % (vtmp, voff, soff, imm))

    def poll_check(self, voff, soff, vtmp, imm=0):
        e = self.e
        h, e.hook = e.hook, None
        k = self.nasync
        self.nasync += 1
        e('v_cmp_ne_u32 vcc, s6, %s' % vtmp)
        e('s_cbranch_vccnz L_aspin%d' % k)
        e('L_aok%d:' % k)
        e.hook = h
        self.tail.append(
            'L_aspin%d:\n    buffer_load_dword %s, %s, s[32:35], %s offen offset:%d sc1\n    s_add_u32 s96, s96, 1\n'
            '    s_cmp_gt_u32 s96, s97\n    s_waitcnt vmcnt(0)\n    s_cbranch_scc1 L_aok%d\n'
            '    v_cmp_ne_u32 vcc, s6, %s\n    s_nop 1\n    s_cbranch_vccnz L_aspin%d\n    s_branch L_aok%d\n'
            % (k, vtmp, voff, soff, imm, k, vtmp, k, k))

    def stamp(self, name):
        if not self.o.get('stamps'):
            return
        k = self.nstamp
        assert k < 28
        if k > 0:
            self.e('v_writelane_b32 %s, s%d, %d' % (self.vstamp, 72 + 2 * ((k - 1) & 1), k - 1))
        self.e('s_memtime s[%d:%d]' % (72 + 2 * (k & 1), 73 + 2 * (k & 1)))
        self.stamp_names.append(name)
        self.nstamp += 1

    def poll(self, voff, soff, vtmp, mask=None, width=1, imm=0, xor_lt=None):
        e = self.e
        k = self.npoll
        self.npoll += 1
        hook, e.hook = e.hook, None
        e('L_poll%d:' % k)
        if width == 1:
            e('buffer_load_dword %s, %s, s[32:35], %s offen offset:%d sc1' % (vtmp[0], voff, soff, imm))
        else:
            e('buffer_load_dwordx2 %s, %s, s[32:35], %s offen offset:%d sc1' % (vtmp.sub(0, 2), voff, soff, imm))
        e('s_add_u32 s96, s96, 1')
        e('s_cmp_gt_u32 s96, s97')
        e('s_cbranch_scc1 L_pdone%d' % k)
        e('s_waitcnt vmcnt(0)')
        if xor_lt is not None:
            e('v_xor_b32 %s, s6, %s' % (vtmp[0], vtmp[0]))
            e('v_cmp_le_u32 vcc, %d, %s' % (xor_lt, vtmp[0]))
        elif width == 1:
            e('v_cmp_ne_u32 vcc, s6, %s' % vtmp[0])
        else:
            e('v_xor_b32 %s, s6, %s' % (vtmp[0], vtmp[0]))
            e('v_xor_b32 %s, s6, %s' % (vtmp[1], vtmp[1]))
            e('v_or_b32 %s, %s, %s' % (vtmp[0], vtmp[0], vtmp[1]))
            e('v_cmp_ne_u32 vcc, 0, %s' % vtmp[0])
        if mask is not None:
            e('s_and_b64 vcc, vcc, %s' % mask)
        e('s_cbranch_vccnz L_poll%d' % k)
        e('L_pdone%d:' % k)
        e('s_waitcnt vmcnt(0)')
        e.hook = hook

    def mode_stores(self, stores):
        e = self.e
        if self.o.get('force_sc1'):
            return [e(s + ' sc1') for s in stores]
        k = self.nslow
        self.nslow += 1
        hook, e.hook = e.hook, None
        e('s_cmp_eq_u32 s7, 0')
        e('s_cbranch_scc1 L_slow%d' % k)
        toks = [e(s) for s in stores]
        e('L_back%d:' % k)
        e.hook = hook
        t = 'L_slow%d:\n    s_nop 4\n' % k
        for s in stores:
            t += '    ' + s + ' sc1\n'
        t += '    s_nop 1\n    s_branch L_back%d\n' % k
        self.tail.append(t)
        return toks

    @staticmethod
    def weave(e, main, fill, per=None, lead=0):
        def put(x):
            if callable(x):
                x()
            else:
                e(x)
        fill = list(fill)
        n = len(main)
        pos = 0
        for k, m in enumerate(main):
            put(m)
            if per is None:
                upto = (len(fill) * (k + 1) + n - 1) // n
            else:
                upto = min(len(fill), pos + (per[k] if isinstance(per, (list, tuple)) else per))
            while pos < upto:
                put(fill[pos])
                pos += 1
        while pos < len(fill):
            put(fill[pos])
            pos += 1

    def dump_v(self, regs, slot, nregs_total=None):
        e = self.e
        e('s_lshl_b32 s98, s2, 2')
        e('s_add_u32 s98, s98, s3')
        e('s_lshl_b32 s98, s98, 14')
        e('s_add_u32 s98, s98, 0x%x' % (WS_DUMP + slot * 0x1000000))
        t = self.V.alloc('dump_t', 2)
        e('v_lshlrev_b32 %s, 2, %s' % (t[0], self.vlane))
        for k, r in enumerate(regs):
            src = r
            if r.kind == 'a':
                e('v_accvgpr_read_b32 %s, %s' % (t[1], r))
                src = t[1]
            e('buffer_store_dword %s, %s, s[32:35], s98 offen offset:%d' % (src, t[0], (k % 16) * 256))
            if k % 16 == 15:
                e('s_add_u32 s98, s98, 4096')
            e('s_waitcnt vmcnt(0)')
        self.V.release('dump_t')

    def build(self):
        stop = self.o.get('stop', '')
        self.cold = ''
        for name, fn in (('pro', self.prologue), ('kv', self.p1_kv), ('p1', self.p1_q), ('attn', self.attention),
                         ('p3', self.p3), ('p4', self.p4), ('p5', self.p5)):
            fn()
            if name == stop:
                break
        self.finish()
        return self.text()

    def prologue(self):
        e, V, A = self.e, self.V, self.A
        o = self.o
        e('s_load_dwordx4 s[40:43], s[0:1], 0')
        e('s_cmp_ge_u32 s2, 256')
        e('s_cbranch_scc1 L_end')
        if o.get('stamps') or o.get('padto'):
            e('s_memrealtime s[94:95]')
            self.vstamp = R('v', 0, 1)
        self.stamp('start')
        self.vlane = V.alloc('lane', at=1)
        self.vflag = V.alloc('flagoff', at=3)
        self.vtag = V.alloc('tag', at=12)
        self.vh = V.alloc('h', at=13)
        self.hz = V.alloc('hz', at=14)
        self.vout = V.alloc('vout', at=15)
        self.vw2 = V.alloc('vw2', 2, at=16)
        V.alloc('resv_vw1', 4, at=18)
        self.vl16 = V.alloc('l16', at=2)
        vlane, vl16 = self.vlane, self.vl16
        t = V.alloc('pt', 8, 2, at=4)
        self.pt = t
        e('v_lshrrev_b32 %s, 6, v0' % t[0])
        e('v_and_b32 %s, 63, v0' % vlane)
        e('v_readfirstlane_b32 s3, %s' % t[0])
        if o.get('spread'):
            e('s_lshr_b32 s4, s2, 3')
            e('s_and_b32 s5, s2, 7')
        else:
            e('s_and_b32 s4, s2, 7')
            e('s_lshl_b32 s4, s4, 2')
            e('s_lshr_b32 s5, s2, 6')
            e('s_add_u32 s4, s4, s5')
            e('s_bfe_u32 s5, s2, 0x30003')
        self.vxA, self.vxB = V.alloc('xA'), V.alloc('xB')
        self.vwA, self.vwB, self.vwQ = V.alloc('wA'), V.alloc('wB'), V.alloc('wQ')
        self.vsw = V.alloc('swz')
        e('v_lshrrev_b32 %s, 3, %s' % (t[3], vlane))
        e('v_and_b32 %s, 7, %s' % (t[4], vlane))
        e('v_lshrrev_b32 %s, 4, %s' % (t[5], vlane))
        e('s_lshl_b32 s98, s4, 6')
        e('s_lshl_b32 s99, s3, 4')
        e('s_add_u32 s98, s98, s99')
        e('v_add_lshl_u32 %s, %s, s98, 10' % (t[6], t[3]))
        e('v_xor_b32 %s, %s, %s' % (t[7], t[4], t[5]))
        e('v_lshl_add_u32 %s, %s, 4, %s' % (self.vxA, t[7], t[6]))
        e('v_and_b32 %s, 1, %s' % (t[5], t[5]))
        e('v_lshlrev_b32 %s, 2, %s' % (t[5], t[5]))
        e('v_xor_b32 %s, %s, %s' % (t[4], t[4], t[5]))
        e('v_lshlrev_b32 %s, 4, %s' % (self.vsw, t[4]))
        e('v_add_u32 %s, s99, %s' % (t[2], t[3]))
        e('v_mul_u32_u24 %s, 3072, %s' % (t[2], t[2]))
        e('s_lshl_b32 s98, s5, 7')
        e('v_add3_u32 %s, %s, s98, %s' % (self.vwA, t[2], self.vsw))
        e('s_mul_i32 s100, s3, 6144')
        if o.get('rot'):
            e('s_lshl_b32 s85, s4, 1')
            e('s_add_u32 s85, s85, s5')
        e('s_mov_b32 s10, 0x%x' % (2048 * 1024))
        e('s_mov_b32 s11, 0x20000')
        e('s_mov_b32 s14, 0x%x' % (512 * 3072))
        e('s_mov_b32 s15, 0x20000')
        e('v_xor_b32 %s, 64, %s' % (self.vxB, self.vxA))
        e('v_add_u32 %s, %d, %s' % (self.vxB, 8192 - 3072, self.vxB))
        e('v_add_u32 %s, %d, %s' % (self.vwB, 24576 + 1024, self.vwA))
        for base, src in ((8, 40), (12, 42)):
            e('s_mov_b32 s%d, s%d' % (base, src))
            e('s_and_b32 s%d, s%d, 0xffff' % (base + 1, src + 1))
        self.kv_dma = {c: [] for c in range(8)}
        self.wq_dma = []
        self.dmaq = []
        for c in range(8):
            self.dmaq += self.chunk_items(c)
        for c in range(8):
            self.dmaq += self.wq_items(c)
        self.dma_pos = 0
        self.release_dma(o.get('win', 14))
        self.stamp('dma0')
        self.bg_flush(4)
        e('s_load_dwordx8 s[44:51], s[0:1], 16')
        e('s_load_dwordx4 s[52:55], s[0:1], 48')
        e('s_load_dwordx2 s[32:33], s[0:1], 64')
        e('s_getpc_b64 s[92:93]')
        e('L_pc:')
        e('s_and_b32 s58, s2, 8')
        e('s_lshr_b32 s58, s58, 1')
        e('s_add_u32 s58, s58, s3')
        e('s_lshl_b32 s58, s58, 12')
        e('v_and_b32 %s, 31, %s' % (t[1], vlane))
        e('v_lshl_add_u32 %s, %s, 7, s58' % (t[1], t[1]))
        e('v_min_u32 %s, L_codeend-L_pc-4, %s' % (t[1], t[1]))
        self.vdummy = V.alloc('dummy')
        e('global_load_dword %s, %s, s[92:93]' % (self.vdummy, t[1]))
        e('s_lshl_b32 s59, s3, 6')
        e('s_add_u32 s92, s92, s59')
        e('s_addc_u32 s93, s93, 0')
        e('s_add_u32 s92, s92, L_tab-L_pc')
        e('s_addc_u32 s93, s93, 0')
        e('s_load_dwordx16 s[56:71], s[92:93], 0')
        self.pace(True)
        e('v_lshlrev_b32 %s, 4, %s' % (vl16, vlane))
        e('v_add_u32 %s, %d, %s' % (self.vwQ, 24576 - 1024, self.vwA))
        e('s_lshl_b32 s101, s3, 11')
        e('s_mov_b32 s38, 0x0000ffff')
        e('s_mov_b32 s39, 0x0000ffff')
        e('s_mov_b32 s96, 0')
        e('s_mov_b32 s97, %d' % SPIN_LIMIT)
        e('v_cmp_eq_u32 vcc, 0, %s' % vlane)
        e('v_mov_b32 %s, 0x%x' % (t[0], OOB))
        e('v_cndmask_b32 %s, %s, 0, vcc' % (self.vflag, t[0]))

    def late_args(self):
        e, t = self.e, self.pt
        for base, src, nbytes in ((16, 44, 512 * 1024), (20, 48, 512 * 3584), (24, 50, 1792 * 1024),
                                  (28, 52, 2048 * 1024)):
            e('s_mov_b32 s%d, s%d' % (base, src))
            e('s_and_b32 s%d, s%d, 0xffff' % (base + 1, src + 1))
            e('s_mov_b32 s%d, 0x%x' % (base + 2, nbytes))
            e('s_mov_b32 s%d, 0x20000' % (base + 3))
        e('s_and_b32 s33, s33, 0xffff')
        e('s_mov_b32 s34, 0x%x' % WS_BYTES)
        e('s_mov_b32 s35, 0x20000')
        e('s_mov_b64 s[36:37], s[54:55]')
        self.pace(False)
        e('s_or_b32 s98, s2, s3')
        e('s_cmp_lg_u32 s98, 0')
        e('s_cbranch_scc1 L_notag')
        e('s_load_dword s98, s[32:33], 0')
        e('s_waitcnt lgkmcnt(0)')
        e('s_mul_i32 s98, s98, 0x9E3779B1')
        e('s_add_u32 s98, s98, 0x7F4A7C15')
        e('s_cmp_lt_u32 s98, 16')
        e('s_cselect_b32 s98, 0x2545F491, s98')
        e('v_mov_b32 %s, s98' % t[0])
        e('v_mov_b32 %s, 0' % t[1])
        e('s_mov_b64 exec, 1')
        e.raw('    global_store_dword %s, %s, s[36:37] sc1' % (t[1], t[0]))
        e.raw('    buffer_store_dword %s, %s, s[32:35], 0 offen sc1' % (t[0], t[1]))
        e('s_mov_b64 exec, -1')
        e('s_nop 1')
        e('L_notag:')
        self.pace(True)

    def release_dma(self, upto):
        upto = min(upto, len(self.dmaq))
        while self.dma_pos < upto:
            self.bg.append(self.dmaq[self.dma_pos])
            self.dma_pos += 1

    def chunk_soff(self, c, need_x):
        e = self.e
        if self.o.get('rot'):
            e('s_add_u32 s87, s85, %d' % c)
            e('s_and_b32 s87, s87, 7')
            if need_x:
                e('s_lshl_b32 s86, s87, 7')
            e('s_mul_i32 s87, s87, 196608')
        else:
            if need_x:
                e('s_mov_b32 s86, %d' % (c * 128))
            e('s_mov_b32 s87, %d' % (c * 196608))

    def chunk_items(self, c):
        e = self.e
        base = L_RING + (c % 6) * SLOT
        tk = self.kv_dma[c]

        def i0():
            e('s_add_u32 m0, s100, %d' % base)
            self.chunk_soff(c, True)
            tk.append(e('buffer_load_dwordx4 %s, s[8:11], s86 offen lds' % self.vxA))

        def i4():
            e('s_add_u32 m0, s100, %d' % (base + 4096))
            tk.append(e('buffer_load_dwordx4 %s, s[12:15], s87 offen lds' % self.vwB))
        return [i0,
                lambda: tk.append(e('buffer_load_dwordx4 %s, s[12:15], s87 offen offset:1024 lds' % self.vwA)),
                lambda: tk.append(e('buffer_load_dwordx4 %s, s[12:15], s87 offen offset:2048 lds' % self.vwA)),
                lambda: tk.append(e('buffer_load_dwordx4 %s, s[8:11], s86 offen offset:3072 lds' % self.vxB)),
                i4,
                lambda: tk.append(e('buffer_load_dwordx4 %s, s[12:15], s87 offen offset:1024 lds' % self.vwB))]

    def wq_items(self, c):
        e = self.e

        def i0():
            e('s_add_u32 m0, s101, %d' % (L_WQ + c * 8192))
            self.chunk_soff(c, False)
            self.wq_dma.append(e('buffer_load_dwordx4 %s, s[12:15], s87 offen lds' % self.vwA))
        return [i0, lambda: self.wq_dma.append(
            e('buffer_load_dwordx4 %s, s[12:15], s87 offen offset:1024 lds' % self.vwQ))]

    def p1_kv(self):
        e, V, A = self.e, self.V, self.A
        t = self.pt
        vlane = self.vlane
        WIN = self.o.get('win', 14)
        e('s_and_b32 s40, s3, 1')
        e('s_lshr_b32 s41, s3, 1')
        e('s_lshl_b32 s42, s40, 1')
        e('s_or_b32 s42, s42, s41')
        vx = V.alloc('vx', 4)
        vw = V.alloc('vw', 4)
        self.vtrb = V.alloc('trb')
        self.vq3 = V.alloc('q3')
        vh = self.vh
        e('v_lshrrev_b32 %s, 5, %s' % (vh, vlane))
        e('v_bfe_u32 %s, %s, 3, 1' % (self.vq3, vlane))
        e('v_bfe_u32 %s, %s, 2, 2' % (t[0], vlane))
        e('v_lshlrev_b32 %s, 7, %s' % (t[0], t[0]))
        e('v_bfe_u32 %s, %s, 4, 1' % (t[1], vlane))
        e('v_lshl_add_u32 %s, %s, 5, %s' % (t[0], t[1], t[0]))
        e('v_and_b32 %s, 3, %s' % (t[1], vlane))
        e('v_lshl_add_u32 %s, %s, 3, %s' % (self.vtrb, t[1], t[0]))
        e('v_xor_b32 %s, s41, %s' % (t[1], self.vq3))
        e('v_lshl_add_u32 %s, %s, 6, %s' % (t[1], t[1], self.vtrb))
        e('v_mul_u32_u24 %s, 3072, %s' % (t[2], vh))
        e('v_add_u32 %s, %s, %s' % (t[1], t[1], t[2]))
        e('v_bfe_u32 %s, %s, 4, 1' % (t[2], vlane))
        e('s_lshl_b32 s98, s40, 1')
        e('v_add_u32 %s, s98, %s' % (t[2], t[2]))
        e('v_mul_u32_u24 %s, 6144, %s' % (t[2], t[2]))
        e('v_mul_u32_u24 %s, 3072, %s' % (t[3], self.vq3))
        e('v_and_b32 %s, 7, %s' % (t[7], vlane))
        e('v_lshlrev_b32 %s, 7, %s' % (t[7], t[7]))
        e('v_add3_u32 %s, %s, %s, %s' % (t[2], t[2], t[3], t[7]))
        e('v_add_u32 %s, %d, %s' % (t[2], L_RING, t[2]))
        e('v_bfe_u32 %s, %s, 1, 3' % (t[3], vlane))
        for p in range(4):
            e('s_xor_b32 s98, s42, %d' % p)
            e('s_mul_i32 s99, s98, 6144')
            e('s_add_u32 s99, s99, %d' % L_RING)
            e('v_add_u32 %s, s99, %s' % (vw[p], t[1]))
            e('s_lshl_b32 s98, s98, 1')
            e('v_add_u32 %s, s98, %s' % (t[7], vh))
            e('v_xor_b32 %s, %s, %s' % (t[7], t[7], t[3]))
            e('v_lshl_add_u32 %s, %s, 4, %s' % (vx[p], t[7], t[2]))
        ones = V.alloc('ones', 2, 2)
        self.ones = ones
        e('v_mov_b32 %s, 0x3f803f80' % ones[0])
        e('v_mov_b32 %s, 0x3f803f80' % ones[1])
        X = A.alloc('X', 128, at=0)
        self.X = X
        accK = V.alloc('accK', 16, at=48)
        accV = V.alloc('accV', 16, at=64)
        sm = V.alloc('smalls', 16, at=80)
        WB = V.alloc('WB', 32, at=96)
        self.HV = V.alloc('HV', 64, at=192)
        self.OWN = A.alloc('OWN', 32, at=224)
        for n in range(4):
            e('s_add_u32 s98, s4, %d' % n)
            e('s_cmp_ge_u32 s98, 4')
            e('s_cselect_b32 s98, 0x3f803f80, 0')
            for r in range(16):
                e('v_mov_b32 %s, s98' % self.HV[n * 16 + r])
        for r in range(16):
            e('v_accvgpr_write_b32 %s, %s' % (self.OWN[8 + r], ones[0]))
        self.late_args()
        a0, a1 = V.alloc('a0', 2), V.alloc('a1', 2)
        e('v_and_b32 %s, 31, %s' % (t[0], vlane))
        e('s_lshl_b32 s98, s40, 10')
        e('v_lshl_add_u32 %s, %s, 5, s98' % (a0[0], t[0]))
        e('s_lshl_b32 s98, s41, 4')
        e('v_lshl_add_u32 %s, %s, 3, s98' % (t[1], vh))
        e('v_add_u32 %s, %s, %s' % (a0[1], a0[0], t[1]))
        e('s_lshl_b32 s98, s41, 9')
        e('v_lshl_add_u32 %s, %s, 4, s98' % (a1[0], t[0]))
        e('s_lshl_b32 s98, s40, 3')
        e('v_lshl_add_u32 %s, %s, 2, s98' % (t[1], vh))
        e('v_add_u32 %s, %s, %s' % (a1[1], a1[0], t[1]))
        e('v_sub_u32 %s, 1, %s' % (self.hz, vh))
        e('v_cvt_f32_u32 %s, %s' % (self.hz, self.hz))
        rsa = V.alloc('rsa', 2, at=164)
        e('s_lshl_b32 s98, s3, 7')
        e('v_lshl_add_u32 %s, %s, 2, s98' % (rsa[0], t[0]))
        e('v_lshl_add_u32 %s, %s, 4, s98' % (rsa[1], vh))
        vkg, vvg, vkx, vvx = (V.alloc('vkg', at=160), V.alloc('vvg', at=161), V.alloc('vkx', at=162),
                              V.alloc('vvx', at=163))
        e('s_lshl_b32 s98, s41, 13')
        e('s_lshl_b32 s99, s40, 11')
        e('s_add_u32 s98, s98, s99')
        e('v_add_u32 %s, s98, %s' % (vkg, self.vl16))
        e('v_and_b32 %s, 15, %s' % (t[0], vlane))
        e('v_lshl_add_u32 %s, %s, 4, %s' % (t[0], vh, t[0]))
        self.vidx16 = V.alloc('idx16')
        e('v_lshlrev_b32 %s, 4, %s' % (self.vidx16, t[0]))
        e('v_bfe_u32 %s, %s, 4, 1' % (t[1], vlane))
        e('v_lshl_add_u32 %s, %s, 12, %s' % (t[2], t[1], self.vidx16))
        e('v_add_u32 %s, s98, %s' % (vvg, t[2]))
        e('s_lshr_b32 s98, s98, 1')
        e('v_add_u32 %s, s98, %s' % (vkx, self.vl16))
        e('v_lshl_add_u32 %s, %s, 11, %s' % (t[2], t[1], self.vidx16))
        e('v_add_u32 %s, s98, %s' % (vvx, t[2]))
        e('v_add_u32 %s, %d, %s' % (vvx, L_VX, vvx))
        self.vqx = self.vw2[0]
        e('v_add_u32 %s, %d, %s' % (self.vqx, L_QX, vkx))
        e('v_add_u32 %s, %d, %s' % (vkx, L_KX, vkx))
        e('s_lshl_b32 s43, s4, 3')
        e('s_add_u32 s43, s43, s5')
        e('s_lshl_b32 s44, s43, 14')
        e('s_add_u32 s44, s44, 0x%x' % WS_KV)
        e('s_add_u32 s45, s44, 4096')
        e('s_lshl_b32 s46, s3, 12')
        vt = self.vw2[1]
        e('v_mov_b32 %s, 0' % vt)

        state = {'shift': 0}

        def slot_off(c):
            return (c % 6) * SLOT

        def reads(p_abs):
            c, p = divmod(p_abs, 4)
            off = slot_off(c) - state['shift']
            buf = WB.sub((p_abs % 4) * 8, 8)
            assert 0 <= off and off + 5632 + 512 < 65536, off
            return [
                'ds_read_b128 %s, %s offset:%d' % (X.sub(4 * p_abs, 4), vx[p], off),
                'ds_read_b64_tr_b16 %s, %s offset:%d' % (buf.sub(0, 2), vw[p], off + 1024),
                'ds_read_b64_tr_b16 %s, %s offset:%d' % (buf.sub(2, 2), vw[p], off + 1024 + 512),
                'ds_read_b64_tr_b16 %s, %s offset:%d' % (buf.sub(4, 2), vw[p], off + 2048),
                'ds_read_b64_tr_b16 %s, %s offset:%d' % (buf.sub(6, 2), vw[p], off + 2048 + 512),
            ]

        def shift_ops(c, p):
            want = (slot_off(c) // (2 * SLOT)) * 2 * SLOT
            prev = (slot_off(c - 1) // (2 * SLOT)) * 2 * SLOT if c else 0
            state['shift'] = want
            d = want - prev
            if d == 0:
                return []
            f = 'v_add_u32 %s, %d, %s' if d > 0 else 'v_subrev_u32 %s, %d, %s'
            return [f % (vx[p], abs(d), vx[p]), f % (vw[p], abs(d), vw[p])]

        def bigs(p_abs):
            buf = WB.sub((p_abs % 4) * 8, 8)
            x = X.sub(4 * p_abs, 4)
            c0 = '0' if p_abs == 0 else None
            return ['v_mfma_f32_32x32x16_bf16 %s, %s, %s, %s' % (accK, buf.sub(0, 4), x, c0 or accK),
                    'v_mfma_f32_32x32x16_bf16 %s, %s, %s, %s' % (accV, x, buf.sub(4, 4), c0 or accV)]

        def smalls(p_abs):
            p = p_abs % 4
            buf = WB.sub((p_abs % 4) * 8, 8)
            x = X.sub(4 * p_abs, 4)
            first = p_abs == 0
            M = 'v_mfma_f32_4x4x4_16b_bf16 %s, %s, %s, %s'
            a = []
            b = []
            if p & 1 == 0:
                a += [M % (sm.sub(0, 4), x.sub(0, 2), x.sub(0, 2), '0' if first else sm.sub(0, 4)),
                      M % (sm.sub(4, 4), ones, x.sub(0, 2), '0' if first else sm.sub(4, 4))]
                b += [M % (sm.sub(0, 4), x.sub(2, 2), x.sub(2, 2), sm.sub(0, 4)),
                      M % (sm.sub(4, 4), ones, x.sub(2, 2), sm.sub(4, 4))]
            if p & 2 == 0:
                a += [M % (sm.sub(8, 4), ones, buf.sub(0, 2), '0' if first else sm.sub(8, 4)),
                      M % (sm.sub(12, 4), ones, buf.sub(4, 2), '0' if first else sm.sub(12, 4))]
                b += [M % (sm.sub(8, 4), ones, buf.sub(2, 2), sm.sub(8, 4)),
                      M % (sm.sub(12, 4), ones, buf.sub(6, 2), sm.sub(12, 4))]
            if len(a) == 2:
                return a + ['s_nop 0'] + b
            return a + b

        last_read = [None]

        def barrier_for(c):
            self.bg_until(lambda: len(self.kv_dma[c]) == 6)
            self.pace(False)
            e('s_barrier', wait_vm=self.kv_dma[c], wait_lgkm=[last_read[0]] if last_read[0] else None)
            self.pace(True)
            if self.o.get('chunkstamps'):
                self.stamp('c%d' % c)
            lim = 6 * (c + 1) + WIN
            space = {0: 36, 1: 42, 2: 48, 3: 54, 4: 60}.get(c, 64)
            self.release_dma(min(lim, space))
            if c == 5:
                self.bg.append(lambda: setattr(self, 'tagld', e(
                    'global_load_dword %s, %s, s[36:37] sc1' % (self.vtag, vt))))

        def rd(p_abs):
            c, p = divmod(p_abs, 4)
            out = shift_ops(c, p)
            return out + reads(p_abs)

        barrier_for(0)
        self.stamp('chunk0')
        for s in rd(0) + rd(1):
            last_read[0] = e(s)
        for p_abs in range(28):
            nxt = p_abs + 2
            if nxt % 4 == 0:
                barrier_for(nxt // 4)
            r = rd(nxt)
            big = bigs(p_abs)
            e(big[0])
            h = len(r) - 2
            for s in r[:h]:
                last_read[0] = e(s)
            e(big[1])
            for s in r[h:]:
                last_read[0] = e(s)
            for s in smalls(p_abs):
                e(s)
        for s in rd(30)[:] + rd(31):
            last_read[0] = e(s)
        lr = last_read[0]
        for p_abs in (28, 29, 30):
            for s in smalls(p_abs):
                e(s)
        big_rest = bigs(28) + bigs(29) + bigs(30) + bigs(31)
        e(big_rest[0])
        e('s_mov_b32 s98, 0xaaaaaaaa')
        e('s_mov_b32 s99, 0xaaaaaaaa')
        e('s_mov_b32 vcc_lo, 0xcccccccc')
        e('s_mov_b32 vcc_hi, 0xcccccccc')
        e('v_cndmask_b32 %s, %s, %s, s[98:99]' % (t[2], sm[0], sm[1]))
        e('v_cndmask_b32 %s, %s, %s, s[98:99]' % (t[3], sm[2], sm[3]))
        e('v_cndmask_b32 %s, %s, %s, vcc' % (sm[5], t[2], t[3]))
        adds = [e('ds_write_b64 %s, %s offset:%d' % (a0[1], sm.sub(4, 2), L_ST)),
                e('ds_write_b32 %s, %s offset:%d' % (a1[1], sm[8], L_CS + 1024)),
                e('ds_write_b32 %s, %s offset:%d' % (a1[1], sm[12], L_CS + 2048))]
        e(big_rest[1])
        self.pace(False)
        e('s_barrier', wait_lgkm=adds + [lr])
        self.pace(True)
        self.release_dma(64)
        stb = V.alloc('stb', 16, at=128)
        e('ds_read_b128 %s, %s offset:%d' % (stb.sub(0, 4), a0[0], L_ST))
        e('ds_read_b128 %s, %s offset:%d' % (stb.sub(4, 4), a0[0], L_ST + 16))
        e(big_rest[2])
        e('ds_read_b128 %s, %s offset:%d' % (stb.sub(8, 4), a1[0], L_CS + 1024))
        e('ds_read_b128 %s, %s offset:%d' % (stb.sub(12, 4), a1[0], L_CS + 2048))
        self.csaddr = a1
        st = V.alloc('st', 2, at=156)
        csk, csv = V.alloc('csk', at=158), V.alloc('csv', at=159)
        mB = V.alloc('mB', 4, at=152)
        cK = V.alloc('cK', 4, at=144)
        cV = V.alloc('cV', 4, at=148)
        rs = V.alloc('rs', 2, 2)
        self.mB, self.rs = mB, rs
        rT = sm
        chain = [
            'v_add_f32 %s, %s, %s' % (stb[0], stb[0], stb[2]),
            'v_add_f32 %s, %s, %s' % (stb[1], stb[1], stb[3]),
            'v_add_f32 %s, %s, %s' % (stb[4], stb[4], stb[6]),
            'v_add_f32 %s, %s, %s' % (stb[5], stb[5], stb[7]),
            'v_add_f32 %s, %s, %s' % (st[0], stb[0], stb[4]),
            'v_add_f32 %s, %s, %s' % (st[1], stb[1], stb[5]),
            'v_mul_f32 %s, %s, %s' % (st[0], hexf(-1.0 / 512), st[0]),
            'v_mul_f32 %s, %s, %s' % (st[1], hexf(1.0 / 512), st[1]),
            'v_fma_f32 %s, -%s, %s, %s' % (st[1], st[0], st[0], st[1]),
            'v_max_f32 %s, 0, %s' % (st[1], st[1]),
            'v_add_f32 %s, %s, %s' % (st[1], hexf(1e-5), st[1]),
            'v_rsq_f32 %s, %s' % (rs[0], st[1]),
            'v_add_f32 %s, %s, %s' % (stb[8], stb[8], stb[9]),
            lambda: setattr(self, 'rsw', e('ds_write_b32 %s, %s offset:%d' % (rsa[0], rs[0], L_RS))),
            'v_add_f32 %s, %s, %s' % (stb[10], stb[10], stb[11]),
            'v_add_f32 %s, %s, %s' % (stb[12], stb[12], stb[13]),
            'v_add_f32 %s, %s, %s' % (stb[14], stb[14], stb[15]),
            'v_add_f32 %s, %s, %s' % (csk, stb[8], stb[10]),
            'v_add_f32 %s, %s, %s' % (csv, stb[12], stb[14]),
        ]
        aug = self.aug_ops(mB, st[0], t[6], False) + \
            ['v_mul_f32 %s, %s, %s' % (csk, self.hz, csk), 'v_mul_f32 %s, %s, %s' % (csv, self.hz, csv)] + \
            self.aug_ops(cK, csk, t[6], True) + self.aug_ops(cV, csv, t[7], True)

        def rdT(g):
            return lambda: e('ds_read_b128 %s, %s offset:%d' % (rT.sub(4 * g, 4), rsa[1], L_RS + 32 * g),
                             wait_lgkm=[self.rsw] if g == 0 else None)
        self.weave(e, big_rest[3:], chain + aug[:7] + [rdT(0), rdT(1)] + aug[7:12] + [rdT(2), rdT(3)] + aug[12:])
        e('v_mfma_f32_32x32x16_bf16 %s, %s, %s, %s' % (accK, cK, mB, accK))
        e('v_mfma_f32_32x32x16_bf16 %s, %s, %s, %s' % (accV, mB, cV, accV))
        self.pace(False)
        PK = WB
        st_tok = []
        for hd in range(2):
            for r in range(8 * hd, 8 * hd + 8):
                e('v_mul_f32 %s, %s, %s' % (accK[r], rs[0], accK[r]))
            for r in range(4 * hd, 4 * hd + 4):
                e('v_cvt_pk_bf16_f32 %s, %s, %s' % (PK[r], accK[2 * r], accK[2 * r + 1]))
            st_tok.append(e('buffer_store_dwordx4 %s, %s, s[32:35], s%d offen sc1' % (PK.sub(4 * hd, 4), vkg, 44 + hd)))
        for m in range(2):
            for r in range(8 * m, 8 * m + 8, 2):
                e('v_pk_mul_f32 %s, %s, %s' % (accV.sub(r, 2), accV.sub(r, 2), rT.sub(r, 2)))
            for r in range(4 * m, 4 * m + 4):
                e('v_cvt_pk_bf16_f32 %s, %s, %s' % (PK[8 + r], accV[2 * r], accV[2 * r + 1]))
            st_tok.append(e('buffer_store_dwordx4 %s, %s, s[32:35], s44 offen offset:%d sc1' % (
                PK.sub(8 + 4 * m, 4), vvg, 1024 + 512 * m)))
        self.kv_st = st_tok
        self.stamp('kvpub')
        self.xw = [e('ds_write_b128 %s, %s' % (vkx, PK.sub(0, 4))),
                   e('ds_write_b128 %s, %s offset:2048' % (vkx, PK.sub(4, 4))),
                   e('ds_write_b128 %s, %s' % (vvx, PK.sub(8, 4))),
                   e('ds_write_b128 %s, %s offset:512' % (vvx, PK.sub(12, 4)))]
        V.release('accK', 'accV', 'st', 'csk', 'csv', 'cK', 'cV', 'stb', 'vkg', 'vvg', 'vkx', 'vvx', 'rsa',
                  'xA', 'xB', 'wB', 'vx', 'a0')
        self.vw, self.WB, self.sm, self.vt = vw, WB, sm, vt

    def aug_ops(self, dst, val, tmp, dup):
        ops = ['v_cvt_pk_bf16_f32 %s, %s, %s' % (dst[0], val, val),
               'v_and_b32 %s, 0xffff0000, %s' % (tmp, dst[0]),
               'v_sub_f32 %s, %s, %s' % (tmp, val, tmp)]
        if dup:
            ops += ['v_cvt_pk_bf16_f32 %s, %s, %s' % (dst[1], tmp, tmp)]
        else:
            ops += ['v_cvt_pk_bf16_f32 %s, %s, %s' % (dst[0], val, tmp),
                    'v_mov_b32 %s, %s' % (dst[1], dst[0])]
        ops += ['v_mov_b32 %s, 0' % dst[2], 'v_mov_b32 %s, 0' % dst[3]]
        return ops

    def img_dma(self, vq, srd, stride, lds_base, groups, sbase):
        e = self.e
        out = []
        toks = []
        for g in groups:
            for k in range(4):
                def f(g=g, k=k):
                    if k == 0:
                        e('s_add_u32 m0, s46, %d' % (lds_base + g * 16384))
                        e('s_add_u32 s87, %s, %d' % (sbase, g * 128 * stride))
                    toks.append(e('buffer_load_dwordx4 %s, %s, s87 offen offset:%d lds' % (vq[k], srd, k * 1024)))
                out.append(f)
        return out, toks

    def img_voff(self, name, stride):
        e, V = self.e, self.V
        vq = V.alloc(name, 4)
        ops = ['v_lshrrev_b32 %s, 3, %s' % (vq[0], self.vlane),
               's_lshl_b32 s98, s3, 5',
               'v_add_u32 %s, s98, %s' % (vq[0], vq[0]),
               'v_mul_u32_u24 %s, %d, %s' % (vq[0], stride, vq[0]),
               'v_add_u32 %s, %s, %s' % (vq[0], vq[0], self.vsw)]
        for k in range(1, 4):
            ops.append('v_add_u32 %s, %d, %s' % (vq[k], k * (8 * stride - 1024), vq[0]))
        return vq, ops

    def p1_q(self):
        e, V, A = self.e, self.V, self.A
        t, vlane, vh = self.pt, self.vlane, self.vh
        vw, WB, sm, X, ones = self.vw, self.WB, self.sm, self.X, self.ones
        self.pace(True)
        e('v_xor_b32 %s, s41, %s' % (t[1], self.vq3))
        e('v_lshl_add_u32 %s, %s, 6, %s' % (t[1], t[1], self.vtrb))
        e('v_lshl_add_u32 %s, %s, 10, %s' % (t[1], vh, t[1]))
        for p in range(4):
            e('s_xor_b32 s98, s42, %d' % p)
            e('s_lshl_b32 s98, s98, 11')
            e('s_add_u32 s98, s98, %d' % L_WQ)
            e('v_add_u32 %s, s98, %s' % (vw[p], t[1]))
        vwo, ops = self.img_voff('vwo', 1024)
        for s in ops:
            e(s)
        self.vwo = vwo
        e('s_mul_i32 s47, s43, 2341')
        e('s_lshr_b32 s47, s47, 16')
        e('s_mul_i32 s98, s47, 28')
        e('s_sub_u32 s48, s43, s98')
        e('s_cmp_lt_u32 s43, 224')
        e('s_cselect_b32 s49, 0, 0x%x' % OOB)
        vs = V.alloc('vside', 4, at=128)
        e('v_lshrrev_b32 %s, 3, %s' % (t[0], vlane))
        e('s_lshl_b32 s98, s3, 4')
        e('v_add_u32 %s, s98, %s' % (t[0], t[0]))
        e('v_mul_u32_u24 %s, 3584, %s' % (vs[0], t[0]))
        e('v_add_u32 %s, %s, %s' % (vs[0], vs[0], self.vsw))
        e('v_add_u32 %s, %d, %s' % (vs[1], 8 * 3584 - 1024, vs[0]))
        e('v_lshl_add_u32 %s, %s, 10, %s' % (vs[2], t[0], self.vsw))
        e('v_add_u32 %s, %d, %s' % (vs[3], 8192 - 1024, vs[2]))
        e('s_mul_i32 s98, s47, %d' % (64 * 3584))
        e('s_lshl_b32 s99, s48, 7')
        e('s_add_u32 s98, s98, s99')
        e('s_add_u32 s90, s98, s49')
        e('s_lshl_b32 s99, s48, 16')
        e('s_lshl_b32 s98, s47, 7')
        e('s_add_u32 s98, s98, s99')
        e('s_add_u32 s91, s98, s49')
        e('s_lshl_b32 s50, s5, 7')
        side = []
        self.side_dma = side

        def sd0():
            e('s_add_u32 m0, s46, %d' % (L_SIDE + 2048))
            e('s_nop 0')
            side.append(e('buffer_load_dwordx4 %s, s[24:27], s91 offen lds' % vs[2]))

        def sd2():
            e('s_add_u32 m0, s46, %d' % L_SIDE)
            e('s_nop 0')
            side.append(e('buffer_load_dwordx4 %s, s[20:23], s90 offen lds' % vs[0]))
        side_items = [sd0, lambda: side.append(e('buffer_load_dwordx4 %s, s[24:27], s91 offen offset:1024 lds' % vs[3])),
                      sd2, lambda: side.append(e('buffer_load_dwordx4 %s, s[20:23], s90 offen offset:1024 lds' % vs[1]))]
        wo_f, self.wo_tok = self.img_dma(vwo, 's[16:19]', 1024, L_WO, [0, 1, 2], 's50')
        wo_f3, wo_tok3 = self.img_dma(vwo, 's[16:19]', 1024, L_WO, [3], 's50')
        self.wo_tok3 = wo_tok3
        accQ = V.alloc('accQ', 16, at=48)
        QB = V.alloc('QB', 16, at=64)

        def reads(p_abs):
            c, p = divmod(p_abs, 4)
            buf = QB.sub((p_abs % 4) * 4, 4)
            return ['ds_read_b64_tr_b16 %s, %s offset:%d' % (buf.sub(0, 2), vw[p], c * 8192),
                    'ds_read_b64_tr_b16 %s, %s offset:%d' % (buf.sub(2, 2), vw[p], c * 8192 + 512)]

        def big(p_abs):
            buf = QB.sub((p_abs % 4) * 4, 4)
            return 'v_mfma_f32_32x32x16_bf16 %s, %s, %s, %s' % (accQ, buf, X.sub(4 * p_abs, 4),
                                                                '0' if p_abs == 0 else accQ)

        def smalls(p_abs):
            if p_abs & 2:
                return []
            buf = QB.sub((p_abs % 4) * 4, 4)
            M = 'v_mfma_f32_4x4x4_16b_bf16 %s, %s, %s, %s'
            return [M % (sm.sub(0, 4), ones, buf.sub(0, 2), '0' if p_abs == 0 else sm.sub(0, 4)),
                    M % (sm.sub(4, 4), ones, buf.sub(2, 2), '0' if p_abs == 0 else sm.sub(4, 4))]

        self.bg_flush()
        self.pace(False)
        e('s_barrier', wait_vm=self.wq_dma)
        self.stamp('wq')
        self.bg.extend(side_items + wo_f)
        self.pace(True)
        for s in reads(0) + reads(1) + reads(2):
            e(s)
        Cl = V.alloc('Cl', 16, at=160)
        Cu = V.alloc('Cu', 16, at=176)
        self.Cl, self.Cu = Cl, Cu
        BIG = 2.0 ** 100
        fill = ['v_and_b32 %s, 31, %s' % (t[0], vlane),
                'v_lshlrev_b32 %s, 2, %s' % (t[1], vh),
                'v_sub_u32 %s, %s, %s' % (t[0], t[0], t[1]),
                'v_cvt_f32_i32 %s, %s' % (t[0], t[0]),
                'v_mov_b32 %s, %s' % (t[1], hexf(BIG)),
                'v_mov_b32 %s, %s' % (t[2], hexf(-BIG))]
        for r in range(16):
            cr = (r & 3) + 8 * (r >> 2)
            fill += ['v_fmaak_f32 %s, %s, %s, %s' % (Cl[r], t[0], t[1], hexf(-cr * BIG)),
                     'v_fmaak_f32 %s, %s, %s, %s' % (Cu[r], t[0], t[2], hexf((cr - 1) * BIG)),
                     'v_min_f32 %s, 0, %s' % (Cl[r], Cl[r]),
                     'v_min_f32 %s, 0, %s' % (Cu[r], Cu[r])]

        def tag_and_flag():
            vt = self.vt
            self.pace(False)
            e('v_cmp_eq_u32 vcc, 0, %s' % self.vtag)
            e('s_lshl_b32 s98, s43, 2')
            e('s_cbranch_vccnz L_tagspin')
            e('L_tagok:')
            self.tail.append(
                'L_tagspin:\n    global_load_dword %s, %s, s[36:37] sc1\n    s_add_u32 s96, s96, 1\n'
                '    s_cmp_gt_u32 s96, s97\n    s_waitcnt vmcnt(0)\n    s_cbranch_scc1 L_tagok\n'
                '    v_cmp_eq_u32 vcc, 0, %s\n    s_nop 1\n    s_cbranch_vccnz L_tagspin\n    s_branch L_tagok\n'
                % (self.vtag, vt, self.vtag))
            e('s_add_u32 s98, s98, s3')
            e('s_lshl_b32 s98, s98, 7')
            e('s_add_u32 s98, s98, 0x%x' % WS_KVF)
            e('buffer_store_dword %s, %s, s[32:35], s98 offen sc1' % (self.vtag, self.vflag), wait_vm=self.kv_st)
            self.stamp('kvflag')
            e('v_readfirstlane_b32 s6, %s' % self.vtag)
            self.pace(True)

        def xccpub():
            vt = self.vt
            e('s_getreg_b32 s51, hwreg(HW_REG_XCC_ID, 0, 4)')
            e('s_lshr_b32 s98, s43, 4')
            e('s_lshl_b32 s52, s98, 7')
            e('s_add_u32 s52, s52, 0x%x' % WS_XCC)
            e('s_and_b32 s98, s43, 15')
            e('s_lshl_b32 s98, s98, 2')
            e('s_add_u32 s98, s98, s52')
            e('s_cmp_eq_u32 s3, 0')
            e('s_cselect_b32 s98, s98, 0x%x' % OOB)
            e('v_xor_b32 %s, s51, %s' % (vt, self.vtag))
            e('buffer_store_dword %s, %s, s[32:35], s98 offen sc1' % (vt, self.vflag))

        nfill = len(fill)
        pos = 0
        FLAG_AT = self.o.get('kvflag_at', 10)
        for p_abs in range(28):
            e(big(p_abs))
            for s in reads(p_abs + 3):
                e(s)
            upto = min(nfill, (nfill * (p_abs + 1) + 25) // 26)
            while pos < upto:
                e(fill[pos])
                pos += 1
            if p_abs == FLAG_AT:
                tag_and_flag()
            if p_abs == FLAG_AT + 2:
                xccpub()
            for s in smalls(p_abs):
                e(s)
        for s in smalls(28):
            e(s)
        lr = None
        for s in smalls(29):
            e(s)
        for s in reads(31):
            lr = e(s)
        e(big(28))
        e('v_add_f32 %s, %s, %s' % (t[3], sm[0], sm[4]))
        ad = e('ds_write_b32 %s, %s offset:%d' % (self.csaddr[1], t[3], L_CS))
        e(big(29))
        self.pace(False)
        e('s_barrier', wait_lgkm=[ad, lr])
        self.bg.extend(wo_f3)
        self.pace(True)
        cq4 = sm.sub(8, 4)
        cQ = V.alloc('cQ', 4, at=144)
        e('ds_read_b128 %s, %s offset:%d' % (cq4, self.csaddr[0], L_CS))
        e(big(30))
        vr = V.alloc('vr', 3, at=132)
        e('v_add_u32 %s, s101, %s' % (vr[0], self.vl16))
        e('v_add_u32 %s, %d, %s' % (vr[1], L_KX, vr[0]))
        e('v_add_u32 %s, s101, %s' % (vr[2], self.vidx16))
        e('v_add_u32 %s, %d, %s' % (vr[2], L_VX, vr[2]))
        e('v_mul_f32 %s, %s, %s' % (self.rs[0], hexf(0.25 * LOG2E), self.rs[0]))
        e(big(31))
        e('v_add_f32 %s, %s, %s' % (cq4[0], cq4[0], cq4[1]))
        e('v_add_f32 %s, %s, %s' % (cq4[2], cq4[2], cq4[3]))
        e('v_add_f32 %s, %s, %s' % (cq4[0], cq4[0], cq4[2]))
        e('v_mul_f32 %s, %s, %s' % (cq4[0], self.hz, cq4[0]))
        for s in self.aug_ops(cQ, cq4[0], t[3], True):
            e(s)
        e('v_mfma_f32_32x32x16_bf16 %s, %s, %s, %s' % (accQ, cQ, self.mB, accQ))
        OWN = self.OWN
        e('ds_read_b128 %s, %s offset:1024' % (OWN.sub(4, 4), vr[1]))
        e('ds_read_b128 %s, %s' % (OWN.sub(0, 4), vr[1]))
        self.pace(False)
        e('s_mov_b64 exec, s[38:39]')
        e('ds_read_b128 %s, %s offset:1024' % (OWN.sub(16, 4), vr[2]))
        e('ds_read_b128 %s, %s offset:1536' % (OWN.sub(20, 4), vr[2]))
        e('ds_read_b128 %s, %s' % (OWN.sub(8, 4), vr[2]))
        e('ds_read_b128 %s, %s offset:512' % (OWN.sub(12, 4), vr[2]))
        e('s_mov_b64 exec, -1')
        self.pace(True)
        w = []
        for hd in range(2):
            for r in range(8 * hd, 8 * hd + 8, 2):
                e('v_pk_mul_f32 %s, %s, %s op_sel_hi:[1,0]' % (accQ.sub(r, 2), accQ.sub(r, 2), self.rs))
            for r in range(4 * hd, 4 * hd + 4):
                e('v_cvt_pk_bf16_f32 %s, %s, %s' % (QB[r], accQ[2 * r], accQ[2 * r + 1]))
            w.append(e('ds_write_b128 %s, %s offset:%d' % (self.vqx, QB.sub(4 * hd, 4), 2048 * hd)))
        self.pace(False)
        e('s_barrier', wait_lgkm=w)
        self.pace(True)
        e('ds_read_b128 %s, %s offset:%d' % (OWN.sub(28, 4), vr[0], L_QX + 1024))
        e('ds_read_b128 %s, %s offset:%d' % (OWN.sub(24, 4), vr[0], L_QX))
        self.stamp('qdone')
        assert len(side) == 4, 'side DMAs must be issued before their address registers are released'
        V.release('accQ', 'QB', 'cQ', 'vr', 'mB', 'rs', 'a1', 'vw', 'wA', 'wQ', 'WB', 'dummy', 'smalls', 'vside')
        A.release('X')

    def kfrag(self, s):
        return self.HK.sub(4 * s, 4) if s < 8 else self.OWN.sub(4 * (s - 8), 4)

    def vfrag(self, s, m):
        return self.HV.sub(8 * s + 4 * m, 4) if s < 8 else self.OWN.sub(8 + 8 * (s - 8) + 4 * m, 4)

    def qfrag(self, qb):
        return self.OWN.sub(24 + 4 * qb, 4)

    def cmask(self, s, qb):
        if s == qb:
            return str(self.Cu)
        if s == qb + 8:
            return str(self.Cl)
        return '0'

    def attn_run(self, e, blocks, S, P, O, first, fill_at, cfun=None, last_pv=True):
        cfun = cfun or self.cmask

        def smf(n):
            s, qb = blocks[n]
            if s < 8 and e is self.e:
                self.bg_until(lambda: (s, 2) in self.halo_done or (s, 0) in self.halo_done)
            return 'v_mfma_f32_32x32x16_bf16 %s, %s, %s, %s' % (S[n % 2], self.kfrag(s), self.qfrag(qb), cfun(s, qb))

        def pv(n, m):
            s, qb = blocks[n]
            if s < 8 and e is self.e:
                self.bg_until(lambda: (s, 1) in self.halo_done)
            c = O[qb]
            if qb in first:
                first.discard(qb)
                c = '0'
            return 'v_mfma_f32_32x32x16_bf16 %s, %s, %s, %s' % (O[qb], self.vfrag(s, m), P.sub(4 * m, 4), c)

        e(smf(0))
        pending = None
        for n in range(len(blocks)):
            s_ = S[n % 2]
            fl = list(fill_at.get(n, []))
            ex = ['v_exp_f32 %s, %s' % (s_[r], s_[r]) for r in range(16)]
            cv = ['v_cvt_pk_bf16_f32 %s, %s, %s' % (P[r], s_[2 * r], s_[2 * r + 1]) for r in range(8)]
            if n == 0 and len(blocks) > 1:
                e(smf(1))
                for f in fl:
                    f() if callable(f) else e(f)
                fl = []
            e(ex[0])
            e(ex[1])
            if pending:
                e(pending)
                pending = None
            for s in ex[2:5]:
                e(s)
            if n > 0 and n + 1 < len(blocks):
                e(smf(n + 1))
            for s in ex[5:8]:
                e(s)
            for s in cv[0:4]:
                e(s)
            e(ex[8])
            e(ex[9])
            e(pv(n, 0))
            for f in fl:
                f() if callable(f) else e(f)
            for s in ex[10:16]:
                e(s)
            for s in cv[4:8]:
                e(s)
            pending = pv(n, 1)
        return pending

    def attention(self):
        e, V, A = self.e, self.V, self.A
        t, vlane, vh = self.pt, self.vlane, self.vh
        ones = self.ones
        self.HK = V.alloc('HK', 32, at=128)
        S = [V.alloc('S0', 16, at=48), V.alloc('S1', 16, at=64)]
        P = V.alloc('P', 8, at=112)
        O = [V.alloc('O0', 16, at=80), V.alloc('O1', 16, at=96)]
        self.S, self.P, self.O = S, P, O
        first = {0, 1}
        own = [(9, 1), (8, 1), (8, 0)]
        vhk, vhv, vpf = V.alloc('vhk'), V.alloc('vhv'), V.alloc('vpf')
        vsr = V.alloc('vsr', 2)
        prep = ['v_add_u32 %s, s46, %s' % (vhk, self.vl16),
                'v_add_u32 %s, s46, %s' % (vhv, self.vidx16),
                'v_bfe_u32 %s, %s, 1, 2' % (t[0], vlane),
                'v_lshlrev_b32 %s, 12, %s' % (t[2], t[0]),
                'v_and_b32 %s, 1, %s' % (t[1], vlane),
                'v_lshl_add_u32 %s, %s, 7, %s' % (vpf, t[1], t[2]),
                'v_add_u32 %s, s4, %s' % (t[0], t[0]),
                'v_cmp_le_u32 s[54:55], 4, %s' % t[0],
                's_sub_u32 s98, s43, 32',
                's_lshl_b32 s98, s98, 9',
                's_lshl_b32 s99, s41, 8',
                's_add_u32 s98, s98, s99',
                's_add_u32 s53, s98, 0x%x' % WS_KVF]
        for n in range(4):
            prep += ['s_add_u32 s99, s4, %d' % n,
                     's_add_u32 s98, s44, %d' % ((n - 4) * 131072 & 0xffffffff),
                     's_cmp_ge_u32 s99, 4',
                     's_cselect_b32 s%d, s98, 0x%x' % (76 + n, OOB)]
        prep2 = ['v_lshl_add_u32 %s, %s, 9, %s' % (t[0], vh, self.vtrb),
                 'v_add_u32 %s, s46, %s' % (t[0], t[0]),
                 'v_add_u32 %s, %d, %s' % (t[0], L_SIDE, t[0]),
                 'v_lshl_add_u32 %s, %s, 6, %s' % (vsr[0], self.vq3, t[0]),
                 'v_xor_b32 %s, 64, %s' % (vsr[1], vsr[0]),
                 's_mul_i32 s98, s47, %d' % (112 * 2048),
                 's_lshl_b32 s99, s48, 13',
                 's_add_u32 s98, s98, s99',
                 's_add_u32 s98, s98, s101',
                 's_add_u32 s98, s98, s49',
                 's_add_u32 s91, s98, 0x%x' % WS_W2P,
                 's_lshl_b32 s98, s47, 9',
                 's_lshl_b32 s99, s48, 4',
                 's_add_u32 s98, s98, s99',
                 's_lshl_b32 s99, s3, 2',
                 's_add_u32 s98, s98, s99',
                 's_add_u32 s98, s98, s49',
                 's_add_u32 s80, s98, 0x%x' % WS_W2F,
                 's_lshl_b32 s99, s48, 12',
                 's_lshl_b32 s98, s47, 3',
                 's_add_u32 s98, s98, s99',
                 's_add_u32 s98, s98, s49',
                 's_add_u32 s98, s98, 0x%x' % WS_CSP,
                 's_cmp_eq_u32 s3, 0',
                 's_cselect_b32 s90, s98, 0x%x' % OOB]
        pend = self.attn_run(e, own, S, P, O, first, {0: prep, 2: prep2})
        sb, sm = S[0], S[1]
        self.bg_flush()
        self.pace(False)
        e.wait(vm=self.side_dma)
        for pc in (1, 0):
            for nt in range(2):
                for u in range(2):
                    e('ds_read_b64_tr_b16 %s, %s offset:%d' % (sb.sub(pc * 8 + nt * 4 + 2 * u, 2), vsr[nt],
                                                                pc * 2048 + u * 1024))
        e(pend)
        self.w2p_st = [e('buffer_store_dwordx4 %s, %s, s[32:35], s91 offen sc1' % (sb.sub(8, 4), self.vl16)),
                       e('buffer_store_dwordx4 %s, %s, s[32:35], s91 offen offset:1024 sc1' % (sb.sub(12, 4), self.vl16))]
        self.poll_issue(vpf, 's53', t[6])
        M = 'v_mfma_f32_4x4x4_16b_bf16 %s, %s, %s, %s'
        e(M % (sm.sub(0, 4), ones, sb.sub(0, 2), '0'))
        e(M % (sm.sub(4, 4), ones, sb.sub(4, 2), '0'))
        e('v_and_b32 %s, 31, %s' % (t[0], vlane))
        e(M % (sm.sub(0, 4), ones, sb.sub(2, 2), sm.sub(0, 4)))
        e(M % (sm.sub(4, 4), ones, sb.sub(6, 2), sm.sub(4, 4)))
        e('s_lshl_b32 s98, s3, 3')
        e('v_lshl_add_u32 %s, %s, 5, s98' % (t[0], t[0]))
        e('v_lshl_add_u32 %s, %s, 2, %s' % (t[0], vh, t[0]))
        cw = [e('ds_write_b32 %s, %s offset:%d' % (t[0], sm[0], L_CSW1)),
              e('ds_write_b32 %s, %s offset:%d' % (t[0], sm[4], L_CSW1 + 1024))]
        V.release('vsr', 'ones', 'resv_vw1')
        vw1, ops = self.img_voff('vw1', 3584)
        for s in ops:
            e(s)
        self.vw1 = vw1
        e('v_lshlrev_b32 %s, 5, %s' % (t[0], vlane))
        e('s_barrier', wait_lgkm=cw)
        e('ds_read_b128 %s, %s offset:%d' % (sb.sub(0, 4), t[0], L_CSW1))
        e('ds_read_b128 %s, %s offset:%d' % (sb.sub(4, 4), t[0], L_CSW1 + 16))
        e('s_and_b32 s47, s43, 15')
        e('s_min_u32 s48, s47, 13')
        e('s_lshl_b32 s49, s48, 8')
        e('v_lshlrev_b32 %s, 6, %s' % (t[1], vlane))
        e('v_pk_add_f32 %s, %s, %s' % (sb.sub(0, 2), sb.sub(0, 2), sb.sub(2, 2)))
        e('v_pk_add_f32 %s, %s, %s' % (sb.sub(4, 2), sb.sub(4, 2), sb.sub(6, 2)))
        e('v_pk_add_f32 %s, %s, %s' % (sb.sub(0, 2), sb.sub(0, 2), sb.sub(4, 2)))
        e('v_add_f32 %s, %s, %s' % (t[2], sb[0], sb[1]))
        e('v_mov_b32 %s, %s' % (t[3], self.vtag))
        cspub = lambda: e('buffer_store_dwordx2 %s, %s, s[32:35], s90 offen sc1' % (t.sub(2, 2), t[1]))
        self.stamp('halowait')
        e('v_cmp_ne_u32 vcc, s6, %s' % t[6])
        e('s_and_b64 vcc, vcc, s[54:55]')
        e('s_cbranch_vccz L_halook')
        self.poll(vpf, 's53', t.sub(6, 2), mask='s[54:55]')
        e('L_halook:')
        self.stamp('haloflag')
        items = []
        self.halo_done = set()
        for s in range(7, -1, -1):
            items.append(lambda s=s: e('buffer_load_dwordx4 %s, %s, s[32:35], s%d offen offset:%d sc1' % (
                self.kfrag(s), vhk, 76 + (s >> 1), (s & 1) * 2048)))
            for m in range(2):
                def f(s=s, m=m):
                    e('s_mov_b64 exec, s[38:39]')
                    e('buffer_load_dwordx4 %s, %s, s[32:35], s%d offen offset:%d sc1' % (
                        self.vfrag(s, m), vhv, 76 + (s >> 1), (s & 1) * 2048 + 1024 + 512 * m))
                    e('s_mov_b64 exec, -1')
                    self.halo_done.add((s, m))
                items.append(f)
        w1a_f, self.w1a_tok = self.img_dma(vw1, 's[20:23]', 3584, L_W1A, [0, 1, 2, 3], 's49')
        xr = V.alloc('xr', 8, at=120)
        self.xr = xr
        vpt = V.alloc('vpt', 4)

        def w2flag():
            e('buffer_store_dword %s, %s, s[32:35], s80 offen sc1' % (self.vtag, self.vflag), wait_vm=self.w2p_st)

        nb = self.o.get('halo_burst', 7)
        self.bg.extend(items)
        self.bg_flush(nb)
        ops = [
            'v_and_b32 %s, 31, %s' % (t[0], vlane),
            's_lshl_b32 s98, s4, 1',
            's_add_u32 s98, s98, s41',
            's_lshl_b32 s98, s98, 15',
            's_lshl_b32 s99, s40, 6',
            's_add_u32 s98, s98, s99',
            's_add_u32 s98, s98, s50',
            'v_lshl_add_u32 %s, %s, 10, s98' % (t[0], t[0]),
            'v_lshl_add_u32 %s, %s, 4, %s' % (self.vout, vh, t[0]),
            's_mul_i32 s98, s4, %d' % (2 * H1_GT),
            's_add_u32 s98, s98, 0x%x' % WS_H1,
            's_lshl_b32 s99, s5, 2',
            's_add_u32 s99, s99, s3',
            's_lshl_b32 s99, s99, 10',
            's_add_u32 s53, s98, s99',
            's_mul_i32 s99, s41, %d' % H1_GT,
            's_add_u32 s98, s98, s99',
            's_lshl_b32 s99, s40, 14',
            's_add_u32 s54, s98, s99',
            's_lshl_b32 s98, s4, 1',
            's_add_u32 s98, s98, s41',
            's_lshl_b32 s99, s5, 1',
            's_add_u32 s99, s99, s40',
            's_lshl_b32 s55, s98, 4',
            's_add_u32 s55, s55, s99',
            's_lshl_b32 s55, s55, 11',
            's_lshl_b32 s45, s98, 12',
            's_lshl_b32 s99, s5, 9',
            's_add_u32 s45, s45, s99',
            's_add_u32 s45, s45, 0x%x' % WS_ST2,
            'v_and_b32 %s, 7, %s' % (t[0], vlane),
            'v_lshlrev_b32 %s, 7, %s' % (t[0], t[0]),
            'v_mul_u32_u24 %s, %d, %s' % (t[4], H1_GT, self.vq3),
            'v_add3_u32 %s, %s, %s, s53' % (t[4], t[0], t[4]),
            'v_and_b32 %s, 0x180, %s' % (t[5], t[0]),
            'v_add_u32 %s, s45, %s' % (t[5], t[5]),
            'v_cmp_gt_u32 vcc, 16, %s' % vlane,
            'v_and_b32 %s, 15, %s' % (t[0], vlane),
            'v_lshlrev_b32 %s, 7, %s' % (vpt[1], t[0]),
            'v_cndmask_b32 %s, %s, %s, vcc' % (vpt[0], t[5], t[4]),
            'v_lshlrev_b32 %s, 2, %s' % (t[6], t[0]),
            'v_and_b32 %s, 31, %s' % (t[0], vlane),
            'v_lshlrev_b32 %s, 6, %s' % (t[0], t[0]),
            'v_lshl_add_u32 %s, %s, 5, %s' % (vpt[3], vh, t[0]),
            's_lshl_b32 s81, s48, 13',
            's_add_u32 s81, s81, s101',
            's_add_u32 s81, s81, 0x%x' % WS_CSP,
        ]
        self.pace(True)
        for x in ops:
            e(x)
        self.vcs = vpt[3]

        def pre0():
            e('s_mov_b64 exec, 0xfffff')
            e('buffer_load_dword %s, %s, s[32:35], 0 offen sc1' % (vpt[2], vpt[0]))
            e('s_mov_b64 exec, -1')

        def pre1():
            e('s_mov_b64 exec, 0xffff')
            e('buffer_load_dword %s, %s, s[28:31], s55 offen sc1' % (vpt[0], vpt[1]))
            e('s_mov_b64 exec, -1')

        def xres(k):
            def f():
                e('buffer_load_dwordx4 %s, %s, s[8:11], 0 offen offset:%d' % (xr.sub(4 * k, 4), self.vout, 32 * k))
                self.extra_gap = 192
            return f
        misc = [w2flag, cspub]
        if not self.o.get('force_sc1'):
            misc += [pre0, pre1]
        misc += [lambda: setattr(self, 'xccld', e('buffer_load_dword %s, %s, s[32:35], s52 offen sc1' % (t[7], t[6])))]
        self.bg.extend(misc + [xres(0), xres(1)] + w1a_f)

        def xcccheck():
            self.pace(False)
            assert self.xccld
            e('v_xor_b32 %s, s6, %s' % (t[7], t[7]))
            e('v_cmp_le_u32 vcc, 16, %s' % t[7])
            e('s_cbranch_vccnz L_xccspin')
            e('L_xccok:')
            e('v_cmp_ne_u32 vcc, s51, %s' % t[7])
            e('s_cmp_eq_u64 vcc, 0')
            e('s_cselect_b32 s7, 1, 0')
            if self.o.get('force_slow'):
                e('s_mov_b32 s7, 0')
            self.tail.append(
                'L_xccspin:\n    buffer_load_dword %s, %s, s[32:35], s52 offen sc1\n    s_add_u32 s96, s96, 1\n'
                '    s_cmp_gt_u32 s96, s97\n    s_waitcnt vmcnt(0)\n    v_xor_b32 %s, s6, %s\n'
                '    s_cbranch_scc1 L_xccok\n    v_cmp_le_u32 vcc, 16, %s\n    s_nop 1\n'
                '    s_cbranch_vccnz L_xccspin\n    s_branch L_xccok\n' % (t[7], t[6], t[7], t[7], t[7]))
            self.pace(True)

        blocks = []
        for s in range(7, 0, -1):
            blocks += [(s, 1), (s, 0)]
        blocks += [(0, 0)]
        vinf = self.vinf()
        pend = self.attn_run(e, blocks, S, P, O, first, {13: [xcccheck]})
        self.pace(False)
        e('s_mov_b32 s98, %s' % hexf(2.0 ** -40))
        e('s_mov_b32 s99, %s' % hexf(2.0 ** 40))
        e(pend)
        self.stamp('attn')
        for qb in (1, 0):
            o = O[qb]
            e('v_max3_f32 %s, abs(%s), abs(%s), abs(%s)' % (t[0], o[0], o[1], o[2]))
            e('v_max3_f32 %s, abs(%s), abs(%s), %s' % (t[0], o[3], o[4], t[0]))
            e('v_max3_f32 %s, abs(%s), abs(%s), %s' % (t[0], o[5], o[6], t[0]))
            e('v_max3_f32 %s, abs(%s), %s, %s' % (t[0], o[7], t[0], t[0]))
            e('v_cmp_nle_f32 vcc, s98, %s' % o[8])
            e('v_cmp_nge_f32 s[90:91], s99, %s' % o[8])
            e('v_cmp_nlt_f32 s[92:93], %s, %s' % (t[0], vinf))
            e('s_or_b64 vcc, vcc, s[90:91]')
            e('s_or_b64 vcc, vcc, s[92:93]')
            if self.o.get('force_fallback'):
                e('s_mov_b64 vcc, -1')
            e('s_cbranch_vccnz L_fallback')
        e('L_attn_ok:')
        rc = t.sub(0, 2)
        for qb in (1, 0):
            o = O[qb]
            e('v_rcp_f32 %s, %s' % (rc[0], o[8]))
            for r in range(0, 8, 2):
                e('v_pk_mul_f32 %s, %s, %s op_sel_hi:[1,0]' % (o.sub(r, 2), o.sub(r, 2), rc))
            for r in range(4):
                e('v_cvt_pk_bf16_f32 %s, %s, %s' % (P[4 * qb + r], o[2 * r], o[2 * r + 1]))
        e('s_add_u32 s99, s53, %d' % H1_GT)
        self.o_st = self.mode_stores(['buffer_store_dwordx4 %s, %s, s[32:35], s53 offen' % (P.sub(0, 4), self.vl16),
                                      'buffer_store_dwordx4 %s, %s, s[32:35], s99 offen' % (P.sub(4, 4), self.vl16)])
        self.fallback()
        print('bg left after attention:', len(self.bg), file=sys.stderr)
        V.release('S0', 'S1', 'O0', 'O1', 'Cl', 'Cu', 'HK', 'HV', 'vinf', 'vhk', 'vhv', 'vpf', 'idx16', 'swz', 'vwo')
        A.release('OWN')

    def vinf(self):
        if 'vinf' not in self.V.names:
            r = self.V.alloc('vinf')
            self._vinf = r
            self.e('v_mov_b32 %s, 0x7f800000' % r)
        return self._vinf

    def fallback(self):
        f = Emitter('fb')
        S, P, O, t = self.S, self.P, self.O, self.pt
        Cz = S[1]
        f('L_fallback:')
        f('s_nop 15')
        for qb in (0, 1):
            slots = list(range(qb + 8, qb - 1, -1))
            f('v_mov_b32 %s, 0xff800000' % t[0])
            for s in slots:
                if s < 8:
                    f('s_cmp_lt_u32 s4, %d' % (4 - (s >> 1)))
                    f('s_cbranch_scc1 L_fb_a%d_%d' % (qb, s))
                f('v_mfma_f32_32x32x16_bf16 %s, %s, %s, %s' % (S[0], self.kfrag(s), self.qfrag(qb), self.cmask(s, qb)))
                for r in range(0, 16, 2):
                    f('v_max3_f32 %s, %s, %s, %s' % (t[0], S[0][r], S[0][r + 1], t[0]))
                f('s_nop 7')
                f('L_fb_a%d_%d:' % (qb, s))
            f('v_mov_b32 %s, %s' % (t[1], t[0]))
            f('v_permlane32_swap_b32 %s, %s' % (t[0], t[1]))
            f('v_max_f32 %s, %s, %s' % (t[0], t[0], t[1]))
            for r in range(16):
                f('v_mov_b32 %s, 0' % O[qb][r])
            for s in slots:
                if s < 8:
                    f('s_cmp_lt_u32 s4, %d' % (4 - (s >> 1)))
                    f('s_cbranch_scc1 L_fb_b%d_%d' % (qb, s))
                f('v_mfma_f32_32x32x16_bf16 %s, %s, %s, %s' % (S[0], self.kfrag(s), self.qfrag(qb), self.cmask(s, qb)))
                for r in range(16):
                    f('v_sub_f32 %s, %s, %s' % (S[0][r], S[0][r], t[0]))
                for r in range(16):
                    f('v_exp_f32 %s, %s' % (S[0][r], S[0][r]))
                for r in range(8):
                    f('v_cvt_pk_bf16_f32 %s, %s, %s' % (P[r], S[0][2 * r], S[0][2 * r + 1]))
                for m in range(2):
                    f('v_mfma_f32_32x32x16_bf16 %s, %s, %s, %s' % (O[qb], self.vfrag(s, m), P.sub(4 * m, 4), O[qb]))
                f('s_nop 15')
                f('L_fb_b%d_%d:' % (qb, s))
        f('s_nop 15')
        f('s_branch L_attn_ok')
        self.cold = f.text()

    def w2_loads(self, lo, hi):
        e = self.e
        out = []
        for n in range(lo, hi):
            def f(n=n):
                p, m, b = n >> 2, (n >> 1) & 1, n & 1
                if n % 4 == 0 or n == lo:
                    e('s_lshl_b32 s88, s%d, 1' % (56 + p))
                    e('s_add_u32 s88, s88, s92')
                e('buffer_load_dwordx4 %s, %s, s[32:35], s88 offen offset:%d sc1' % (
                    self.W2.sub(n * 4, 4), self.vw2[b], m * 2048))
            out.append(f)
        return out

    def tagcheck(self, e, regs, tmp):
        e('v_min3_u32 %s, %s, %s, %s' % (tmp[0], regs[0], regs[1], regs[2]))
        e('v_max3_u32 %s, %s, %s, %s' % (tmp[1], regs[0], regs[1], regs[2]))
        k = 3
        while k < len(regs):
            b = regs[k + 1] if k + 1 < len(regs) else regs[k]
            e('v_min3_u32 %s, %s, %s, %s' % (tmp[0], regs[k], b, tmp[0]))
            e('v_max3_u32 %s, %s, %s, %s' % (tmp[1], regs[k], b, tmp[1]))
            k += 2
        e('v_xor_b32 %s, s6, %s' % (tmp[0], tmp[0]))
        e('v_xor_b32 %s, s6, %s' % (tmp[1], tmp[1]))
        e('v_or_b32 %s, %s, %s' % (tmp[0], tmp[0], tmp[1]))
        e('v_cmp_ne_u32 vcc, 0, %s' % tmp[0])

    def p3(self):
        e, V, A = self.e, self.V, self.A
        o = self.o
        t, vlane, vh = self.pt, self.vlane, self.vh
        self.W2 = A.alloc('W2', 224, at=0)
        WB = A.alloc('WB3', 32, at=224)
        self.WBa = WB
        H = V.alloc('hres', 16, at=240)
        self.H = H
        acc1 = V.alloc('acc1', 16, at=224)
        OF = V.alloc('OF', 64, at=128)
        cb = V.alloc('cb', 8, at=48)
        vwr = V.alloc('vwr', 2)
        vpo = V.alloc('vpo')
        xr = self.xr
        self.bg_flush()
        e('v_min_u32 %s, 55, %s' % (t[4], vlane))
        e('v_lshlrev_b32 %s, 3, %s' % (t[4], t[4]))
        e('s_lshl_b32 s98, s5, 9')
        e('s_add_u32 s93, s98, 0x%x' % WS_W2F)
        e('buffer_load_dwordx2 %s, %s, s[32:35], s93 offen sc1' % (t.sub(6, 2), t[4]))

        def csl(em):
            for k in range(2):
                em('buffer_load_dwordx4 %s, %s, s[32:35], s81 offen offset:%d sc1' % (cb.sub(4 * k, 4), self.vcs, 16 * k))
        csl(e)
        e('s_lshl_b32 s90, s4, 7')
        e('s_add_u32 s90, s90, 0x%x' % WS_OF)
        e('s_lshl_b32 s98, s5, 2')
        e('s_add_u32 s98, s98, s3')
        e('s_lshl_b32 s98, s98, 2')
        e('s_add_u32 s91, s98, s90')
        e('v_permlane32_swap_b32 %s, %s' % (xr[0], xr[2]))
        e('v_permlane32_swap_b32 %s, %s' % (xr[1], xr[3]))
        e('v_permlane32_swap_b32 %s, %s' % (xr[4], xr[6]))
        e('v_permlane32_swap_b32 %s, %s' % (xr[5], xr[7]))
        for k in range(8):
            e('v_lshlrev_b32 %s, 16, %s' % (H[2 * k], xr[k]))
            e('v_and_b32 %s, 0xffff0000, %s' % (H[2 * k + 1], xr[k]))
        V.release('xr')
        e('v_lshl_add_u32 %s, %s, 9, %s' % (t[0], vh, self.vtrb))
        self.vtr9 = V.alloc('vtr9')
        e('v_lshl_add_u32 %s, %s, 6, %s' % (self.vtr9, self.vq3, t[0]))
        e('s_lshl_b32 s98, s40, 6')
        e('v_xor_b32 %s, s98, %s' % (t[0], self.vtr9))
        e('s_lshl_b32 s98, s40, 15')
        e('s_add_u32 s98, s98, %d' % L_WO)
        e('v_add_u32 %s, s98, %s' % (vwr[0], t[0]))
        e('v_xor_b32 %s, 64, %s' % (vwr[1], vwr[0]))
        e('v_and_b32 %s, 15, %s' % (t[0], vlane))
        e('s_lshl_b32 s98, s40, 6')
        e('v_lshl_add_u32 %s, %s, 2, s98' % (vpo, t[0]))
        e('s_lshl_b32 s98, s40, 10')
        e('v_add_u32 %s, s98, %s' % (self.vw2[0], self.vl16))
        e('v_xor_b32 %s, 1024, %s' % (self.vw2[1], self.vw2[0]))
        e('s_mul_i32 s92, s5, %d' % (112 * 2048))
        e('s_add_u32 s92, s92, 0x%x' % WS_W2P)
        e.wait(vm=self.o_st)
        self.mode_stores(['buffer_store_dword %s, %s, s[32:35], s91 offen' % (self.vtag, self.vflag)])
        e('s_barrier', wait_vm=self.wo_tok + self.wo_tok3)
        self.stamp('opub')

        def wreads(s):
            out = []
            for u in (1, 0):
                buf = WB.sub((s % 4) * 8 + 4 * u, 4)
                for uu in range(2):
                    out.append('ds_read_b64_tr_b16 %s, %s offset:%d' % (buf.sub(2 * uu, 2), vwr[u], s * 2048 + uu * 1024))
            return out
        for s in wreads(0) + wreads(1):
            e(s)
        e('v_xor_b32 %s, s6, %s' % (t[6], t[6]))
        e('v_xor_b32 %s, s6, %s' % (t[7], t[7]))
        e('v_or_b32 %s, %s, %s' % (t[6], t[6], t[7]))
        e('v_cmp_ne_u32 vcc, 0, %s' % t[6])
        e('s_cbranch_vccz L_w2ok')
        self.poll(t[4], 's93', t.sub(6, 2), width=2)
        e('L_w2ok:')
        nB = o.get('w2_wb', 6)
        for f in self.w2_loads(0, nB):
            f()
        tags = [cb[k] for k in (1, 3, 5, 7)]
        self.tagcheck(e, tags, t.sub(2, 2))
        e('s_cbranch_vccnz L_csspin')
        e('L_csok:')
        f = Emitter('cs')
        f('L_csspin:')
        csl(f)
        f('s_add_u32 s96, s96, 1')
        f('s_cmp_gt_u32 s96, s97')
        f('s_waitcnt vmcnt(0)')
        f('s_cbranch_scc1 L_csok')
        self.tagcheck(f, tags, t.sub(2, 2))
        f('s_cbranch_vccnz L_csspin')
        f('s_branch L_csok')
        self.tail.append(f.text())
        e('v_add_f32 %s, %s, %s' % (cb[0], cb[0], cb[2]))
        e('v_add_f32 %s, %s, %s' % (cb[4], cb[4], cb[6]))
        e('v_add_f32 %s, %s, %s' % (cb[0], cb[0], cb[4]))
        e('v_mov_b32 %s, %s' % (cb[1], cb[0]))
        e('s_lshl_b32 s98, s3, 9')
        e('v_lshl_add_u32 %s, %s, 3, s98' % (t[0], vlane))
        e('v_permlane32_swap_b32 %s, %s' % (cb[0], cb[1]))
        e('v_add_f32 %s, %s, %s' % (cb[0], cb[0], cb[1]))
        e('v_mul_f32 %s, %s, %s' % (cb[0], self.hz, cb[0]))
        e('v_cvt_pk_bf16_f32 %s, %s, %s' % (cb[2], cb[0], cb[0]))
        e('v_and_b32 %s, 0xffff0000, %s' % (cb[1], cb[2]))
        e('v_sub_f32 %s, %s, %s' % (cb[1], cb[0], cb[1]))
        e('v_cvt_pk_bf16_f32 %s, %s, %s' % (cb[3], cb[1], cb[1]))
        caw = e('ds_write_b64 %s, %s offset:%d' % (t[0], cb.sub(2, 2), L_CA))
        vred = V.alloc('vred', 2)
        e('s_xor_b32 s98, s3, 1')
        e('s_lshl_b32 s98, s98, 12')
        e('s_add_u32 s98, s98, %d' % L_RED3)
        e('v_add_u32 %s, s98, %s' % (vred[0], self.vl16))
        e('s_add_u32 s98, s46, %d' % L_RED3)
        e('v_add_u32 %s, s98, %s' % (vred[1], self.vl16))
        V.release('vpt')
        self.poll(vpo, 's90', t.sub(6, 2))
        self.stamp('oflag')

        def old(u):
            if u % 4 == 0:
                e('s_add_u32 s98, s54, %d' % (u * 1024))
            e('buffer_load_dwordx4 %s, %s, s[32:35], s98 offen offset:%d sc1' % (OF.sub(4 * u, 4), self.vl16,
                                                                                (u % 4) * 1024))
        LA = o.get('la3', 6)
        for u in range(LA):
            old(u)
        n3 = o.get('w2_p3', 8)
        w2f = self.w2_loads(nB, nB + n3)
        self.w2_next = nB + n3
        for s in range(16):
            b = WB.sub((s % 4) * 8, 8)
            e('v_mfma_f32_32x32x16_bf16 %s, %s, %s, %s' % (acc1, b.sub(4, 4), OF.sub(4 * s, 4), '0' if s == 0 else acc1))
            rd = wreads(s + 2) if s + 2 < 16 else []
            for x in rd[:2]:
                e(x)
            if s + LA < 16:
                old(s + LA)
            elif w2f:
                w2f.pop(0)()
            e('v_mfma_f32_32x32x16_bf16 %s, %s, %s, %s' % (H, b.sub(0, 4), OF.sub(4 * s, 4), H))
            for x in rd[2:]:
                e(x)
        for f in w2f:
            f()
        wr = [e('ds_write_b128 %s, %s offset:%d' % (vred[0], acc1.sub(4 * g, 4), g * 1024)) for g in range(4)]
        e('s_barrier', wait_lgkm=wr + [caw], wait_vm=self.w1a_tok)
        for g in range(4):
            e('ds_read_b128 %s, %s offset:%d' % (acc1.sub(4 * g, 4), vred[1], g * 1024))
        e('s_lshr_b32 s98, s55, 15')
        e('s_lshl_b32 s98, s98, 7')
        e('s_bfe_u32 s99, s55, 0x4000b')
        e('s_lshl_b32 s99, s99, 2')
        e('s_add_u32 s98, s98, s99')
        e('s_add_u32 s91, s98, 0x%x' % WS_HF)
        e('v_lshl_add_u32 %s, %s, 29, %s' % (t[0], vh, self.vl16))
        e('s_lshl_b32 s98, s40, 3')
        e('s_add_u32 s45, s45, s98')
        PK = OF
        for g in range(4):
            for r in range(4 * g, 4 * g + 4, 2):
                e('v_pk_add_f32 %s, %s, %s' % (H.sub(r, 2), H.sub(r, 2), acc1.sub(r, 2)))
            for r in range(2 * g, 2 * g + 2):
                e('v_cvt_pk_bf16_f32 %s, %s, %s' % (PK[r], H[2 * r], H[2 * r + 1]))
        h_st = self.mode_stores(['buffer_store_dwordx4 %s, %s, s[28:31], s55 offen' % (PK.sub(0, 4), self.vl16),
                                 'buffer_store_dwordx4 %s, %s, s[28:31], s55 offen offset:1024' % (PK.sub(4, 4), self.vl16)])
        a = acc1
        e('v_pk_mul_f32 %s, %s, %s' % (a.sub(0, 2), H.sub(0, 2), H.sub(0, 2)))
        e('v_pk_add_f32 %s, %s, %s' % (a.sub(2, 2), H.sub(0, 2), H.sub(2, 2)))
        for r in range(2, 16, 2):
            e('v_pk_fma_f32 %s, %s, %s, %s' % (a.sub(0, 2), H.sub(r, 2), H.sub(r, 2), a.sub(0, 2)))
            if r >= 4:
                e('v_pk_add_f32 %s, %s, %s' % (a.sub(2, 2), a.sub(2, 2), H.sub(r, 2)))
        e('v_add_f32 %s, %s, %s' % (a[4], a[2], a[3]))
        e('v_add_f32 %s, %s, %s' % (a[5], a[0], a[1]))
        e('v_mov_b32 %s, %s' % (a[0], a[4]))
        e('v_mov_b32 %s, %s' % (a[1], a[5]))
        e('v_permlane32_swap_b32 %s, %s' % (a[0], a[4]))
        e('v_permlane32_swap_b32 %s, %s' % (a[1], a[5]))
        e('v_pk_add_f32 %s, %s, %s' % (a.sub(4, 2), a.sub(4, 2), a.sub(0, 2)))
        h_st += self.mode_stores(['buffer_store_dwordx2 %s, %s, s[32:35], s45 offen' % (a.sub(4, 2), t[0])])
        e('s_add_u32 s49, s49, 128')
        w1b_f, self.w1b_tok = self.img_dma(self.vw1, 's[20:23]', 3584, L_W1B, [0, 1, 2, 3], 's49')
        nb = o.get('w1b_early', 8)
        for f in w1b_f[:nb]:
            f()
        self.w1b_rest = w1b_f[nb:]
        self.h_st = h_st
        V.release('acc1', 'OF', 'vwr', 'vpo', 'vred', 'P', 'trb', 'q3', 'cb')

    def p4(self):
        e, V, A = self.e, self.V, self.A
        o = self.o
        t, vlane, vh = self.pt, self.vlane, self.vh
        WB = self.WBa
        HF = V.alloc('HF', 128, at=48)
        acc = [V.alloc('acc%d' % k, 16, at=176 + 16 * k) for k in range(4)]
        self.HF, self.acc = HF, acc
        vA = V.alloc('vA', 2)
        cz = [V.alloc('cA%d' % k, 6, 2) for k in range(2)]
        cA = [cz[0].sub(0, 2), cz[0].sub(4, 2), cz[1].sub(0, 2), cz[1].sub(4, 2)]
        cT = [cz[0].sub(0, 4), cz[0].sub(2, 4), cz[1].sub(0, 4), cz[1].sub(2, 4)]
        vst = V.alloc('vst')
        e('v_add_u32 %s, %d, %s' % (vA[0], L_W1A, self.vtr9))
        e('v_xor_b32 %s, 64, %s' % (vA[1], vA[0]))
        V.release('vtr9')
        e('v_lshlrev_b32 %s, 3, %s' % (t[2], vlane))
        for tl in range(4):
            e('ds_read_b64 %s, %s offset:%d' % (cA[tl], t[2], L_CA + 512 * tl))

        def wreads(tl, s, slot):
            buf = WB.sub(slot * 4, 4)
            return ['ds_read_b64_tr_b16 %s, %s offset:%d' % (buf.sub(2 * uu, 2), vA[tl & 1], s * 2048 + uu * 1024)
                    for uu in range(2)]
        RA = 4
        seq1 = [(tl, s) for s in range(32) for tl in (0, 1)]
        for n in range(RA):
            for x in wreads(seq1[n][0], seq1[n][1], n):
                e(x)
        for k in range(2):
            e('v_mov_b32 %s, 0' % cz[k][2])
            e('v_mov_b32 %s, 0' % cz[k][3])
        e('s_lshr_b32 s98, s4, 1')
        e('s_lshl_b32 s98, s98, 2')
        e('s_add_u32 s53, s98, s3')
        e('s_lshl_b32 s44, s53, 15')
        e('s_lshl_b32 s90, s53, 7')
        e('s_add_u32 s90, s90, 0x%x' % WS_HF)
        e('v_and_b32 %s, 15, %s' % (t[1], vlane))
        e('v_lshlrev_b32 %s, 2, %s' % (t[1], t[1]))
        e.wait(vm=self.h_st)
        self.mode_stores(['buffer_store_dword %s, %s, s[32:35], s91 offen' % (self.vtag, self.vflag)])
        self.stamp('hpub')
        e('s_lshl_b32 s45, s53, 12')
        e('s_add_u32 s45, s45, 0x%x' % WS_ST2)
        e('s_cmp_lt_u32 s47, 14')
        e('s_cselect_b32 s99, 0, 0x%x' % OOB)
        e('s_mul_i32 s54, s53, %d' % H1_GT)
        e('s_lshl_b32 s98, s48, 13')
        e('s_add_u32 s54, s54, s98')
        e('s_add_u32 s54, s54, 0x%x' % WS_H1)
        e('s_add_u32 s54, s54, s99')
        e('s_mul_i32 s55, s53, 384')
        e('s_lshl_b32 s98, s48, 2')
        e('s_add_u32 s55, s55, s98')
        e('s_add_u32 s55, s55, 0x%x' % WS_H1F)
        e('s_add_u32 s55, s55, s99')
        e('v_and_b32 %s, 31, %s' % (t[0], vlane))
        e('v_lshlrev_b32 %s, 4, %s' % (t[0], t[0]))
        e('v_lshl_add_u32 %s, %s, 11, %s' % (vst, vh, t[0]))
        self.poll(t[1], 's90', t.sub(6, 2))
        self.stamp('hflag')
        sb = acc[2]

        def hld(s):
            if s % 4 == 0:
                e('s_add_u32 s98, s44, %d' % (s * 1024))
            e('buffer_load_dwordx4 %s, %s, s[28:31], s98 offen offset:%d sc1' % (HF.sub(4 * s, 4), self.vl16,
                                                                                (s % 4) * 1024))
        q = []
        SAT = o.get('stat_at', 20)
        for s in range(32):
            if s == SAT:
                for k in range(4):
                    q.append(lambda k=k: e('buffer_load_dwordx4 %s, %s, s[32:35], s45 offen offset:%d sc1' % (
                        sb.sub(4 * k, 4), vst, k * 512)))
            q.append(lambda s=s: hld(s))
        q += self.w1b_rest
        LA = o.get('la4', 6)
        for _ in range(LA):
            q.pop(0)()
        mB = V.alloc('mB2', 4, 2)
        sc = V.alloc('sc', 2, 2)

        def stats_ops():
            a = sb
            ops = []
            for k in (0, 1):
                ops += ['v_add_f32 %s, %s, %s' % (a[k], a[k], a[k + 2]),
                        'v_add_f32 %s, %s, %s' % (a[k + 4], a[k + 4], a[k + 6]),
                        'v_add_f32 %s, %s, %s' % (a[k + 8], a[k + 8], a[k + 10]),
                        'v_add_f32 %s, %s, %s' % (a[k + 12], a[k + 12], a[k + 14]),
                        'v_add_f32 %s, %s, %s' % (a[k], a[k], a[k + 4]),
                        'v_add_f32 %s, %s, %s' % (a[k + 8], a[k + 8], a[k + 12]),
                        'v_add_f32 %s, %s, %s' % (a[k], a[k], a[k + 8]),
                        'v_mov_b32 %s, %s' % (a[k + 2], a[k])]
            ops += ['s_nop 0',
                    'v_permlane32_swap_b32 %s, %s' % (a[0], a[2]),
                    'v_permlane32_swap_b32 %s, %s' % (a[1], a[3]),
                    'v_add_f32 %s, %s, %s' % (a[0], a[0], a[2]),
                    'v_add_f32 %s, %s, %s' % (a[1], a[1], a[3]),
                    'v_mul_f32 %s, %s, %s' % (a[0], hexf(-1.0 / 512), a[0]),
                    'v_mul_f32 %s, %s, %s' % (a[1], hexf(1.0 / 512), a[1]),
                    'v_fma_f32 %s, -%s, %s, %s' % (a[1], a[0], a[0], a[1]),
                    'v_max_f32 %s, 0, %s' % (a[1], a[1]),
                    'v_add_f32 %s, %s, %s' % (a[1], hexf(1e-5), a[1]),
                    'v_rsq_f32 %s, %s' % (sc[0], a[1]),
                    'v_sqrt_f32 %s, %s' % (sc[1], a[1])]
            ops += self.aug_ops(mB, a[0], a[2], False)[:-2]
            ops += ['v_mov_b32 %s, %s' % (mB[2], mB[0]), 'v_mov_b32 %s, %s' % (mB[3], mB[0]),
                    'v_mul_f32 %s, %s, %s' % (sc[0], hexf(-LOG2E), sc[0])]
            return ops

        def aug(tl):
            return 'v_mfma_f32_32x32x16_bf16 %s, %s, %s, %s' % (acc[tl], cT[tl], mB, acc[tl])

        et = t.sub(2, 4)
        self.h1_st = {}

        def epi(tl, packed=False):
            ops = []
            a = acc[tl]
            PK = a
            for r in range(0, 16, 2):
                x, y = et[(r // 2 % 2) * 2], et[(r // 2 % 2) * 2 + 1]
                ops += ['v_mul_f32 %s, %s, %s' % (x, sc[0], a[r]), 'v_mul_f32 %s, %s, %s' % (y, sc[0], a[r + 1]),
                        'v_exp_f32 %s, %s' % (x, x), 'v_exp_f32 %s, %s' % (y, y),
                        'v_fma_f32 %s, %s, %s, %s' % (x, x, sc[1], sc[1]),
                        'v_fma_f32 %s, %s, %s, %s' % (y, y, sc[1], sc[1]),
                        'v_rcp_f32 %s, %s' % (x, x), 'v_rcp_f32 %s, %s' % (y, y),
                        'v_mul_f32 %s, %s, %s' % (a[r], a[r], x),
                        'v_mul_f32 %s, %s, %s' % (a[r + 1], a[r + 1], y),
                        'v_cvt_pk_bf16_f32 %s, %s, %s' % (PK[r // 2], a[r], a[r + 1])]
                if r in (6, 14):
                    ops.append(store(tl, r // 8))
            return ops

        def epi_packed(tl):
            ops = []
            a = acc[tl]
            for r in range(0, 16, 4):
                u, v = et.sub(0, 2), et.sub(2, 2)
                ops += ['v_pk_mul_f32 %s, %s, %s op_sel_hi:[1,0]' % (u, a.sub(r, 2), sc),
                        'v_pk_mul_f32 %s, %s, %s op_sel_hi:[1,0]' % (v, a.sub(r + 2, 2), sc)]
                ops += ['v_exp_f32 %s, %s' % (et[k], et[k]) for k in range(4)]
                ops += ['v_pk_fma_f32 %s, %s, %s, %s op_sel:[0,1,1] op_sel_hi:[1,1,1]' % (u, u, sc, sc),
                        'v_pk_fma_f32 %s, %s, %s, %s op_sel:[0,1,1] op_sel_hi:[1,1,1]' % (v, v, sc, sc)]
                ops += ['v_rcp_f32 %s, %s' % (et[k], et[k]) for k in range(4)]
                ops += ['v_pk_mul_f32 %s, %s, %s' % (a.sub(r, 2), a.sub(r, 2), u),
                        'v_pk_mul_f32 %s, %s, %s' % (a.sub(r + 2, 2), a.sub(r + 2, 2), v),
                        'v_cvt_pk_bf16_f32 %s, %s, %s' % (a[r // 2], a[r], a[r + 1]),
                        'v_cvt_pk_bf16_f32 %s, %s, %s' % (a[r // 2 + 1], a[r + 2], a[r + 3])]
                if r in (4, 12):
                    ops.append(store(tl, r // 8))
            return ops

        def store(tl, m):
            def st():
                h, e.hook = e.hook, None
                if m == 0:
                    e('s_add_u32 s93, s54, %d' % (tl * 2048))
                tok = e('buffer_store_dwordx4 %s, %s, s[32:35], s93 offen offset:%d sc1' % (
                    acc[tl].sub(4 * m, 4), self.vl16, m * 1024))
                e.hook = h
                self.extra_gap = o.get('stgap', 64)
                self.h1_st.setdefault(tl, []).append(tok)
            return st

        def flag(part, tiles):
            def f():
                w = []
                for tl in tiles:
                    w += self.h1_st[tl]
                e.wait(vm=w)
                self.mode_stores(['buffer_store_dword %s, %s, s[32:35], s55 offen offset:%d' % (
                    self.vtag, self.vflag, part * 128)])
            return f

        so = stats_ops()
        S0 = 64 - (len(so) + 2) // 3 - 1
        for n, (tl, s) in enumerate(seq1):
            e('v_mfma_f32_32x32x16_bf16 %s, %s, %s, %s' % (acc[tl], WB.sub((n % 8) * 4, 4), HF.sub(4 * s, 4),
                                                           '0' if s == 0 else acc[tl]))
            if n + RA < 64:
                for x in wreads(seq1[n + RA][0], seq1[n + RA][1], (n + RA) % 8):
                    e(x)
            if (n % 2 == 0 or (SAT - LA) * 2 <= n < (SAT - LA) * 2 + 8) and q:
                q.pop(0)()
            if n >= S0:
                for x in so[(n - S0) * 3:(n - S0) * 3 + 3]:
                    e(x)
        for f in q:
            f()
        V.release('vw1')
        e(aug(0))
        e(aug(1))
        self.stamp('p4a')
        e('v_subrev_u32 %s, %d, %s' % (vA[0], L_W1A - L_W1B, vA[0]))
        e('v_subrev_u32 %s, %d, %s' % (vA[1], L_W1A - L_W1B, vA[1]))
        self.vh1 = V.alloc('vh1', 2)
        vpf = V.alloc('vpf5')
        self.vpf5 = vpf
        setup = ['s_mul_i32 s98, s41, %d' % H1_GT,
                 'v_add_u32 %s, s98, %s' % (self.vh1[0], self.vl16),
                 's_xor_b32 s98, s41, 1',
                 's_mul_i32 s98, s98, %d' % H1_GT,
                 'v_add_u32 %s, s98, %s' % (self.vh1[1], self.vl16),
                 's_mul_i32 s44, s4, %d' % (2 * H1_GT),
                 's_add_u32 s44, s44, 0x%x' % WS_H1,
                 'v_and_b32 %s, 15, %s' % (t[0], vlane),
                 'v_min_u32 %s, 13, %s' % (t[0], t[0]),
                 'v_bfe_u32 %s, %s, 4, 1' % (t[1], vlane),
                 'v_mul_u32_u24 %s, 384, %s' % (t[1], t[1]),
                 'v_lshl_add_u32 %s, %s, 2, %s' % (vpf, t[0], t[1]),
                 's_mul_i32 s45, s4, 768',
                 's_add_u32 s45, s45, 0x%x' % WS_H1F]
        for x in setup:
            e(x)
        e0 = epi(0)
        pre = o.get('epi_pre', 22)
        self.bg.extend(self.w2_loads(self.w2_next, 56))
        self.pace(True)
        for x in e0[:pre]:
            x() if callable(x) else e(x)
        self.pace(False)
        e('s_barrier', wait_vm=self.w1b_tok)
        self.pace(True)
        seq2 = [(2, s) for s in range(32)] + [(3, s) for s in range(32)]
        for n in range(RA):
            for x in wreads(seq2[n][0], seq2[n][1], n):
                e(x)
        for x in e0[pre:pre + 11]:
            x() if callable(x) else e(x)
        e1 = epi(1)
        cut = o.get('epi_cut', 45)
        fillA = e0[pre + 11:] + e1[:cut]
        fillB = e1[cut:] + epi(2)

        def run(seq, base, fill, extra, lo):
            pos = 0
            for k in range(32):
                n = base + k
                tl, s = seq[n]
                e('v_mfma_f32_32x32x16_bf16 %s, %s, %s, %s' % (acc[tl], WB.sub((n % 8) * 4, 4), HF.sub(4 * s, 4),
                                                               '0' if s == 0 else acc[tl]))
                if n + RA < 64:
                    for x in wreads(seq[n + RA][0], seq[n + RA][1], (n + RA) % 8):
                        e(x)
                upto = (len(fill) * (k + 1) + 31) // 32
                while pos < upto:
                    f = fill[pos]
                    f() if callable(f) else e(f)
                    pos += 1
                for f in extra.get(k, []):
                    f() if callable(f) else e(f)
        run(seq2, 0, fillA, {}, 0)
        e(aug(2))
        self.stamp('t2')
        run(seq2, 32, fillB, {o.get('flagA_at', 24): [flag(0, [0, 1])]}, 0)
        e(aug(3))
        self.stamp('t3')
        print('bg left after tile 3:', len(self.bg), file=sys.stderr)
        ep = epi_packed(3)
        pa = o.get('pollA_at', 20)
        for k, x in enumerate(ep):
            x() if callable(x) else e(x)
            if k == pa:
                self.bg.appendleft(lambda: self.poll_issue(vpf, 's45', t[6], 0))
        self.bg_flush()
        self.pace(False)
        self.flagB = flag(1, [2])
        self.flagC = flag(2, [3])
        self.stamp('p4end')
        V.release('vA', 'cA0', 'cA1', 'vst', 'mB2', 'sc')

    def h1_item(self, n):
        e = self.e
        p, m, a = n >> 2, (n >> 1) & 1, n & 1
        if n % 4 == 0:
            e('s_add_u32 s89, s%d, s44' % (56 + p))
        e('buffer_load_dwordx4 %s, %s, s[32:35], s89 offen offset:%d sc1' % (
            self.HF.sub((n % 32) * 4, 4), self.vh1[a], m * 1024))

    def p5(self):
        e, V, A = self.e, self.V, self.A
        o = self.o
        t = self.pt
        acc = [self.H, self.acc[0], self.acc[1], self.acc[2]]
        HF, W2 = self.HF, self.W2
        vr = V.alloc('vr5', 4)

        def mf(p):
            out = []
            for m in range(2):
                for a in range(2):
                    for b in range(2):
                        u = 2 * a + b
                        c = '0' if (p == 0 and m == 0 and u != 0) else acc[u]
                        out.append('v_mfma_f32_32x32x16_bf16 %s, %s, %s, %s' % (
                            acc[u], W2.sub((p * 4 + m * 2 + b) * 4, 4), HF.sub(((p % 8) * 4 + m * 2 + a) * 4, 4), c))
            return out
        self.poll_check(self.vpf5, 's45', t[6], 0)
        LA = o.get('la5', 8)
        for n in range(LA):
            self.h1_item(n)
            if n == 1:
                self.flagB()
        nxt = LA
        extra = {}

        def add(k, f):
            extra.setdefault(k, []).append(f)
        add(o.get('flagC_at', 6), self.flagC)
        add(24 - LA - 8, lambda: self.poll_issue(self.vpf5, 's45', t[6], 128))
        add(24 - LA - 1, lambda: self.poll_check(self.vpf5, 's45', t[6], 128))
        add(40 - LA - 8, lambda: self.poll_issue(self.vpf5, 's45', t[7], 256))
        add(40 - LA - 1, lambda: self.poll_check(self.vpf5, 's45', t[7], 256))

        def addr():
            for u in range(1, 4):
                e('s_xor_b32 s98, s3, %d' % u)
                e('s_mul_i32 s98, s98, 12288')
                e('s_add_u32 s98, s98, %d' % (L_RED5 + (u - 1) * 4096))
                e('v_add_u32 %s, s98, %s' % (vr[u], self.vl16))
            e('s_mul_i32 s98, s3, 12288')
            e('s_add_u32 s98, s98, %d' % L_RED5)
            e('v_add_u32 %s, s98, %s' % (vr[0], self.vl16))
        add(50, addr)
        slot = 0
        for p in range(13):
            for k, s in enumerate(mf(p)):
                e(s)
                if k % 2 == 0:
                    if nxt < 56:
                        self.h1_item(nxt)
                        nxt += 1
                    for f in extra.get(slot, []):
                        f()
                    slot += 1
        last = mf(13)
        for k in [3, 7, 2, 6, 1, 5, 0, 4]:
            e(last[k])
        self.stamp('p5mm')
        wr = []
        for u in (3, 2, 1):
            for g in range(4):
                wr.append(e('ds_write_b128 %s, %s offset:%d' % (vr[u], acc[u].sub(4 * g, 4), g * 1024)))
        e('s_barrier', wait_lgkm=wr)
        for g in range(4):
            for u in (1, 2, 3):
                e('ds_read_b128 %s, %s offset:%d' % (acc[u].sub(4 * g, 4), vr[0], (u - 1) * 4096 + g * 1024))
        PK = HF
        fl = self.o.get('out_flags', '')
        for hf in range(2):
            for g in (2 * hf, 2 * hf + 1):
                for u in (1, 2, 3):
                    for r in range(4 * g, 4 * g + 4, 2):
                        e('v_pk_add_f32 %s, %s, %s' % (acc[0].sub(r, 2), acc[0].sub(r, 2), acc[u].sub(r, 2)))
                for r in range(2 * g, 2 * g + 2):
                    e('v_cvt_pk_bf16_f32 %s, %s, %s' % (PK[r], acc[0][2 * r], acc[0][2 * r + 1]))
            e('v_permlane32_swap_b32 %s, %s' % (PK[4 * hf], PK[4 * hf + 2]))
            e('v_permlane32_swap_b32 %s, %s' % (PK[4 * hf + 1], PK[4 * hf + 3]))
            e('buffer_store_dwordx4 %s, %s, s[28:31], 0 offen offset:%d %s' % (PK.sub(4 * hf, 4), self.vout, 32 * hf, fl))

    def finish(self):
        e = self.e
        t = self.pt
        if self.o.get('stamps'):
            self.stamp('end')
            self.stamp('dummy')
            e('s_waitcnt vmcnt(0) lgkmcnt(0)')
            e('s_memrealtime s[82:83]')
            e('s_lshl_b32 s98, s2, 2')
            e('s_add_u32 s98, s98, s3')
            e('s_lshl_b32 s98, s98, 7')
            e('s_add_u32 s98, s98, 0x%x' % WS_STAMP)
            for k, r in ((27, 's82'), (28, 's94'), (29, 's96'), (30, 's7'), (31, 's51')):
                e('v_writelane_b32 %s, %s, %d' % (self.vstamp, r, k))
            e('v_lshlrev_b32 %s, 2, %s' % (t[0], self.vlane))
            e('v_lshl_add_u32 %s, %s, 29, %s' % (t[0], self.vh, t[0]))
            e('buffer_store_dword %s, %s, s[32:35], s98 offen' % (self.vstamp, t[0]))
            if self.o.get('dbgstamps'):
                e('s_not_b32 s98, s94')
                e('v_mov_b32 %s, s98' % t[2])
                e('v_mov_b32 %s, s82' % t[3])
                e('v_mov_b32 %s, 4' % t[4])
                e('s_mov_b64 exec, 1')
                e.raw('    global_atomic_umax %s, %s, s[36:37]' % (t[4], t[2]))
                e.raw('    global_atomic_umax %s, %s, s[36:37] offset:4' % (t[4], t[3]))
                e('s_mov_b64 exec, -1')
                e('s_cmp_lg_u32 s2, %d' % self.o.get('dbgwg', 100))
                e('s_cbranch_scc1 L_nodbg')
                e('s_cmp_lg_u32 s3, 0')
                e('s_cbranch_scc1 L_nodbg')
                e('v_readlane_b32 s98, %s, 0' % self.vstamp)
                e('s_sub_u32 s99, s82, s94')
                e('v_subrev_u32 %s, s98, %s' % (self.vstamp, self.vstamp))
                sel = self.o.get('dbgsel', 'dma0,chunk0,kvpub,qdone,attn,oflag,hflag,p4a,p4end,p5mm,end').split(',')
                e('v_mov_b32 %s, s99' % t[2])
                e('v_mov_b32 %s, 12' % t[4])
                e.raw('    global_store_dword %s, %s, s[36:37]' % (t[4], t[2]))
                for k, nm in enumerate(sel):
                    e('v_readlane_b32 s98, %s, %d' % (self.vstamp, self.stamp_names.index(nm)))
                    e('s_nop 3')
                    e('v_mov_b32 %s, s98' % t[2])
                    e('v_mov_b32 %s, %d' % (t[4], 20 + 4 * k))
                    e.raw('    global_store_dword %s, %s, s[36:37]' % (t[4], t[2]))
                    e('s_nop 1')
                e('L_nodbg:')
        if self.o.get('padto'):
            e('L_pad:')
            e('s_memrealtime s[82:83]')
            e('s_waitcnt lgkmcnt(0)')
            e('s_sub_u32 s98, s82, s94')
            e('s_cmp_lt_u32 s98, %d' % self.o.get('padto'))
            e('s_cbranch_scc1 L_pad')
        e('s_cmp_gt_u32 s96, s97')
        e('s_cbranch_scc0 L_end')
        e('v_mov_b32 %s, 16' % t[0])
        e('v_mov_b32 %s, 0xdead' % t[1])
        e('global_store_dword %s, %s, s[36:37]' % (t[0], t[1]))
        e('L_end:')
        e('s_endpgm')

    def text(self):
        hdr = open('sequential_preLN__sliding_block__dense_activation_silu__prompt.s.ref').read()
        head = [l for l in hdr.split('\n') if l.startswith(';') and '@launch' not in l]
        out = '\n'.join(head) + '\n'
        if self.stamp_names:
            out += '; stamps %s\n' % ','.join(self.stamp_names[:-1])
        out += '; @launch grid=(256,1,1) block=(256,1,1) lds=%d\n' % LDS_BYTES
        out += '.amdgcn_target "amdgcn-amd-amdhsa--gfx950"\n.text\n.globl %s\n.p2align 8\n.type %s,@function\n%s:\n' % (
            KNAME, KNAME, KNAME)
        out += self.e.text()
        for tl in self.tail:
            out += tl
        out += 'L_codeend:\n'
        out += self.cold
        out += '.p2align 6\n.type L_tab,@object\nL_tab:\n'
        for row in p5_table():
            vals = [(8 * jj + 2 * tl) * 1024 for jj, tl in row] + [0, 0]
            out += '    .long ' + ', '.join(str(v) for v in vals) + '\n'
        out += '.size L_tab, 256\n'
        out += '.section .rodata,"a"\n.p2align 6\n.amdhsa_kernel %s\n' % KNAME
        out += '  .amdhsa_next_free_vgpr 512\n  .amdhsa_next_free_sgpr 102\n  .amdhsa_accum_offset 256\n'
        out += '  .amdhsa_group_segment_fixed_size 0\n  .amdhsa_kernarg_size 72\n  .amdhsa_user_sgpr_count 2\n'
        out += '  .amdhsa_user_sgpr_kernarg_segment_ptr 1\n  .amdhsa_system_sgpr_workgroup_id_x 1\n.end_amdhsa_kernel\n'
        return out


def parse_opts(args):
    o = {}
    for a in args:
        if '=' in a:
            k, v = a.split('=', 1)
            try:
                v = int(v)
            except ValueError:
                pass
            o[k] = v
        else:
            o[a] = 1
    return o


if __name__ == '__main__':
    path = sys.argv[1]
    g = Gen(parse_opts(sys.argv[2:]))
    txt = g.build()
    open(path, 'w').write(txt)
    print('wrote', path, len(txt), 'bytes; model cycles', g.e.now, 'stamps', ','.join(g.stamp_names[:-1]))
```

```python
import sys
import struct
import collections
from emit import Emitter, Regs, R, Ins

KNAME = 'sequential_preLN__sliding_block__dense_activation_silu__prompt_kernel'

WS_EPOCH = 0
WS_XCC = 0x1000
WS_KVF = 0x10000
WS_W2F = 0x30000
WS_OF = 0x32000
WS_HF = 0x33000
WS_H1F = 0x36000
WS_CSP = 0x40000
WS_ST2 = 0x60000
WS_KV = 0x100000
WS_W2P = 0x500000
WS_H1 = 0x700000
WS_STAMP = 0xF00000
WS_DUMP = 0x1000000
WS_BYTES = 0x10000000
OOB = 0x20000000
H1_GT = 112 * 1024

K = 1024
L_ST = 0
L_CS = 2048
L_CSW1 = 5120
L_RS = 7168
L_CA = 8 * K
L_QX = 8 * K
L_RING = 16 * K
SLOT = 24 * K
L_WQ = 64 * K
L_WO = 16 * K
L_W1A = 80 * K
L_W1B = 16 * K
L_SIDE = 128 * K
L_KX = 144 * K
L_VX = 152 * K
L_RED3 = 144 * K
L_RED5 = 80 * K
LDS_BYTES = 160 * K

LOG2E = 1.4426950408889634
SPIN_LIMIT = 400000


def f2u(x):
    return struct.unpack('<I', struct.pack('<f', x))[0]


def hexf(x):
    return '0x%08x' % f2u(x)


def p5_table():
    tab = []
    for kq in range(4):
        by = {t: [jj for jj in range(14) if (kq + jj) % 4 == t] for t in range(4)}
        early = sorted([(jj, t) for t in (0, 1) for jj in by[t]], key=lambda x: (x[1], x[0]))
        mid = [(jj, 2) for jj in by[2]]
        late = [(jj, 3) for jj in by[3]]
        first, extra = early[:6], early[6:]
        while len(mid) < 4:
            mid.insert(0, extra.pop(0))
        while len(late) < 4:
            late.insert(0, extra.pop(0))
        assert not extra
        tab.append(first + mid + late)
    return tab


class Gen:
    def __init__(self, opts):
        self.o = opts
        self.e = Emitter()
        self.tail = []
        self.V = Regs('v', 1, 256)
        self.V.small_hi = 48
        self.A = Regs('a', 0, 256)
        self.nstamp = 0
        self.npoll = 0
        self.nslow = 0
        self.stamp_names = []
        self.bg = collections.deque()
        self.gap = opts.get('gap', 64)
        self.extra_gap = 0
        self.nasync = 0

    def _hook(self):
        e = self.e
        if self.bg and e.now - e.last_vm >= self.gap + self.extra_gap:
            self.extra_gap = 0
            self.bg.popleft()()

    def pace(self, on):
        self.e.hook = self._hook if on else None

    def bg_flush(self, n=None):
        e = self.e
        h, e.hook = e.hook, None
        k = 0
        while self.bg and (n is None or k < n):
            self.bg.popleft()()
            k += 1
        e.hook = h

    def bg_until(self, cond):
        e = self.e
        h, e.hook = e.hook, None
        while not cond():
            self.bg.popleft()()
        e.hook = h

    def poll_issue(self, voff, soff, vtmp, imm=0):
        self.e('buffer_load_dword %s, %s, s[32:35], %s offen offset:%d sc1' % (vtmp, voff, soff, imm))

    def poll_check(self, voff, soff, vtmp, imm=0):
        e = self.e
        h, e.hook = e.hook, None
        k = self.nasync
        self.nasync += 1
        e('v_cmp_ne_u32 vcc, s6, %s' % vtmp)
        e('s_cbranch_vccnz L_aspin%d' % k)
        e('L_aok%d:' % k)
        e.hook = h
        self.tail.append(
            'L_aspin%d:\n    buffer_load_dword %s, %s, s[32:35], %s offen offset:%d sc1\n    s_add_u32 s96, s96, 1\n'
            '    s_cmp_gt_u32 s96, s97\n    s_waitcnt vmcnt(0)\n    s_cbranch_scc1 L_aok%d\n'
            '    v_cmp_ne_u32 vcc, s6, %s\n    s_nop 1\n    s_cbranch_vccnz L_aspin%d\n    s_branch L_aok%d\n'
            % (k, vtmp, voff, soff, imm, k, vtmp, k, k))

    def stamp(self, name):
        if not self.o.get('stamps'):
            return
        k = self.nstamp
        assert k < 28
        if k > 0:
            self.e('v_writelane_b32 %s, s%d, %d' % (self.vstamp, 72 + 2 * ((k - 1) & 1), k - 1))
        self.e('s_memtime s[%d:%d]' % (72 + 2 * (k & 1), 73 + 2 * (k & 1)))
        self.stamp_names.append(name)
        self.nstamp += 1

    def poll(self, voff, soff, vtmp, mask=None, width=1, imm=0, xor_lt=None):
        e = self.e
        k = self.npoll
        self.npoll += 1
        hook, e.hook = e.hook, None
        e('L_poll%d:' % k)
        if width == 1:
            e('buffer_load_dword %s, %s, s[32:35], %s offen offset:%d sc1' % (vtmp[0], voff, soff, imm))
        else:
            e('buffer_load_dwordx2 %s, %s, s[32:35], %s offen offset:%d sc1' % (vtmp.sub(0, 2), voff, soff, imm))
        e('s_add_u32 s96, s96, 1')
        e('s_cmp_gt_u32 s96, s97')
        e('s_cbranch_scc1 L_pdone%d' % k)
        e('s_waitcnt vmcnt(0)')
        if xor_lt is not None:
            e('v_xor_b32 %s, s6, %s' % (vtmp[0], vtmp[0]))
            e('v_cmp_le_u32 vcc, %d, %s' % (xor_lt, vtmp[0]))
        elif width == 1:
            e('v_cmp_ne_u32 vcc, s6, %s' % vtmp[0])
        else:
            e('v_xor_b32 %s, s6, %s' % (vtmp[0], vtmp[0]))
            e('v_xor_b32 %s, s6, %s' % (vtmp[1], vtmp[1]))
            e('v_or_b32 %s, %s, %s' % (vtmp[0], vtmp[0], vtmp[1]))
            e('v_cmp_ne_u32 vcc, 0, %s' % vtmp[0])
        if mask is not None:
            e('s_and_b64 vcc, vcc, %s' % mask)
        e('s_cbranch_vccnz L_poll%d' % k)
        e('L_pdone%d:' % k)
        e('s_waitcnt vmcnt(0)')
        e.hook = hook

    def mode_stores(self, stores):
        e = self.e
        if self.o.get('force_sc1'):
            return [e(s + ' sc1') for s in stores]
        k = self.nslow
        self.nslow += 1
        hook, e.hook = e.hook, None
        e('s_cmp_eq_u32 s7, 0')
        e('s_cbranch_scc1 L_slow%d' % k)
        toks = [e(s) for s in stores]
        e('L_back%d:' % k)
        e.hook = hook
        t = 'L_slow%d:\n    s_nop 4\n' % k
        for s in stores:
            t += '    ' + s + ' sc1\n'
        t += '    s_nop 1\n    s_branch L_back%d\n' % k
        self.tail.append(t)
        return toks

    @staticmethod
    def weave(e, main, fill, per=None, lead=0):
        def put(x):
            if callable(x):
                x()
            else:
                e(x)
        fill = list(fill)
        n = len(main)
        pos = 0
        for k, m in enumerate(main):
            put(m)
            if per is None:
                upto = (len(fill) * (k + 1) + n - 1) // n
            else:
                upto = min(len(fill), pos + (per[k] if isinstance(per, (list, tuple)) else per))
            while pos < upto:
                put(fill[pos])
                pos += 1
        while pos < len(fill):
            put(fill[pos])
            pos += 1

    def dump_v(self, regs, slot, nregs_total=None):
        e = self.e
        e('s_lshl_b32 s98, s2, 2')
        e('s_add_u32 s98, s98, s3')
        e('s_lshl_b32 s98, s98, 14')
        e('s_add_u32 s98, s98, 0x%x' % (WS_DUMP + slot * 0x1000000))
        t = self.V.alloc('dump_t', 2)
        e('v_lshlrev_b32 %s, 2, %s' % (t[0], self.vlane))
        for k, r in enumerate(regs):
            src = r
            if r.kind == 'a':
                e('v_accvgpr_read_b32 %s, %s' % (t[1], r))
                src = t[1]
            e('buffer_store_dword %s, %s, s[32:35], s98 offen offset:%d' % (src, t[0], (k % 16) * 256))
            if k % 16 == 15:
                e('s_add_u32 s98, s98, 4096')
            e('s_waitcnt vmcnt(0)')
        self.V.release('dump_t')

    def build(self):
        stop = self.o.get('stop', '')
        self.cold = ''
        for name, fn in (('pro', self.prologue), ('kv', self.p1_kv), ('p1', self.p1_q), ('attn', self.attention),
                         ('p3', self.p3), ('p4', self.p4), ('p5', self.p5)):
            fn()
            if name == stop:
                break
        self.finish()
        return self.text()

    def prologue(self):
        e, V, A = self.e, self.V, self.A
        o = self.o
        e('s_load_dwordx4 s[40:43], s[0:1], 0')
        e('s_cmp_ge_u32 s2, 256')
        e('s_cbranch_scc1 L_end')
        if o.get('stamps') or o.get('padto'):
            e('s_memrealtime s[94:95]')
            self.vstamp = R('v', 0, 1)
        self.stamp('start')
        self.vlane = V.alloc('lane', at=1)
        self.vflag = V.alloc('flagoff', at=3)
        self.vtag = V.alloc('tag', at=12)
        self.vh = V.alloc('h', at=13)
        self.hz = V.alloc('hz', at=14)
        self.vout = V.alloc('vout', at=15)
        self.vw2 = V.alloc('vw2', 2, at=16)
        V.alloc('resv_vw1', 4, at=18)
        self.vl16 = V.alloc('l16', at=2)
        vlane, vl16 = self.vlane, self.vl16
        t = V.alloc('pt', 8, 2, at=4)
        self.pt = t
        e('v_lshrrev_b32 %s, 6, v0' % t[0])
        e('v_and_b32 %s, 63, v0' % vlane)
        e('v_readfirstlane_b32 s3, %s' % t[0])
        if o.get('spread'):
            e('s_lshr_b32 s4, s2, 3')
            e('s_and_b32 s5, s2, 7')
        else:
            e('s_and_b32 s4, s2, 7')
            e('s_lshl_b32 s4, s4, 2')
            e('s_lshr_b32 s5, s2, 6')
            e('s_add_u32 s4, s4, s5')
            e('s_bfe_u32 s5, s2, 0x30003')
        self.vxA, self.vxB = V.alloc('xA'), V.alloc('xB')
        self.vwA, self.vwB, self.vwQ = V.alloc('wA'), V.alloc('wB'), V.alloc('wQ')
        self.vsw = V.alloc('swz')
        e('v_lshrrev_b32 %s, 3, %s' % (t[3], vlane))
        e('v_and_b32 %s, 7, %s' % (t[4], vlane))
        e('v_lshrrev_b32 %s, 4, %s' % (t[5], vlane))
        e('s_lshl_b32 s98, s4, 6')
        e('s_lshl_b32 s99, s3, 4')
        e('s_add_u32 s98, s98, s99')
        e('v_add_lshl_u32 %s, %s, s98, 10' % (t[6], t[3]))
        e('v_xor_b32 %s, %s, %s' % (t[7], t[4], t[5]))
        e('v_lshl_add_u32 %s, %s, 4, %s' % (self.vxA, t[7], t[6]))
        e('v_and_b32 %s, 1, %s' % (t[5], t[5]))
        e('v_lshlrev_b32 %s, 2, %s' % (t[5], t[5]))
        e('v_xor_b32 %s, %s, %s' % (t[4], t[4], t[5]))
        e('v_lshlrev_b32 %s, 4, %s' % (self.vsw, t[4]))
        e('v_add_u32 %s, s99, %s' % (t[2], t[3]))
        e('v_mul_u32_u24 %s, 3072, %s' % (t[2], t[2]))
        e('s_lshl_b32 s98, s5, 7')
        e('v_add3_u32 %s, %s, s98, %s' % (self.vwA, t[2], self.vsw))
        e('s_mul_i32 s100, s3, 6144')
        if o.get('rot'):
            e('s_lshl_b32 s85, s4, 1')
            e('s_add_u32 s85, s85, s5')
        e('s_mov_b32 s10, 0x%x' % (2048 * 1024))
        e('s_mov_b32 s11, 0x20000')
        e('s_mov_b32 s14, 0x%x' % (512 * 3072))
        e('s_mov_b32 s15, 0x20000')
        e('v_xor_b32 %s, 64, %s' % (self.vxB, self.vxA))
        e('v_add_u32 %s, %d, %s' % (self.vxB, 8192 - 3072, self.vxB))
        e('v_add_u32 %s, %d, %s' % (self.vwB, 24576 + 1024, self.vwA))
        for base, src in ((8, 40), (12, 42)):
            e('s_mov_b32 s%d, s%d' % (base, src))
            e('s_and_b32 s%d, s%d, 0xffff' % (base + 1, src + 1))
        self.kv_dma = {c: [] for c in range(8)}
        self.wq_dma = []
        self.dmaq = []
        for c in range(8):
            self.dmaq += self.chunk_items(c)
        for c in range(8):
            self.dmaq += self.wq_items(c)
        self.dma_pos = 0
        self.release_dma(o.get('win', 14))
        self.stamp('dma0')
        self.bg_flush(4)
        e('s_load_dwordx8 s[44:51], s[0:1], 16')
        e('s_load_dwordx4 s[52:55], s[0:1], 48')
        e('s_load_dwordx2 s[32:33], s[0:1], 64')
        e('s_getpc_b64 s[92:93]')
        e('L_pc:')
        e('s_and_b32 s58, s2, 8')
        e('s_lshr_b32 s58, s58, 1')
        e('s_add_u32 s58, s58, s3')
        e('s_lshl_b32 s58, s58, 12')
        e('v_and_b32 %s, 31, %s' % (t[1], vlane))
        e('v_lshl_add_u32 %s, %s, 7, s58' % (t[1], t[1]))
        e('v_min_u32 %s, L_codeend-L_pc-4, %s' % (t[1], t[1]))
        self.vdummy = V.alloc('dummy')
        e('global_load_dword %s, %s, s[92:93]' % (self.vdummy, t[1]))
        e('s_lshl_b32 s59, s3, 6')
        e('s_add_u32 s92, s92, s59')
        e('s_addc_u32 s93, s93, 0')
        e('s_add_u32 s92, s92, L_tab-L_pc')
        e('s_addc_u32 s93, s93, 0')
        e('s_load_dwordx16 s[56:71], s[92:93], 0')
        self.pace(True)
        e('v_lshlrev_b32 %s, 4, %s' % (vl16, vlane))
        e('v_add_u32 %s, %d, %s' % (self.vwQ, 24576 - 1024, self.vwA))
        e('s_lshl_b32 s101, s3, 11')
        e('s_mov_b32 s38, 0x0000ffff')
        e('s_mov_b32 s39, 0x0000ffff')
        e('s_mov_b32 s96, 0')
        e('s_mov_b32 s97, %d' % SPIN_LIMIT)
        e('v_cmp_eq_u32 vcc, 0, %s' % vlane)
        e('v_mov_b32 %s, 0x%x' % (t[0], OOB))
        e('v_cndmask_b32 %s, %s, 0, vcc' % (self.vflag, t[0]))

    def late_args(self):
        e, t = self.e, self.pt
        for base, src, nbytes in ((16, 44, 512 * 1024), (20, 48, 512 * 3584), (24, 50, 1792 * 1024),
                                  (28, 52, 2048 * 1024)):
            e('s_mov_b32 s%d, s%d' % (base, src))
            e('s_and_b32 s%d, s%d, 0xffff' % (base + 1, src + 1))
            e('s_mov_b32 s%d, 0x%x' % (base + 2, nbytes))
            e('s_mov_b32 s%d, 0x20000' % (base + 3))
        e('s_and_b32 s33, s33, 0xffff')
        e('s_mov_b32 s34, 0x%x' % WS_BYTES)
        e('s_mov_b32 s35, 0x20000')
        e('s_mov_b64 s[36:37], s[54:55]')
        self.pace(False)
        e('s_or_b32 s98, s2, s3')
        e('s_cmp_lg_u32 s98, 0')
        e('s_cbranch_scc1 L_notag')
        e('s_load_dword s98, s[32:33], 0')
        e('s_waitcnt lgkmcnt(0)')
        e('s_mul_i32 s98, s98, 0x9E3779B1')
        e('s_add_u32 s98, s98, 0x7F4A7C15')
        e('s_cmp_lt_u32 s98, 16')
        e('s_cselect_b32 s98, 0x2545F491, s98')
        e('v_mov_b32 %s, s98' % t[0])
        e('v_mov_b32 %s, 0' % t[1])
        e('s_mov_b64 exec, 1')
        if self.o.get('pad0'):
            e('v_mov_b32 %s, s94' % t[2])
            e.raw('    global_store_dword %s, %s, s[36:37] offset:32 sc1' % (t[1], t[2]))
            e.raw('    s_waitcnt vmcnt(0)')
        e.raw('    global_store_dword %s, %s, s[36:37] sc1' % (t[1], t[0]))
        e.raw('    buffer_store_dword %s, %s, s[32:35], 0 offen sc1' % (t[0], t[1]))
        e('s_mov_b64 exec, -1')
        e('s_nop 1')
        e('L_notag:')
        self.pace(True)

    def release_dma(self, upto):
        upto = min(upto, len(self.dmaq))
        while self.dma_pos < upto:
            self.bg.append(self.dmaq[self.dma_pos])
            self.dma_pos += 1

    def chunk_soff(self, c, need_x):
        e = self.e
        if self.o.get('rot'):
            e('s_add_u32 s87, s85, %d' % c)
            e('s_and_b32 s87, s87, 7')
            if need_x:
                e('s_lshl_b32 s86, s87, 7')
            e('s_mul_i32 s87, s87, 196608')
        else:
            if need_x:
                e('s_mov_b32 s86, %d' % (c * 128))
            e('s_mov_b32 s87, %d' % (c * 196608))

    def chunk_items(self, c):
        e = self.e
        base = L_RING + (c % 6) * SLOT
        tk = self.kv_dma[c]

        def i0():
            e('s_add_u32 m0, s100, %d' % base)
            self.chunk_soff(c, True)
            tk.append(e('buffer_load_dwordx4 %s, s[8:11], s86 offen lds' % self.vxA))

        def i4():
            e('s_add_u32 m0, s100, %d' % (base + 4096))
            tk.append(e('buffer_load_dwordx4 %s, s[12:15], s87 offen lds' % self.vwB))
        return [i0,
                lambda: tk.append(e('buffer_load_dwordx4 %s, s[12:15], s87 offen offset:1024 lds' % self.vwA)),
                lambda: tk.append(e('buffer_load_dwordx4 %s, s[12:15], s87 offen offset:2048 lds' % self.vwA)),
                lambda: tk.append(e('buffer_load_dwordx4 %s, s[8:11], s86 offen offset:3072 lds' % self.vxB)),
                i4,
                lambda: tk.append(e('buffer_load_dwordx4 %s, s[12:15], s87 offen offset:1024 lds' % self.vwB))]

    def wq_items(self, c):
        e = self.e

        def i0():
            e('s_add_u32 m0, s101, %d' % (L_WQ + c * 8192))
            self.chunk_soff(c, False)
            self.wq_dma.append(e('buffer_load_dwordx4 %s, s[12:15], s87 offen lds' % self.vwA))
        return [i0, lambda: self.wq_dma.append(
            e('buffer_load_dwordx4 %s, s[12:15], s87 offen offset:1024 lds' % self.vwQ))]

    def p1_kv(self):
        e, V, A = self.e, self.V, self.A
        t = self.pt
        vlane = self.vlane
        WIN = self.o.get('win', 14)
        e('s_and_b32 s40, s3, 1')
        e('s_lshr_b32 s41, s3, 1')
        e('s_lshl_b32 s42, s40, 1')
        e('s_or_b32 s42, s42, s41')
        vx = V.alloc('vx', 4)
        vw = V.alloc('vw', 4)
        self.vtrb = V.alloc('trb')
        self.vq3 = V.alloc('q3')
        vh = self.vh
        e('v_lshrrev_b32 %s, 5, %s' % (vh, vlane))
        e('v_bfe_u32 %s, %s, 3, 1' % (self.vq3, vlane))
        e('v_bfe_u32 %s, %s, 2, 2' % (t[0], vlane))
        e('v_lshlrev_b32 %s, 7, %s' % (t[0], t[0]))
        e('v_bfe_u32 %s, %s, 4, 1' % (t[1], vlane))
        e('v_lshl_add_u32 %s, %s, 5, %s' % (t[0], t[1], t[0]))
        e('v_and_b32 %s, 3, %s' % (t[1], vlane))
        e('v_lshl_add_u32 %s, %s, 3, %s' % (self.vtrb, t[1], t[0]))
        e('v_xor_b32 %s, s41, %s' % (t[1], self.vq3))
        e('v_lshl_add_u32 %s, %s, 6, %s' % (t[1], t[1], self.vtrb))
        e('v_mul_u32_u24 %s, 3072, %s' % (t[2], vh))
        e('v_add_u32 %s, %s, %s' % (t[1], t[1], t[2]))
        e('v_bfe_u32 %s, %s, 4, 1' % (t[2], vlane))
        e('s_lshl_b32 s98, s40, 1')
        e('v_add_u32 %s, s98, %s' % (t[2], t[2]))
        e('v_mul_u32_u24 %s, 6144, %s' % (t[2], t[2]))
        e('v_mul_u32_u24 %s, 3072, %s' % (t[3], self.vq3))
        e('v_and_b32 %s, 7, %s' % (t[7], vlane))
        e('v_lshlrev_b32 %s, 7, %s' % (t[7], t[7]))
        e('v_add3_u32 %s, %s, %s, %s' % (t[2], t[2], t[3], t[7]))
        e('v_add_u32 %s, %d, %s' % (t[2], L_RING, t[2]))
        e('v_bfe_u32 %s, %s, 1, 3' % (t[3], vlane))
        for p in range(4):
            e('s_xor_b32 s98, s42, %d' % p)
            e('s_mul_i32 s99, s98, 6144')
            e('s_add_u32 s99, s99, %d' % L_RING)
            e('v_add_u32 %s, s99, %s' % (vw[p], t[1]))
            e('s_lshl_b32 s98, s98, 1')
            e('v_add_u32 %s, s98, %s' % (t[7], vh))
            e('v_xor_b32 %s, %s, %s' % (t[7], t[7], t[3]))
            e('v_lshl_add_u32 %s, %s, 4, %s' % (vx[p], t[7], t[2]))
        ones = V.alloc('ones', 2, 2)
        self.ones = ones
        e('v_mov_b32 %s, 0x3f803f80' % ones[0])
        e('v_mov_b32 %s, 0x3f803f80' % ones[1])
        X = A.alloc('X', 128, at=0)
        self.X = X
        accK = V.alloc('accK', 16, at=48)
        accV = V.alloc('accV', 16, at=64)
        sm = V.alloc('smalls', 16, at=80)
        WB = V.alloc('WB', 32, at=96)
        self.HV = V.alloc('HV', 64, at=192)
        self.OWN = A.alloc('OWN', 32, at=224)
        for n in range(4):
            e('s_add_u32 s98, s4, %d' % n)
            e('s_cmp_ge_u32 s98, 4')
            e('s_cselect_b32 s98, 0x3f803f80, 0')
            for r in range(16):
                e('v_mov_b32 %s, s98' % self.HV[n * 16 + r])
        for r in range(16):
            e('v_accvgpr_write_b32 %s, %s' % (self.OWN[8 + r], ones[0]))
        self.late_args()
        a0, a1 = V.alloc('a0', 2), V.alloc('a1', 2)
        e('v_and_b32 %s, 31, %s' % (t[0], vlane))
        e('s_lshl_b32 s98, s40, 10')
        e('v_lshl_add_u32 %s, %s, 5, s98' % (a0[0], t[0]))
        e('s_lshl_b32 s98, s41, 4')
        e('v_lshl_add_u32 %s, %s, 3, s98' % (t[1], vh))
        e('v_add_u32 %s, %s, %s' % (a0[1], a0[0], t[1]))
        e('s_lshl_b32 s98, s41, 9')
        e('v_lshl_add_u32 %s, %s, 4, s98' % (a1[0], t[0]))
        e('s_lshl_b32 s98, s40, 3')
        e('v_lshl_add_u32 %s, %s, 2, s98' % (t[1], vh))
        e('v_add_u32 %s, %s, %s' % (a1[1], a1[0], t[1]))
        e('v_sub_u32 %s, 1, %s' % (self.hz, vh))
        e('v_cvt_f32_u32 %s, %s' % (self.hz, self.hz))
        rsa = V.alloc('rsa', 2, at=164)
        e('s_lshl_b32 s98, s3, 7')
        e('v_lshl_add_u32 %s, %s, 2, s98' % (rsa[0], t[0]))
        e('v_lshl_add_u32 %s, %s, 4, s98' % (rsa[1], vh))
        vkg, vvg, vkx, vvx = (V.alloc('vkg', at=160), V.alloc('vvg', at=161), V.alloc('vkx', at=162),
                              V.alloc('vvx', at=163))
        e('s_lshl_b32 s98, s41, 13')
        e('s_lshl_b32 s99, s40, 11')
        e('s_add_u32 s98, s98, s99')
        e('v_add_u32 %s, s98, %s' % (vkg, self.vl16))
        e('v_and_b32 %s, 15, %s' % (t[0], vlane))
        e('v_lshl_add_u32 %s, %s, 4, %s' % (t[0], vh, t[0]))
        self.vidx16 = V.alloc('idx16')
        e('v_lshlrev_b32 %s, 4, %s' % (self.vidx16, t[0]))
        e('v_bfe_u32 %s, %s, 4, 1' % (t[1], vlane))
        e('v_lshl_add_u32 %s, %s, 12, %s' % (t[2], t[1], self.vidx16))
        e('v_add_u32 %s, s98, %s' % (vvg, t[2]))
        e('s_lshr_b32 s98, s98, 1')
        e('v_add_u32 %s, s98, %s' % (vkx, self.vl16))
        e('v_lshl_add_u32 %s, %s, 11, %s' % (t[2], t[1], self.vidx16))
        e('v_add_u32 %s, s98, %s' % (vvx, t[2]))
        e('v_add_u32 %s, %d, %s' % (vvx, L_VX, vvx))
        self.vqx = self.vw2[0]
        e('v_add_u32 %s, %d, %s' % (self.vqx, L_QX, vkx))
        e('v_add_u32 %s, %d, %s' % (vkx, L_KX, vkx))
        e('s_lshl_b32 s43, s4, 3')
        e('s_add_u32 s43, s43, s5')
        e('s_lshl_b32 s44, s43, 14')
        e('s_add_u32 s44, s44, 0x%x' % WS_KV)
        e('s_add_u32 s45, s44, 4096')
        e('s_lshl_b32 s46, s3, 12')
        vt = self.vw2[1]
        e('v_mov_b32 %s, 0' % vt)

        state = {'shift': 0}

        def slot_off(c):
            return (c % 6) * SLOT

        def reads(p_abs):
            c, p = divmod(p_abs, 4)
            off = slot_off(c) - state['shift']
            buf = WB.sub((p_abs % 4) * 8, 8)
            assert 0 <= off and off + 5632 + 512 < 65536, off
            return [
                'ds_read_b128 %s, %s offset:%d' % (X.sub(4 * p_abs, 4), vx[p], off),
                'ds_read_b64_tr_b16 %s, %s offset:%d' % (buf.sub(0, 2), vw[p], off + 1024),
                'ds_read_b64_tr_b16 %s, %s offset:%d' % (buf.sub(2, 2), vw[p], off + 1024 + 512),
                'ds_read_b64_tr_b16 %s, %s offset:%d' % (buf.sub(4, 2), vw[p], off + 2048),
                'ds_read_b64_tr_b16 %s, %s offset:%d' % (buf.sub(6, 2), vw[p], off + 2048 + 512),
            ]

        def shift_ops(c, p):
            want = (slot_off(c) // (2 * SLOT)) * 2 * SLOT
            prev = (slot_off(c - 1) // (2 * SLOT)) * 2 * SLOT if c else 0
            state['shift'] = want
            d = want - prev
            if d == 0:
                return []
            f = 'v_add_u32 %s, %d, %s' if d > 0 else 'v_subrev_u32 %s, %d, %s'
            return [f % (vx[p], abs(d), vx[p]), f % (vw[p], abs(d), vw[p])]

        def bigs(p_abs):
            buf = WB.sub((p_abs % 4) * 8, 8)
            x = X.sub(4 * p_abs, 4)
            c0 = '0' if p_abs == 0 else None
            return ['v_mfma_f32_32x32x16_bf16 %s, %s, %s, %s' % (accK, buf.sub(0, 4), x, c0 or accK),
                    'v_mfma_f32_32x32x16_bf16 %s, %s, %s, %s' % (accV, x, buf.sub(4, 4), c0 or accV)]

        def smalls(p_abs):
            p = p_abs % 4
            buf = WB.sub((p_abs % 4) * 8, 8)
            x = X.sub(4 * p_abs, 4)
            first = p_abs == 0
            M = 'v_mfma_f32_4x4x4_16b_bf16 %s, %s, %s, %s'
            a = []
            b = []
            if p & 1 == 0:
                a += [M % (sm.sub(0, 4), x.sub(0, 2), x.sub(0, 2), '0' if first else sm.sub(0, 4)),
                      M % (sm.sub(4, 4), ones, x.sub(0, 2), '0' if first else sm.sub(4, 4))]
                b += [M % (sm.sub(0, 4), x.sub(2, 2), x.sub(2, 2), sm.sub(0, 4)),
                      M % (sm.sub(4, 4), ones, x.sub(2, 2), sm.sub(4, 4))]
            if p & 2 == 0:
                a += [M % (sm.sub(8, 4), ones, buf.sub(0, 2), '0' if first else sm.sub(8, 4)),
                      M % (sm.sub(12, 4), ones, buf.sub(4, 2), '0' if first else sm.sub(12, 4))]
                b += [M % (sm.sub(8, 4), ones, buf.sub(2, 2), sm.sub(8, 4)),
                      M % (sm.sub(12, 4), ones, buf.sub(6, 2), sm.sub(12, 4))]
            if len(a) == 2:
                return a + ['s_nop 0'] + b
            return a + b

        last_read = [None]

        def barrier_for(c):
            self.bg_until(lambda: len(self.kv_dma[c]) == 6)
            self.pace(False)
            e('s_barrier', wait_vm=self.kv_dma[c], wait_lgkm=[last_read[0]] if last_read[0] else None)
            self.pace(True)
            if self.o.get('chunkstamps'):
                self.stamp('c%d' % c)
            lim = 6 * (c + 1) + WIN
            space = {0: 36, 1: 42, 2: 48, 3: 54, 4: 60}.get(c, 64)
            self.release_dma(min(lim, space))
            if c == 5:
                self.bg.append(lambda: setattr(self, 'tagld', e(
                    'global_load_dword %s, %s, s[36:37] sc1' % (self.vtag, vt))))

        def rd(p_abs):
            c, p = divmod(p_abs, 4)
            out = shift_ops(c, p)
            return out + reads(p_abs)

        barrier_for(0)
        self.stamp('chunk0')
        for s in rd(0) + rd(1):
            last_read[0] = e(s)
        for p_abs in range(28):
            nxt = p_abs + 2
            if nxt % 4 == 0:
                barrier_for(nxt // 4)
            r = rd(nxt)
            big = bigs(p_abs)
            e(big[0])
            h = len(r) - 2
            for s in r[:h]:
                last_read[0] = e(s)
            e(big[1])
            for s in r[h:]:
                last_read[0] = e(s)
            for s in smalls(p_abs):
                e(s)
        for s in rd(30)[:] + rd(31):
            last_read[0] = e(s)
        lr = last_read[0]
        for p_abs in (28, 29, 30):
            for s in smalls(p_abs):
                e(s)
        big_rest = bigs(28) + bigs(29) + bigs(30) + bigs(31)
        e(big_rest[0])
        e('s_mov_b32 s98, 0xaaaaaaaa')
        e('s_mov_b32 s99, 0xaaaaaaaa')
        e('s_mov_b32 vcc_lo, 0xcccccccc')
        e('s_mov_b32 vcc_hi, 0xcccccccc')
        e('v_cndmask_b32 %s, %s, %s, s[98:99]' % (t[2], sm[0], sm[1]))
        e('v_cndmask_b32 %s, %s, %s, s[98:99]' % (t[3], sm[2], sm[3]))
        e('v_cndmask_b32 %s, %s, %s, vcc' % (sm[5], t[2], t[3]))
        adds = [e('ds_write_b64 %s, %s offset:%d' % (a0[1], sm.sub(4, 2), L_ST)),
                e('ds_write_b32 %s, %s offset:%d' % (a1[1], sm[8], L_CS + 1024)),
                e('ds_write_b32 %s, %s offset:%d' % (a1[1], sm[12], L_CS + 2048))]
        e(big_rest[1])
        self.pace(False)
        e('s_barrier', wait_lgkm=adds + [lr])
        self.pace(True)
        self.release_dma(64)
        stb = V.alloc('stb', 16, at=128)
        e('ds_read_b128 %s, %s offset:%d' % (stb.sub(0, 4), a0[0], L_ST))
        e('ds_read_b128 %s, %s offset:%d' % (stb.sub(4, 4), a0[0], L_ST + 16))
        e(big_rest[2])
        e('ds_read_b128 %s, %s offset:%d' % (stb.sub(8, 4), a1[0], L_CS + 1024))
        e('ds_read_b128 %s, %s offset:%d' % (stb.sub(12, 4), a1[0], L_CS + 2048))
        self.csaddr = a1
        st = V.alloc('st', 2, at=156)
        csk, csv = V.alloc('csk', at=158), V.alloc('csv', at=159)
        mB = V.alloc('mB', 4, at=152)
        cK = V.alloc('cK', 4, at=144)
        cV = V.alloc('cV', 4, at=148)
        rs = V.alloc('rs', 2, 2)
        self.mB, self.rs = mB, rs
        rT = sm
        chain = [
            'v_add_f32 %s, %s, %s' % (stb[0], stb[0], stb[2]),
            'v_add_f32 %s, %s, %s' % (stb[1], stb[1], stb[3]),
            'v_add_f32 %s, %s, %s' % (stb[4], stb[4], stb[6]),
            'v_add_f32 %s, %s, %s' % (stb[5], stb[5], stb[7]),
            'v_add_f32 %s, %s, %s' % (st[0], stb[0], stb[4]),
            'v_add_f32 %s, %s, %s' % (st[1], stb[1], stb[5]),
            'v_mul_f32 %s, %s, %s' % (st[0], hexf(-1.0 / 512), st[0]),
            'v_mul_f32 %s, %s, %s' % (st[1], hexf(1.0 / 512), st[1]),
            'v_fma_f32 %s, -%s, %s, %s' % (st[1], st[0], st[0], st[1]),
            'v_max_f32 %s, 0, %s' % (st[1], st[1]),
            'v_add_f32 %s, %s, %s' % (st[1], hexf(1e-5), st[1]),
            'v_rsq_f32 %s, %s' % (rs[0], st[1]),
            'v_add_f32 %s, %s, %s' % (stb[8], stb[8], stb[9]),
            lambda: setattr(self, 'rsw', e('ds_write_b32 %s, %s offset:%d' % (rsa[0], rs[0], L_RS))),
            'v_add_f32 %s, %s, %s' % (stb[10], stb[10], stb[11]),
            'v_add_f32 %s, %s, %s' % (stb[12], stb[12], stb[13]),
            'v_add_f32 %s, %s, %s' % (stb[14], stb[14], stb[15]),
            'v_add_f32 %s, %s, %s' % (csk, stb[8], stb[10]),
            'v_add_f32 %s, %s, %s' % (csv, stb[12], stb[14]),
        ]
        aug = self.aug_ops(mB, st[0], t[6], False) + \
            ['v_mul_f32 %s, %s, %s' % (csk, self.hz, csk), 'v_mul_f32 %s, %s, %s' % (csv, self.hz, csv)] + \
            self.aug_ops(cK, csk, t[6], True) + self.aug_ops(cV, csv, t[7], True)

        def rdT(g):
            return lambda: e('ds_read_b128 %s, %s offset:%d' % (rT.sub(4 * g, 4), rsa[1], L_RS + 32 * g),
                             wait_lgkm=[self.rsw] if g == 0 else None)
        self.weave(e, big_rest[3:], chain + aug[:7] + [rdT(0), rdT(1)] + aug[7:12] + [rdT(2), rdT(3)] + aug[12:])
        e('v_mfma_f32_32x32x16_bf16 %s, %s, %s, %s' % (accK, cK, mB, accK))
        e('v_mfma_f32_32x32x16_bf16 %s, %s, %s, %s' % (accV, mB, cV, accV))
        self.pace(False)
        PK = WB
        st_tok = []
        for hd in range(2):
            for r in range(8 * hd, 8 * hd + 8):
                e('v_mul_f32 %s, %s, %s' % (accK[r], rs[0], accK[r]))
            for r in range(4 * hd, 4 * hd + 4):
                e('v_cvt_pk_bf16_f32 %s, %s, %s' % (PK[r], accK[2 * r], accK[2 * r + 1]))
            st_tok.append(e('buffer_store_dwordx4 %s, %s, s[32:35], s%d offen sc1' % (PK.sub(4 * hd, 4), vkg, 44 + hd)))
        for m in range(2):
            for r in range(8 * m, 8 * m + 8, 2):
                e('v_pk_mul_f32 %s, %s, %s' % (accV.sub(r, 2), accV.sub(r, 2), rT.sub(r, 2)))
            for r in range(4 * m, 4 * m + 4):
                e('v_cvt_pk_bf16_f32 %s, %s, %s' % (PK[8 + r], accV[2 * r], accV[2 * r + 1]))
            st_tok.append(e('buffer_store_dwordx4 %s, %s, s[32:35], s44 offen offset:%d sc1' % (
                PK.sub(8 + 4 * m, 4), vvg, 1024 + 512 * m)))
        self.kv_st = st_tok
        self.stamp('kvpub')
        self.xw = [e('ds_write_b128 %s, %s' % (vkx, PK.sub(0, 4))),
                   e('ds_write_b128 %s, %s offset:2048' % (vkx, PK.sub(4, 4))),
                   e('ds_write_b128 %s, %s' % (vvx, PK.sub(8, 4))),
                   e('ds_write_b128 %s, %s offset:512' % (vvx, PK.sub(12, 4)))]
        V.release('accK', 'accV', 'st', 'csk', 'csv', 'cK', 'cV', 'stb', 'vkg', 'vvg', 'vkx', 'vvx', 'rsa',
                  'xA', 'xB', 'wB', 'vx', 'a0')
        self.vw, self.WB, self.sm, self.vt = vw, WB, sm, vt

    def aug_ops(self, dst, val, tmp, dup):
        ops = ['v_cvt_pk_bf16_f32 %s, %s, %s' % (dst[0], val, val),
               'v_and_b32 %s, 0xffff0000, %s' % (tmp, dst[0]),
               'v_sub_f32 %s, %s, %s' % (tmp, val, tmp)]
        if dup:
            ops += ['v_cvt_pk_bf16_f32 %s, %s, %s' % (dst[1], tmp, tmp)]
        else:
            ops += ['v_cvt_pk_bf16_f32 %s, %s, %s' % (dst[0], val, tmp),
                    'v_mov_b32 %s, %s' % (dst[1], dst[0])]
        ops += ['v_mov_b32 %s, 0' % dst[2], 'v_mov_b32 %s, 0' % dst[3]]
        return ops

    def img_dma(self, vq, srd, stride, lds_base, groups, sbase):
        e = self.e
        out = []
        toks = []
        for g in groups:
            for k in range(4):
                def f(g=g, k=k):
                    if k == 0:
                        e('s_add_u32 m0, s46, %d' % (lds_base + g * 16384))
                        e('s_add_u32 s87, %s, %d' % (sbase, g * 128 * stride))
                    toks.append(e('buffer_load_dwordx4 %s, %s, s87 offen offset:%d lds' % (vq[k], srd, k * 1024)))
                out.append(f)
        return out, toks

    def img_voff(self, name, stride):
        e, V = self.e, self.V
        vq = V.alloc(name, 4)
        ops = ['v_lshrrev_b32 %s, 3, %s' % (vq[0], self.vlane),
               's_lshl_b32 s98, s3, 5',
               'v_add_u32 %s, s98, %s' % (vq[0], vq[0]),
               'v_mul_u32_u24 %s, %d, %s' % (vq[0], stride, vq[0]),
               'v_add_u32 %s, %s, %s' % (vq[0], vq[0], self.vsw)]
        for k in range(1, 4):
            ops.append('v_add_u32 %s, %d, %s' % (vq[k], k * (8 * stride - 1024), vq[0]))
        return vq, ops

    def p1_q(self):
        e, V, A = self.e, self.V, self.A
        t, vlane, vh = self.pt, self.vlane, self.vh
        vw, WB, sm, X, ones = self.vw, self.WB, self.sm, self.X, self.ones
        self.pace(True)
        e('v_xor_b32 %s, s41, %s' % (t[1], self.vq3))
        e('v_lshl_add_u32 %s, %s, 6, %s' % (t[1], t[1], self.vtrb))
        e('v_lshl_add_u32 %s, %s, 10, %s' % (t[1], vh, t[1]))
        for p in range(4):
            e('s_xor_b32 s98, s42, %d' % p)
            e('s_lshl_b32 s98, s98, 11')
            e('s_add_u32 s98, s98, %d' % L_WQ)
            e('v_add_u32 %s, s98, %s' % (vw[p], t[1]))
        vwo, ops = self.img_voff('vwo', 1024)
        for s in ops:
            e(s)
        self.vwo = vwo
        e('s_mul_i32 s47, s43, 2341')
        e('s_lshr_b32 s47, s47, 16')
        e('s_mul_i32 s98, s47, 28')
        e('s_sub_u32 s48, s43, s98')
        e('s_cmp_lt_u32 s43, 224')
        e('s_cselect_b32 s49, 0, 0x%x' % OOB)
        vs = V.alloc('vside', 4, at=128)
        e('v_lshrrev_b32 %s, 3, %s' % (t[0], vlane))
        e('s_lshl_b32 s98, s3, 4')
        e('v_add_u32 %s, s98, %s' % (t[0], t[0]))
        e('v_mul_u32_u24 %s, 3584, %s' % (vs[0], t[0]))
        e('v_add_u32 %s, %s, %s' % (vs[0], vs[0], self.vsw))
        e('v_add_u32 %s, %d, %s' % (vs[1], 8 * 3584 - 1024, vs[0]))
        e('v_lshl_add_u32 %s, %s, 10, %s' % (vs[2], t[0], self.vsw))
        e('v_add_u32 %s, %d, %s' % (vs[3], 8192 - 1024, vs[2]))
        e('s_mul_i32 s98, s47, %d' % (64 * 3584))
        e('s_lshl_b32 s99, s48, 7')
        e('s_add_u32 s98, s98, s99')
        e('s_add_u32 s90, s98, s49')
        e('s_lshl_b32 s99, s48, 16')
        e('s_lshl_b32 s98, s47, 7')
        e('s_add_u32 s98, s98, s99')
        e('s_add_u32 s91, s98, s49')
        e('s_lshl_b32 s50, s5, 7')
        side = []
        self.side_dma = side

        def sd0():
            e('s_add_u32 m0, s46, %d' % (L_SIDE + 2048))
            e('s_nop 0')
            side.append(e('buffer_load_dwordx4 %s, s[24:27], s91 offen lds' % vs[2]))

        def sd2():
            e('s_add_u32 m0, s46, %d' % L_SIDE)
            e('s_nop 0')
            side.append(e('buffer_load_dwordx4 %s, s[20:23], s90 offen lds' % vs[0]))
        side_items = [sd0, lambda: side.append(e('buffer_load_dwordx4 %s, s[24:27], s91 offen offset:1024 lds' % vs[3])),
                      sd2, lambda: side.append(e('buffer_load_dwordx4 %s, s[20:23], s90 offen offset:1024 lds' % vs[1]))]
        wo_f, self.wo_tok = self.img_dma(vwo, 's[16:19]', 1024, L_WO, [0, 1, 2], 's50')
        wo_f3, wo_tok3 = self.img_dma(vwo, 's[16:19]', 1024, L_WO, [3], 's50')
        self.wo_tok3 = wo_tok3
        accQ = V.alloc('accQ', 16, at=48)
        QB = V.alloc('QB', 16, at=64)

        def reads(p_abs):
            c, p = divmod(p_abs, 4)
            buf = QB.sub((p_abs % 4) * 4, 4)
            return ['ds_read_b64_tr_b16 %s, %s offset:%d' % (buf.sub(0, 2), vw[p], c * 8192),
                    'ds_read_b64_tr_b16 %s, %s offset:%d' % (buf.sub(2, 2), vw[p], c * 8192 + 512)]

        def big(p_abs):
            buf = QB.sub((p_abs % 4) * 4, 4)
            return 'v_mfma_f32_32x32x16_bf16 %s, %s, %s, %s' % (accQ, buf, X.sub(4 * p_abs, 4),
                                                                '0' if p_abs == 0 else accQ)

        def smalls(p_abs):
            if p_abs & 2:
                return []
            buf = QB.sub((p_abs % 4) * 4, 4)
            M = 'v_mfma_f32_4x4x4_16b_bf16 %s, %s, %s, %s'
            return [M % (sm.sub(0, 4), ones, buf.sub(0, 2), '0' if p_abs == 0 else sm.sub(0, 4)),
                    M % (sm.sub(4, 4), ones, buf.sub(2, 2), '0' if p_abs == 0 else sm.sub(4, 4))]

        self.bg_flush()
        self.pace(False)
        e('s_barrier', wait_vm=self.wq_dma)
        self.stamp('wq')
        self.bg.extend(side_items + wo_f)
        self.pace(True)
        for s in reads(0) + reads(1) + reads(2):
            e(s)
        Cl = V.alloc('Cl', 16, at=160)
        Cu = V.alloc('Cu', 16, at=176)
        self.Cl, self.Cu = Cl, Cu
        BIG = 2.0 ** 100
        fill = ['v_and_b32 %s, 31, %s' % (t[0], vlane),
                'v_lshlrev_b32 %s, 2, %s' % (t[1], vh),
                'v_sub_u32 %s, %s, %s' % (t[0], t[0], t[1]),
                'v_cvt_f32_i32 %s, %s' % (t[0], t[0]),
                'v_mov_b32 %s, %s' % (t[1], hexf(BIG)),
                'v_mov_b32 %s, %s' % (t[2], hexf(-BIG))]
        for r in range(16):
            cr = (r & 3) + 8 * (r >> 2)
            fill += ['v_fmaak_f32 %s, %s, %s, %s' % (Cl[r], t[0], t[1], hexf(-cr * BIG)),
                     'v_fmaak_f32 %s, %s, %s, %s' % (Cu[r], t[0], t[2], hexf((cr - 1) * BIG)),
                     'v_min_f32 %s, 0, %s' % (Cl[r], Cl[r]),
                     'v_min_f32 %s, 0, %s' % (Cu[r], Cu[r])]

        def tag_and_flag():
            vt = self.vt
            self.pace(False)
            e('v_cmp_eq_u32 vcc, 0, %s' % self.vtag)
            e('s_lshl_b32 s98, s43, 2')
            e('s_cbranch_vccnz L_tagspin')
            e('L_tagok:')
            self.tail.append(
                'L_tagspin:\n    global_load_dword %s, %s, s[36:37] sc1\n    s_add_u32 s96, s96, 1\n'
                '    s_cmp_gt_u32 s96, s97\n    s_waitcnt vmcnt(0)\n    s_cbranch_scc1 L_tagok\n'
                '    v_cmp_eq_u32 vcc, 0, %s\n    s_nop 1\n    s_cbranch_vccnz L_tagspin\n    s_branch L_tagok\n'
                % (self.vtag, vt, self.vtag))
            e('s_add_u32 s98, s98, s3')
            e('s_lshl_b32 s98, s98, 7')
            e('s_add_u32 s98, s98, 0x%x' % WS_KVF)
            e('buffer_store_dword %s, %s, s[32:35], s98 offen sc1' % (self.vtag, self.vflag), wait_vm=self.kv_st)
            self.stamp('kvflag')
            e('v_readfirstlane_b32 s6, %s' % self.vtag)
            self.pace(True)

        def xccpub():
            vt = self.vt
            e('s_getreg_b32 s51, hwreg(HW_REG_XCC_ID, 0, 4)')
            e('s_lshr_b32 s98, s43, 4')
            e('s_lshl_b32 s52, s98, 7')
            e('s_add_u32 s52, s52, 0x%x' % WS_XCC)
            e('s_and_b32 s98, s43, 15')
            e('s_lshl_b32 s98, s98, 2')
            e('s_add_u32 s98, s98, s52')
            e('s_cmp_eq_u32 s3, 0')
            e('s_cselect_b32 s98, s98, 0x%x' % OOB)
            e('v_xor_b32 %s, s51, %s' % (vt, self.vtag))
            e('buffer_store_dword %s, %s, s[32:35], s98 offen sc1' % (vt, self.vflag))

        nfill = len(fill)
        pos = 0
        FLAG_AT = self.o.get('kvflag_at', 10)
        for p_abs in range(28):
            e(big(p_abs))
            for s in reads(p_abs + 3):
                e(s)
            upto = min(nfill, (nfill * (p_abs + 1) + 25) // 26)
            while pos < upto:
                e(fill[pos])
                pos += 1
            if p_abs == FLAG_AT:
                tag_and_flag()
            if p_abs == FLAG_AT + 2:
                xccpub()
            for s in smalls(p_abs):
                e(s)
        for s in smalls(28):
            e(s)
        lr = None
        for s in smalls(29):
            e(s)
        for s in reads(31):
            lr = e(s)
        e(big(28))
        e('v_add_f32 %s, %s, %s' % (t[3], sm[0], sm[4]))
        ad = e('ds_write_b32 %s, %s offset:%d' % (self.csaddr[1], t[3], L_CS))
        e(big(29))
        self.pace(False)
        e('s_barrier', wait_lgkm=[ad, lr])
        self.bg.extend(wo_f3)
        self.pace(True)
        cq4 = sm.sub(8, 4)
        cQ = V.alloc('cQ', 4, at=144)
        e('ds_read_b128 %s, %s offset:%d' % (cq4, self.csaddr[0], L_CS))
        e(big(30))
        vr = V.alloc('vr', 3, at=132)
        e('v_add_u32 %s, s101, %s' % (vr[0], self.vl16))
        e('v_add_u32 %s, %d, %s' % (vr[1], L_KX, vr[0]))
        e('v_add_u32 %s, s101, %s' % (vr[2], self.vidx16))
        e('v_add_u32 %s, %d, %s' % (vr[2], L_VX, vr[2]))
        e('v_mul_f32 %s, %s, %s' % (self.rs[0], hexf(0.25 * LOG2E), self.rs[0]))
        e(big(31))
        e('v_add_f32 %s, %s, %s' % (cq4[0], cq4[0], cq4[1]))
        e('v_add_f32 %s, %s, %s' % (cq4[2], cq4[2], cq4[3]))
        e('v_add_f32 %s, %s, %s' % (cq4[0], cq4[0], cq4[2]))
        e('v_mul_f32 %s, %s, %s' % (cq4[0], self.hz, cq4[0]))
        for s in self.aug_ops(cQ, cq4[0], t[3], True):
            e(s)
        e('v_mfma_f32_32x32x16_bf16 %s, %s, %s, %s' % (accQ, cQ, self.mB, accQ))
        OWN = self.OWN
        e('ds_read_b128 %s, %s offset:1024' % (OWN.sub(4, 4), vr[1]))
        e('ds_read_b128 %s, %s' % (OWN.sub(0, 4), vr[1]))
        self.pace(False)
        e('s_mov_b64 exec, s[38:39]')
        e('ds_read_b128 %s, %s offset:1024' % (OWN.sub(16, 4), vr[2]))
        e('ds_read_b128 %s, %s offset:1536' % (OWN.sub(20, 4), vr[2]))
        e('ds_read_b128 %s, %s' % (OWN.sub(8, 4), vr[2]))
        e('ds_read_b128 %s, %s offset:512' % (OWN.sub(12, 4), vr[2]))
        e('s_mov_b64 exec, -1')
        self.pace(True)
        w = []
        for hd in range(2):
            for r in range(8 * hd, 8 * hd + 8, 2):
                e('v_pk_mul_f32 %s, %s, %s op_sel_hi:[1,0]' % (accQ.sub(r, 2), accQ.sub(r, 2), self.rs))
            for r in range(4 * hd, 4 * hd + 4):
                e('v_cvt_pk_bf16_f32 %s, %s, %s' % (QB[r], accQ[2 * r], accQ[2 * r + 1]))
            w.append(e('ds_write_b128 %s, %s offset:%d' % (self.vqx, QB.sub(4 * hd, 4), 2048 * hd)))
        self.pace(False)
        e('s_barrier', wait_lgkm=w)
        self.pace(True)
        e('ds_read_b128 %s, %s offset:%d' % (OWN.sub(28, 4), vr[0], L_QX + 1024))
        e('ds_read_b128 %s, %s offset:%d' % (OWN.sub(24, 4), vr[0], L_QX))
        self.stamp('qdone')
        assert len(side) == 4, 'side DMAs must be issued before their address registers are released'
        V.release('accQ', 'QB', 'cQ', 'vr', 'mB', 'rs', 'a1', 'vw', 'wA', 'wQ', 'WB', 'dummy', 'smalls', 'vside')
        A.release('X')

    def kfrag(self, s):
        return self.HK.sub(4 * s, 4) if s < 8 else self.OWN.sub(4 * (s - 8), 4)

    def vfrag(self, s, m):
        return self.HV.sub(8 * s + 4 * m, 4) if s < 8 else self.OWN.sub(8 + 8 * (s - 8) + 4 * m, 4)

    def qfrag(self, qb):
        return self.OWN.sub(24 + 4 * qb, 4)

    def cmask(self, s, qb):
        if s == qb:
            return str(self.Cu)
        if s == qb + 8:
            return str(self.Cl)
        return '0'

    def attn_run(self, e, blocks, S, P, O, first, fill_at, cfun=None, last_pv=True):
        cfun = cfun or self.cmask

        def smf(n):
            s, qb = blocks[n]
            if s < 8 and e is self.e:
                self.bg_until(lambda: (s, 2) in self.halo_done or (s, 0) in self.halo_done)
            return 'v_mfma_f32_32x32x16_bf16 %s, %s, %s, %s' % (S[n % 2], self.kfrag(s), self.qfrag(qb), cfun(s, qb))

        def pv(n, m):
            s, qb = blocks[n]
            if s < 8 and e is self.e:
                self.bg_until(lambda: (s, 1) in self.halo_done)
            c = O[qb]
            if qb in first:
                first.discard(qb)
                c = '0'
            return 'v_mfma_f32_32x32x16_bf16 %s, %s, %s, %s' % (O[qb], self.vfrag(s, m), P.sub(4 * m, 4), c)

        e(smf(0))
        pending = None
        for n in range(len(blocks)):
            s_ = S[n % 2]
            fl = list(fill_at.get(n, []))
            ex = ['v_exp_f32 %s, %s' % (s_[r], s_[r]) for r in range(16)]
            cv = ['v_cvt_pk_bf16_f32 %s, %s, %s' % (P[r], s_[2 * r], s_[2 * r + 1]) for r in range(8)]
            if n == 0 and len(blocks) > 1:
                e(smf(1))
                for f in fl:
                    f() if callable(f) else e(f)
                fl = []
            e(ex[0])
            e(ex[1])
            if pending:
                e(pending)
                pending = None
            for s in ex[2:5]:
                e(s)
            if n > 0 and n + 1 < len(blocks):
                e(smf(n + 1))
            for s in ex[5:8]:
                e(s)
            for s in cv[0:4]:
                e(s)
            e(ex[8])
            e(ex[9])
            e(pv(n, 0))
            for f in fl:
                f() if callable(f) else e(f)
            for s in ex[10:16]:
                e(s)
            for s in cv[4:8]:
                e(s)
            pending = pv(n, 1)
        return pending

    def attention(self):
        e, V, A = self.e, self.V, self.A
        t, vlane, vh = self.pt, self.vlane, self.vh
        ones = self.ones
        self.HK = V.alloc('HK', 32, at=128)
        S = [V.alloc('S0', 16, at=48), V.alloc('S1', 16, at=64)]
        P = V.alloc('P', 8, at=112)
        O = [V.alloc('O0', 16, at=80), V.alloc('O1', 16, at=96)]
        self.S, self.P, self.O = S, P, O
        first = {0, 1}
        own = [(9, 1), (8, 1), (8, 0)]
        vhk, vhv, vpf = V.alloc('vhk'), V.alloc('vhv'), V.alloc('vpf')
        vsr = V.alloc('vsr', 2)
        prep = ['v_add_u32 %s, s46, %s' % (vhk, self.vl16),
                'v_add_u32 %s, s46, %s' % (vhv, self.vidx16),
                'v_bfe_u32 %s, %s, 1, 2' % (t[0], vlane),
                'v_lshlrev_b32 %s, 12, %s' % (t[2], t[0]),
                'v_and_b32 %s, 1, %s' % (t[1], vlane),
                'v_lshl_add_u32 %s, %s, 7, %s' % (vpf, t[1], t[2]),
                'v_add_u32 %s, s4, %s' % (t[0], t[0]),
                'v_cmp_le_u32 s[54:55], 4, %s' % t[0],
                's_sub_u32 s98, s43, 32',
                's_lshl_b32 s98, s98, 9',
                's_lshl_b32 s99, s41, 8',
                's_add_u32 s98, s98, s99',
                's_add_u32 s53, s98, 0x%x' % WS_KVF]
        for n in range(4):
            prep += ['s_add_u32 s99, s4, %d' % n,
                     's_add_u32 s98, s44, %d' % ((n - 4) * 131072 & 0xffffffff),
                     's_cmp_ge_u32 s99, 4',
                     's_cselect_b32 s%d, s98, 0x%x' % (76 + n, OOB)]
        prep2 = ['v_lshl_add_u32 %s, %s, 9, %s' % (t[0], vh, self.vtrb),
                 'v_add_u32 %s, s46, %s' % (t[0], t[0]),
                 'v_add_u32 %s, %d, %s' % (t[0], L_SIDE, t[0]),
                 'v_lshl_add_u32 %s, %s, 6, %s' % (vsr[0], self.vq3, t[0]),
                 'v_xor_b32 %s, 64, %s' % (vsr[1], vsr[0]),
                 's_mul_i32 s98, s47, %d' % (112 * 2048),
                 's_lshl_b32 s99, s48, 13',
                 's_add_u32 s98, s98, s99',
                 's_add_u32 s98, s98, s101',
                 's_add_u32 s98, s98, s49',
                 's_add_u32 s91, s98, 0x%x' % WS_W2P,
                 's_lshl_b32 s98, s47, 9',
                 's_lshl_b32 s99, s48, 4',
                 's_add_u32 s98, s98, s99',
                 's_lshl_b32 s99, s3, 2',
                 's_add_u32 s98, s98, s99',
                 's_add_u32 s98, s98, s49',
                 's_add_u32 s80, s98, 0x%x' % WS_W2F,
                 's_lshl_b32 s99, s48, 12',
                 's_lshl_b32 s98, s47, 3',
                 's_add_u32 s98, s98, s99',
                 's_add_u32 s98, s98, s49',
                 's_add_u32 s98, s98, 0x%x' % WS_CSP,
                 's_cmp_eq_u32 s3, 0',
                 's_cselect_b32 s90, s98, 0x%x' % OOB]
        pend = self.attn_run(e, own, S, P, O, first, {0: prep, 2: prep2})
        sb, sm = S[0], S[1]
        self.bg_flush()
        self.pace(False)
        e.wait(vm=self.side_dma)
        for pc in (1, 0):
            for nt in range(2):
                for u in range(2):
                    e('ds_read_b64_tr_b16 %s, %s offset:%d' % (sb.sub(pc * 8 + nt * 4 + 2 * u, 2), vsr[nt],
                                                                pc * 2048 + u * 1024))
        e(pend)
        self.w2p_st = [e('buffer_store_dwordx4 %s, %s, s[32:35], s91 offen sc1' % (sb.sub(8, 4), self.vl16)),
                       e('buffer_store_dwordx4 %s, %s, s[32:35], s91 offen offset:1024 sc1' % (sb.sub(12, 4), self.vl16))]
        self.poll_issue(vpf, 's53', t[6])
        M = 'v_mfma_f32_4x4x4_16b_bf16 %s, %s, %s, %s'
        e(M % (sm.sub(0, 4), ones, sb.sub(0, 2), '0'))
        e(M % (sm.sub(4, 4), ones, sb.sub(4, 2), '0'))
        e('v_and_b32 %s, 31, %s' % (t[0], vlane))
        e(M % (sm.sub(0, 4), ones, sb.sub(2, 2), sm.sub(0, 4)))
        e(M % (sm.sub(4, 4), ones, sb.sub(6, 2), sm.sub(4, 4)))
        e('s_lshl_b32 s98, s3, 3')
        e('v_lshl_add_u32 %s, %s, 5, s98' % (t[0], t[0]))
        e('v_lshl_add_u32 %s, %s, 2, %s' % (t[0], vh, t[0]))
        cw = [e('ds_write_b32 %s, %s offset:%d' % (t[0], sm[0], L_CSW1)),
              e('ds_write_b32 %s, %s offset:%d' % (t[0], sm[4], L_CSW1 + 1024))]
        V.release('vsr', 'ones', 'resv_vw1')
        vw1, ops = self.img_voff('vw1', 3584)
        for s in ops:
            e(s)
        self.vw1 = vw1
        e('v_lshlrev_b32 %s, 5, %s' % (t[0], vlane))
        e('s_barrier', wait_lgkm=cw)
        e('ds_read_b128 %s, %s offset:%d' % (sb.sub(0, 4), t[0], L_CSW1))
        e('ds_read_b128 %s, %s offset:%d' % (sb.sub(4, 4), t[0], L_CSW1 + 16))
        e('s_and_b32 s47, s43, 15')
        e('s_min_u32 s48, s47, 13')
        e('s_lshl_b32 s49, s48, 8')
        e('v_lshlrev_b32 %s, 6, %s' % (t[1], vlane))
        e('v_pk_add_f32 %s, %s, %s' % (sb.sub(0, 2), sb.sub(0, 2), sb.sub(2, 2)))
        e('v_pk_add_f32 %s, %s, %s' % (sb.sub(4, 2), sb.sub(4, 2), sb.sub(6, 2)))
        e('v_pk_add_f32 %s, %s, %s' % (sb.sub(0, 2), sb.sub(0, 2), sb.sub(4, 2)))
        e('v_add_f32 %s, %s, %s' % (t[2], sb[0], sb[1]))
        e('v_mov_b32 %s, %s' % (t[3], self.vtag))
        cspub = lambda: e('buffer_store_dwordx2 %s, %s, s[32:35], s90 offen sc1' % (t.sub(2, 2), t[1]))
        self.stamp('halowait')
        e('v_cmp_ne_u32 vcc, s6, %s' % t[6])
        e('s_and_b64 vcc, vcc, s[54:55]')
        e('s_cbranch_vccz L_halook')
        self.poll(vpf, 's53', t.sub(6, 2), mask='s[54:55]')
        e('L_halook:')
        self.stamp('haloflag')
        items = []
        self.halo_done = set()
        for s in range(7, -1, -1):
            items.append(lambda s=s: e('buffer_load_dwordx4 %s, %s, s[32:35], s%d offen offset:%d sc1' % (
                self.kfrag(s), vhk, 76 + (s >> 1), (s & 1) * 2048)))
            for m in range(2):
                def f(s=s, m=m):
                    e('s_mov_b64 exec, s[38:39]')
                    e('buffer_load_dwordx4 %s, %s, s[32:35], s%d offen offset:%d sc1' % (
                        self.vfrag(s, m), vhv, 76 + (s >> 1), (s & 1) * 2048 + 1024 + 512 * m))
                    e('s_mov_b64 exec, -1')
                    self.halo_done.add((s, m))
                items.append(f)
        w1a_f, self.w1a_tok = self.img_dma(vw1, 's[20:23]', 3584, L_W1A, [0, 1, 2, 3], 's49')
        xr = V.alloc('xr', 8, at=120)
        self.xr = xr
        vpt = V.alloc('vpt', 4)

        def w2flag():
            e('buffer_store_dword %s, %s, s[32:35], s80 offen sc1' % (self.vtag, self.vflag), wait_vm=self.w2p_st)

        nb = self.o.get('halo_burst', 7)
        self.bg.extend(items)
        self.bg_flush(nb)
        ops = [
            'v_and_b32 %s, 31, %s' % (t[0], vlane),
            's_lshl_b32 s98, s4, 1',
            's_add_u32 s98, s98, s41',
            's_lshl_b32 s98, s98, 15',
            's_lshl_b32 s99, s40, 6',
            's_add_u32 s98, s98, s99',
            's_add_u32 s98, s98, s50',
            'v_lshl_add_u32 %s, %s, 10, s98' % (t[0], t[0]),
            'v_lshl_add_u32 %s, %s, 4, %s' % (self.vout, vh, t[0]),
            's_mul_i32 s98, s4, %d' % (2 * H1_GT),
            's_add_u32 s98, s98, 0x%x' % WS_H1,
            's_lshl_b32 s99, s5, 2',
            's_add_u32 s99, s99, s3',
            's_lshl_b32 s99, s99, 10',
            's_add_u32 s53, s98, s99',
            's_mul_i32 s99, s41, %d' % H1_GT,
            's_add_u32 s98, s98, s99',
            's_lshl_b32 s99, s40, 14',
            's_add_u32 s54, s98, s99',
            's_lshl_b32 s98, s4, 1',
            's_add_u32 s98, s98, s41',
            's_lshl_b32 s99, s5, 1',
            's_add_u32 s99, s99, s40',
            's_lshl_b32 s55, s98, 4',
            's_add_u32 s55, s55, s99',
            's_lshl_b32 s55, s55, 11',
            's_lshl_b32 s45, s98, 12',
            's_lshl_b32 s99, s5, 9',
            's_add_u32 s45, s45, s99',
            's_add_u32 s45, s45, 0x%x' % WS_ST2,
            'v_and_b32 %s, 7, %s' % (t[0], vlane),
            'v_lshlrev_b32 %s, 7, %s' % (t[0], t[0]),
            'v_mul_u32_u24 %s, %d, %s' % (t[4], H1_GT, self.vq3),
            'v_add3_u32 %s, %s, %s, s53' % (t[4], t[0], t[4]),
            'v_and_b32 %s, 0x180, %s' % (t[5], t[0]),
            'v_add_u32 %s, s45, %s' % (t[5], t[5]),
            'v_cmp_gt_u32 vcc, 16, %s' % vlane,
            'v_and_b32 %s, 15, %s' % (t[0], vlane),
            'v_lshlrev_b32 %s, 7, %s' % (vpt[1], t[0]),
            'v_cndmask_b32 %s, %s, %s, vcc' % (vpt[0], t[5], t[4]),
            'v_lshlrev_b32 %s, 2, %s' % (t[6], t[0]),
            'v_and_b32 %s, 31, %s' % (t[0], vlane),
            'v_lshlrev_b32 %s, 6, %s' % (t[0], t[0]),
            'v_lshl_add_u32 %s, %s, 5, %s' % (vpt[3], vh, t[0]),
            's_lshl_b32 s81, s48, 13',
            's_add_u32 s81, s81, s101',
            's_add_u32 s81, s81, 0x%x' % WS_CSP,
        ]
        self.pace(True)
        for x in ops:
            e(x)
        self.vcs = vpt[3]

        def pre0():
            e('s_mov_b64 exec, 0xfffff')
            e('buffer_load_dword %s, %s, s[32:35], 0 offen sc1' % (vpt[2], vpt[0]))
            e('s_mov_b64 exec, -1')

        def pre1():
            e('s_mov_b64 exec, 0xffff')
            e('buffer_load_dword %s, %s, s[28:31], s55 offen sc1' % (vpt[0], vpt[1]))
            e('s_mov_b64 exec, -1')

        def xres(k):
            def f():
                e('buffer_load_dwordx4 %s, %s, s[8:11], 0 offen offset:%d' % (xr.sub(4 * k, 4), self.vout, 32 * k))
                self.extra_gap = 192
            return f
        misc = [w2flag, cspub]
        if not self.o.get('force_sc1'):
            misc += [pre0, pre1]
        misc += [lambda: setattr(self, 'xccld', e('buffer_load_dword %s, %s, s[32:35], s52 offen sc1' % (t[7], t[6])))]
        self.bg.extend(misc + [xres(0), xres(1)] + w1a_f)

        def xcccheck():
            self.pace(False)
            assert self.xccld
            e('v_xor_b32 %s, s6, %s' % (t[7], t[7]))
            e('v_cmp_le_u32 vcc, 16, %s' % t[7])
            e('s_cbranch_vccnz L_xccspin')
            e('L_xccok:')
            e('v_cmp_ne_u32 vcc, s51, %s' % t[7])
            e('s_cmp_eq_u64 vcc, 0')
            e('s_cselect_b32 s7, 1, 0')
            if self.o.get('force_slow'):
                e('s_mov_b32 s7, 0')
            self.tail.append(
                'L_xccspin:\n    buffer_load_dword %s, %s, s[32:35], s52 offen sc1\n    s_add_u32 s96, s96, 1\n'
                '    s_cmp_gt_u32 s96, s97\n    s_waitcnt vmcnt(0)\n    v_xor_b32 %s, s6, %s\n'
                '    s_cbranch_scc1 L_xccok\n    v_cmp_le_u32 vcc, 16, %s\n    s_nop 1\n'
                '    s_cbranch_vccnz L_xccspin\n    s_branch L_xccok\n' % (t[7], t[6], t[7], t[7], t[7]))
            self.pace(True)

        blocks = []
        for s in range(7, 0, -1):
            blocks += [(s, 1), (s, 0)]
        blocks += [(0, 0)]
        vinf = self.vinf()
        pend = self.attn_run(e, blocks, S, P, O, first, {13: [xcccheck]})
        self.pace(False)
        e('s_mov_b32 s98, %s' % hexf(2.0 ** -40))
        e('s_mov_b32 s99, %s' % hexf(2.0 ** 40))
        e(pend)
        self.stamp('attn')
        for qb in (1, 0):
            o = O[qb]
            e('v_max3_f32 %s, abs(%s), abs(%s), abs(%s)' % (t[0], o[0], o[1], o[2]))
            e('v_max3_f32 %s, abs(%s), abs(%s), %s' % (t[0], o[3], o[4], t[0]))
            e('v_max3_f32 %s, abs(%s), abs(%s), %s' % (t[0], o[5], o[6], t[0]))
            e('v_max3_f32 %s, abs(%s), %s, %s' % (t[0], o[7], t[0], t[0]))
            e('v_cmp_nle_f32 vcc, s98, %s' % o[8])
            e('v_cmp_nge_f32 s[90:91], s99, %s' % o[8])
            e('v_cmp_nlt_f32 s[92:93], %s, %s' % (t[0], vinf))
            e('s_or_b64 vcc, vcc, s[90:91]')
            e('s_or_b64 vcc, vcc, s[92:93]')
            if self.o.get('force_fallback'):
                e('s_mov_b64 vcc, -1')
            e('s_cbranch_vccnz L_fallback')
        e('L_attn_ok:')
        rc = t.sub(0, 2)
        for qb in (1, 0):
            o = O[qb]
            e('v_rcp_f32 %s, %s' % (rc[0], o[8]))
            for r in range(0, 8, 2):
                e('v_pk_mul_f32 %s, %s, %s op_sel_hi:[1,0]' % (o.sub(r, 2), o.sub(r, 2), rc))
            for r in range(4):
                e('v_cvt_pk_bf16_f32 %s, %s, %s' % (P[4 * qb + r], o[2 * r], o[2 * r + 1]))
        e('s_add_u32 s99, s53, %d' % H1_GT)
        self.o_st = self.mode_stores(['buffer_store_dwordx4 %s, %s, s[32:35], s53 offen' % (P.sub(0, 4), self.vl16),
                                      'buffer_store_dwordx4 %s, %s, s[32:35], s99 offen' % (P.sub(4, 4), self.vl16)])
        self.fallback()
        print('bg left after attention:', len(self.bg), file=sys.stderr)
        V.release('S0', 'S1', 'O0', 'O1', 'Cl', 'Cu', 'HK', 'HV', 'vinf', 'vhk', 'vhv', 'vpf', 'idx16', 'swz', 'vwo')
        A.release('OWN')

    def vinf(self):
        if 'vinf' not in self.V.names:
            r = self.V.alloc('vinf')
            self._vinf = r
            self.e('v_mov_b32 %s, 0x7f800000' % r)
        return self._vinf

    def fallback(self):
        f = Emitter('fb')
        S, P, O, t = self.S, self.P, self.O, self.pt
        Cz = S[1]
        f('L_fallback:')
        f('s_nop 15')
        for qb in (0, 1):
            slots = list(range(qb + 8, qb - 1, -1))
            f('v_mov_b32 %s, 0xff800000' % t[0])
            for s in slots:
                if s < 8:
                    f('s_cmp_lt_u32 s4, %d' % (4 - (s >> 1)))
                    f('s_cbranch_scc1 L_fb_a%d_%d' % (qb, s))
                f('v_mfma_f32_32x32x16_bf16 %s, %s, %s, %s' % (S[0], self.kfrag(s), self.qfrag(qb), self.cmask(s, qb)))
                for r in range(0, 16, 2):
                    f('v_max3_f32 %s, %s, %s, %s' % (t[0], S[0][r], S[0][r + 1], t[0]))
                f('s_nop 7')
                f('L_fb_a%d_%d:' % (qb, s))
            f('v_mov_b32 %s, %s' % (t[1], t[0]))
            f('v_permlane32_swap_b32 %s, %s' % (t[0], t[1]))
            f('v_max_f32 %s, %s, %s' % (t[0], t[0], t[1]))
            for r in range(16):
                f('v_mov_b32 %s, 0' % O[qb][r])
            for s in slots:
                if s < 8:
                    f('s_cmp_lt_u32 s4, %d' % (4 - (s >> 1)))
                    f('s_cbranch_scc1 L_fb_b%d_%d' % (qb, s))
                f('v_mfma_f32_32x32x16_bf16 %s, %s, %s, %s' % (S[0], self.kfrag(s), self.qfrag(qb), self.cmask(s, qb)))
                for r in range(16):
                    f('v_sub_f32 %s, %s, %s' % (S[0][r], S[0][r], t[0]))
                for r in range(16):
                    f('v_exp_f32 %s, %s' % (S[0][r], S[0][r]))
                for r in range(8):
                    f('v_cvt_pk_bf16_f32 %s, %s, %s' % (P[r], S[0][2 * r], S[0][2 * r + 1]))
                for m in range(2):
                    f('v_mfma_f32_32x32x16_bf16 %s, %s, %s, %s' % (O[qb], self.vfrag(s, m), P.sub(4 * m, 4), O[qb]))
                f('s_nop 15')
                f('L_fb_b%d_%d:' % (qb, s))
        f('s_nop 15')
        f('s_branch L_attn_ok')
        self.cold = f.text()

    def w2_loads(self, lo, hi):
        e = self.e
        out = []
        for n in range(lo, hi):
            def f(n=n):
                p, m, b = n >> 2, (n >> 1) & 1, n & 1
                if n % 4 == 0 or n == lo:
                    e('s_lshl_b32 s88, s%d, 1' % (56 + p))
                    e('s_add_u32 s88, s88, s92')
                e('buffer_load_dwordx4 %s, %s, s[32:35], s88 offen offset:%d sc1' % (
                    self.W2.sub(n * 4, 4), self.vw2[b], m * 2048))
            out.append(f)
        return out

    def tagcheck(self, e, regs, tmp):
        e('v_min3_u32 %s, %s, %s, %s' % (tmp[0], regs[0], regs[1], regs[2]))
        e('v_max3_u32 %s, %s, %s, %s' % (tmp[1], regs[0], regs[1], regs[2]))
        k = 3
        while k < len(regs):
            b = regs[k + 1] if k + 1 < len(regs) else regs[k]
            e('v_min3_u32 %s, %s, %s, %s' % (tmp[0], regs[k], b, tmp[0]))
            e('v_max3_u32 %s, %s, %s, %s' % (tmp[1], regs[k], b, tmp[1]))
            k += 2
        e('v_xor_b32 %s, s6, %s' % (tmp[0], tmp[0]))
        e('v_xor_b32 %s, s6, %s' % (tmp[1], tmp[1]))
        e('v_or_b32 %s, %s, %s' % (tmp[0], tmp[0], tmp[1]))
        e('v_cmp_ne_u32 vcc, 0, %s' % tmp[0])

    def p3(self):
        e, V, A = self.e, self.V, self.A
        o = self.o
        t, vlane, vh = self.pt, self.vlane, self.vh
        self.W2 = A.alloc('W2', 224, at=0)
        WB = A.alloc('WB3', 32, at=224)
        self.WBa = WB
        H = V.alloc('hres', 16, at=240)
        self.H = H
        acc1 = V.alloc('acc1', 16, at=224)
        OF = V.alloc('OF', 64, at=128)
        cb = V.alloc('cb', 8, at=48)
        vwr = V.alloc('vwr', 2)
        vpo = V.alloc('vpo')
        xr = self.xr
        self.bg_flush()
        e('v_min_u32 %s, 55, %s' % (t[4], vlane))
        e('v_lshlrev_b32 %s, 3, %s' % (t[4], t[4]))
        e('s_lshl_b32 s98, s5, 9')
        e('s_add_u32 s93, s98, 0x%x' % WS_W2F)
        e('buffer_load_dwordx2 %s, %s, s[32:35], s93 offen sc1' % (t.sub(6, 2), t[4]))

        def csl(em):
            for k in range(2):
                em('buffer_load_dwordx4 %s, %s, s[32:35], s81 offen offset:%d sc1' % (cb.sub(4 * k, 4), self.vcs, 16 * k))
        csl(e)
        e('s_lshl_b32 s90, s4, 7')
        e('s_add_u32 s90, s90, 0x%x' % WS_OF)
        e('s_lshl_b32 s98, s5, 2')
        e('s_add_u32 s98, s98, s3')
        e('s_lshl_b32 s98, s98, 2')
        e('s_add_u32 s91, s98, s90')
        e('v_permlane32_swap_b32 %s, %s' % (xr[0], xr[2]))
        e('v_permlane32_swap_b32 %s, %s' % (xr[1], xr[3]))
        e('v_permlane32_swap_b32 %s, %s' % (xr[4], xr[6]))
        e('v_permlane32_swap_b32 %s, %s' % (xr[5], xr[7]))
        for k in range(8):
            e('v_lshlrev_b32 %s, 16, %s' % (H[2 * k], xr[k]))
            e('v_and_b32 %s, 0xffff0000, %s' % (H[2 * k + 1], xr[k]))
        V.release('xr')
        e('v_lshl_add_u32 %s, %s, 9, %s' % (t[0], vh, self.vtrb))
        self.vtr9 = V.alloc('vtr9')
        e('v_lshl_add_u32 %s, %s, 6, %s' % (self.vtr9, self.vq3, t[0]))
        e('s_lshl_b32 s98, s40, 6')
        e('v_xor_b32 %s, s98, %s' % (t[0], self.vtr9))
        e('s_lshl_b32 s98, s40, 15')
        e('s_add_u32 s98, s98, %d' % L_WO)
        e('v_add_u32 %s, s98, %s' % (vwr[0], t[0]))
        e('v_xor_b32 %s, 64, %s' % (vwr[1], vwr[0]))
        e('v_and_b32 %s, 15, %s' % (t[0], vlane))
        e('s_lshl_b32 s98, s40, 6')
        e('v_lshl_add_u32 %s, %s, 2, s98' % (vpo, t[0]))
        e('s_lshl_b32 s98, s40, 10')
        e('v_add_u32 %s, s98, %s' % (self.vw2[0], self.vl16))
        e('v_xor_b32 %s, 1024, %s' % (self.vw2[1], self.vw2[0]))
        e('s_mul_i32 s92, s5, %d' % (112 * 2048))
        e('s_add_u32 s92, s92, 0x%x' % WS_W2P)
        e.wait(vm=self.o_st)
        self.mode_stores(['buffer_store_dword %s, %s, s[32:35], s91 offen' % (self.vtag, self.vflag)])
        e('s_barrier', wait_vm=self.wo_tok + self.wo_tok3)
        self.stamp('opub')

        def wreads(s):
            out = []
            for u in (1, 0):
                buf = WB.sub((s % 4) * 8 + 4 * u, 4)
                for uu in range(2):
                    out.append('ds_read_b64_tr_b16 %s, %s offset:%d' % (buf.sub(2 * uu, 2), vwr[u], s * 2048 + uu * 1024))
            return out
        for s in wreads(0) + wreads(1):
            e(s)
        e('v_xor_b32 %s, s6, %s' % (t[6], t[6]))
        e('v_xor_b32 %s, s6, %s' % (t[7], t[7]))
        e('v_or_b32 %s, %s, %s' % (t[6], t[6], t[7]))
        e('v_cmp_ne_u32 vcc, 0, %s' % t[6])
        e('s_cbranch_vccz L_w2ok')
        self.poll(t[4], 's93', t.sub(6, 2), width=2)
        e('L_w2ok:')
        nB = o.get('w2_wb', 6)
        for f in self.w2_loads(0, nB):
            f()
        tags = [cb[k] for k in (1, 3, 5, 7)]
        self.tagcheck(e, tags, t.sub(2, 2))
        e('s_cbranch_vccnz L_csspin')
        e('L_csok:')
        f = Emitter('cs')
        f('L_csspin:')
        csl(f)
        f('s_add_u32 s96, s96, 1')
        f('s_cmp_gt_u32 s96, s97')
        f('s_waitcnt vmcnt(0)')
        f('s_cbranch_scc1 L_csok')
        self.tagcheck(f, tags, t.sub(2, 2))
        f('s_cbranch_vccnz L_csspin')
        f('s_branch L_csok')
        self.tail.append(f.text())
        e('v_add_f32 %s, %s, %s' % (cb[0], cb[0], cb[2]))
        e('v_add_f32 %s, %s, %s' % (cb[4], cb[4], cb[6]))
        e('v_add_f32 %s, %s, %s' % (cb[0], cb[0], cb[4]))
        e('v_mov_b32 %s, %s' % (cb[1], cb[0]))
        e('s_lshl_b32 s98, s3, 9')
        e('v_lshl_add_u32 %s, %s, 3, s98' % (t[0], vlane))
        e('v_permlane32_swap_b32 %s, %s' % (cb[0], cb[1]))
        e('v_add_f32 %s, %s, %s' % (cb[0], cb[0], cb[1]))
        e('v_mul_f32 %s, %s, %s' % (cb[0], self.hz, cb[0]))
        e('v_cvt_pk_bf16_f32 %s, %s, %s' % (cb[2], cb[0], cb[0]))
        e('v_and_b32 %s, 0xffff0000, %s' % (cb[1], cb[2]))
        e('v_sub_f32 %s, %s, %s' % (cb[1], cb[0], cb[1]))
        e('v_cvt_pk_bf16_f32 %s, %s, %s' % (cb[3], cb[1], cb[1]))
        caw = e('ds_write_b64 %s, %s offset:%d' % (t[0], cb.sub(2, 2), L_CA))
        vred = V.alloc('vred', 2)
        e('s_xor_b32 s98, s3, 1')
        e('s_lshl_b32 s98, s98, 12')
        e('s_add_u32 s98, s98, %d' % L_RED3)
        e('v_add_u32 %s, s98, %s' % (vred[0], self.vl16))
        e('s_add_u32 s98, s46, %d' % L_RED3)
        e('v_add_u32 %s, s98, %s' % (vred[1], self.vl16))
        V.release('vpt')
        self.poll(vpo, 's90', t.sub(6, 2))
        self.stamp('oflag')

        def old(u):
            if u % 4 == 0:
                e('s_add_u32 s98, s54, %d' % (u * 1024))
            e('buffer_load_dwordx4 %s, %s, s[32:35], s98 offen offset:%d sc1' % (OF.sub(4 * u, 4), self.vl16,
                                                                                (u % 4) * 1024))
        LA = o.get('la3', 6)
        for u in range(LA):
            old(u)
        n3 = o.get('w2_p3', 8)
        w2f = self.w2_loads(nB, nB + n3)
        self.w2_next = nB + n3
        for s in range(16):
            b = WB.sub((s % 4) * 8, 8)
            e('v_mfma_f32_32x32x16_bf16 %s, %s, %s, %s' % (acc1, b.sub(4, 4), OF.sub(4 * s, 4), '0' if s == 0 else acc1))
            rd = wreads(s + 2) if s + 2 < 16 else []
            for x in rd[:2]:
                e(x)
            if s + LA < 16:
                old(s + LA)
            elif w2f:
                w2f.pop(0)()
            e('v_mfma_f32_32x32x16_bf16 %s, %s, %s, %s' % (H, b.sub(0, 4), OF.sub(4 * s, 4), H))
            for x in rd[2:]:
                e(x)
        for f in w2f:
            f()
        wr = [e('ds_write_b128 %s, %s offset:%d' % (vred[0], acc1.sub(4 * g, 4), g * 1024)) for g in range(4)]
        e('s_barrier', wait_lgkm=wr + [caw], wait_vm=self.w1a_tok)
        for g in range(4):
            e('ds_read_b128 %s, %s offset:%d' % (acc1.sub(4 * g, 4), vred[1], g * 1024))
        e('s_lshr_b32 s98, s55, 15')
        e('s_lshl_b32 s98, s98, 7')
        e('s_bfe_u32 s99, s55, 0x4000b')
        e('s_lshl_b32 s99, s99, 2')
        e('s_add_u32 s98, s98, s99')
        e('s_add_u32 s91, s98, 0x%x' % WS_HF)
        e('v_lshl_add_u32 %s, %s, 29, %s' % (t[0], vh, self.vl16))
        e('s_lshl_b32 s98, s40, 3')
        e('s_add_u32 s45, s45, s98')
        PK = OF
        for g in range(4):
            for r in range(4 * g, 4 * g + 4, 2):
                e('v_pk_add_f32 %s, %s, %s' % (H.sub(r, 2), H.sub(r, 2), acc1.sub(r, 2)))
            for r in range(2 * g, 2 * g + 2):
                e('v_cvt_pk_bf16_f32 %s, %s, %s' % (PK[r], H[2 * r], H[2 * r + 1]))
        h_st = self.mode_stores(['buffer_store_dwordx4 %s, %s, s[28:31], s55 offen' % (PK.sub(0, 4), self.vl16),
                                 'buffer_store_dwordx4 %s, %s, s[28:31], s55 offen offset:1024' % (PK.sub(4, 4), self.vl16)])
        a = acc1
        e('v_pk_mul_f32 %s, %s, %s' % (a.sub(0, 2), H.sub(0, 2), H.sub(0, 2)))
        e('v_pk_add_f32 %s, %s, %s' % (a.sub(2, 2), H.sub(0, 2), H.sub(2, 2)))
        for r in range(2, 16, 2):
            e('v_pk_fma_f32 %s, %s, %s, %s' % (a.sub(0, 2), H.sub(r, 2), H.sub(r, 2), a.sub(0, 2)))
            if r >= 4:
                e('v_pk_add_f32 %s, %s, %s' % (a.sub(2, 2), a.sub(2, 2), H.sub(r, 2)))
        e('v_add_f32 %s, %s, %s' % (a[4], a[2], a[3]))
        e('v_add_f32 %s, %s, %s' % (a[5], a[0], a[1]))
        e('v_mov_b32 %s, %s' % (a[0], a[4]))
        e('v_mov_b32 %s, %s' % (a[1], a[5]))
        e('v_permlane32_swap_b32 %s, %s' % (a[0], a[4]))
        e('v_permlane32_swap_b32 %s, %s' % (a[1], a[5]))
        e('v_pk_add_f32 %s, %s, %s' % (a.sub(4, 2), a.sub(4, 2), a.sub(0, 2)))
        h_st += self.mode_stores(['buffer_store_dwordx2 %s, %s, s[32:35], s45 offen' % (a.sub(4, 2), t[0])])
        e('s_add_u32 s49, s49, 128')
        w1b_f, self.w1b_tok = self.img_dma(self.vw1, 's[20:23]', 3584, L_W1B, [0, 1, 2, 3], 's49')
        nb = o.get('w1b_early', 8)
        for f in w1b_f[:nb]:
            f()
        self.w1b_rest = w1b_f[nb:]
        self.h_st = h_st
        V.release('acc1', 'OF', 'vwr', 'vpo', 'vred', 'P', 'trb', 'q3', 'cb')

    def p4(self):
        e, V, A = self.e, self.V, self.A
        o = self.o
        t, vlane, vh = self.pt, self.vlane, self.vh
        WB = self.WBa
        HF = V.alloc('HF', 128, at=48)
        acc = [V.alloc('acc%d' % k, 16, at=176 + 16 * k) for k in range(4)]
        self.HF, self.acc = HF, acc
        vA = V.alloc('vA', 2)
        cz = [V.alloc('cA%d' % k, 6, 2) for k in range(2)]
        cA = [cz[0].sub(0, 2), cz[0].sub(4, 2), cz[1].sub(0, 2), cz[1].sub(4, 2)]
        cT = [cz[0].sub(0, 4), cz[0].sub(2, 4), cz[1].sub(0, 4), cz[1].sub(2, 4)]
        vst = V.alloc('vst')
        e('v_add_u32 %s, %d, %s' % (vA[0], L_W1A, self.vtr9))
        e('v_xor_b32 %s, 64, %s' % (vA[1], vA[0]))
        V.release('vtr9')
        e('v_lshlrev_b32 %s, 3, %s' % (t[2], vlane))
        for tl in range(4):
            e('ds_read_b64 %s, %s offset:%d' % (cA[tl], t[2], L_CA + 512 * tl))

        def wreads(tl, s, slot):
            buf = WB.sub(slot * 4, 4)
            return ['ds_read_b64_tr_b16 %s, %s offset:%d' % (buf.sub(2 * uu, 2), vA[tl & 1], s * 2048 + uu * 1024)
                    for uu in range(2)]
        RA = 4
        seq1 = [(tl, s) for s in range(32) for tl in (0, 1)]
        for n in range(RA):
            for x in wreads(seq1[n][0], seq1[n][1], n):
                e(x)
        for k in range(2):
            e('v_mov_b32 %s, 0' % cz[k][2])
            e('v_mov_b32 %s, 0' % cz[k][3])
        e('s_lshr_b32 s98, s4, 1')
        e('s_lshl_b32 s98, s98, 2')
        e('s_add_u32 s53, s98, s3')
        e('s_lshl_b32 s44, s53, 15')
        e('s_lshl_b32 s90, s53, 7')
        e('s_add_u32 s90, s90, 0x%x' % WS_HF)
        e('v_and_b32 %s, 15, %s' % (t[1], vlane))
        e('v_lshlrev_b32 %s, 2, %s' % (t[1], t[1]))
        e.wait(vm=self.h_st)
        self.mode_stores(['buffer_store_dword %s, %s, s[32:35], s91 offen' % (self.vtag, self.vflag)])
        self.stamp('hpub')
        e('s_lshl_b32 s45, s53, 12')
        e('s_add_u32 s45, s45, 0x%x' % WS_ST2)
        e('s_cmp_lt_u32 s47, 14')
        e('s_cselect_b32 s99, 0, 0x%x' % OOB)
        e('s_mul_i32 s54, s53, %d' % H1_GT)
        e('s_lshl_b32 s98, s48, 13')
        e('s_add_u32 s54, s54, s98')
        e('s_add_u32 s54, s54, 0x%x' % WS_H1)
        e('s_add_u32 s54, s54, s99')
        e('s_mul_i32 s55, s53, 384')
        e('s_lshl_b32 s98, s48, 2')
        e('s_add_u32 s55, s55, s98')
        e('s_add_u32 s55, s55, 0x%x' % WS_H1F)
        e('s_add_u32 s55, s55, s99')
        e('v_and_b32 %s, 31, %s' % (t[0], vlane))
        e('v_lshlrev_b32 %s, 4, %s' % (t[0], t[0]))
        e('v_lshl_add_u32 %s, %s, 11, %s' % (vst, vh, t[0]))
        self.poll(t[1], 's90', t.sub(6, 2))
        self.stamp('hflag')
        sb = acc[2]

        def hld(s):
            if s % 4 == 0:
                e('s_add_u32 s98, s44, %d' % (s * 1024))
            e('buffer_load_dwordx4 %s, %s, s[28:31], s98 offen offset:%d sc1' % (HF.sub(4 * s, 4), self.vl16,
                                                                                (s % 4) * 1024))
        q = []
        SAT = o.get('stat_at', 20)
        for s in range(32):
            if s == SAT:
                for k in range(4):
                    q.append(lambda k=k: e('buffer_load_dwordx4 %s, %s, s[32:35], s45 offen offset:%d sc1' % (
                        sb.sub(4 * k, 4), vst, k * 512)))
            q.append(lambda s=s: hld(s))
        q += self.w1b_rest
        LA = o.get('la4', 6)
        for _ in range(LA):
            q.pop(0)()
        mB = V.alloc('mB2', 4, 2)
        sc = V.alloc('sc', 2, 2)

        def stats_ops():
            a = sb
            ops = []
            for k in (0, 1):
                ops += ['v_add_f32 %s, %s, %s' % (a[k], a[k], a[k + 2]),
                        'v_add_f32 %s, %s, %s' % (a[k + 4], a[k + 4], a[k + 6]),
                        'v_add_f32 %s, %s, %s' % (a[k + 8], a[k + 8], a[k + 10]),
                        'v_add_f32 %s, %s, %s' % (a[k + 12], a[k + 12], a[k + 14]),
                        'v_add_f32 %s, %s, %s' % (a[k], a[k], a[k + 4]),
                        'v_add_f32 %s, %s, %s' % (a[k + 8], a[k + 8], a[k + 12]),
                        'v_add_f32 %s, %s, %s' % (a[k], a[k], a[k + 8]),
                        'v_mov_b32 %s, %s' % (a[k + 2], a[k])]
            ops += ['s_nop 0',
                    'v_permlane32_swap_b32 %s, %s' % (a[0], a[2]),
                    'v_permlane32_swap_b32 %s, %s' % (a[1], a[3]),
                    'v_add_f32 %s, %s, %s' % (a[0], a[0], a[2]),
                    'v_add_f32 %s, %s, %s' % (a[1], a[1], a[3]),
                    'v_mul_f32 %s, %s, %s' % (a[0], hexf(-1.0 / 512), a[0]),
                    'v_mul_f32 %s, %s, %s' % (a[1], hexf(1.0 / 512), a[1]),
                    'v_fma_f32 %s, -%s, %s, %s' % (a[1], a[0], a[0], a[1]),
                    'v_max_f32 %s, 0, %s' % (a[1], a[1]),
                    'v_add_f32 %s, %s, %s' % (a[1], hexf(1e-5), a[1]),
                    'v_rsq_f32 %s, %s' % (sc[0], a[1]),
                    'v_sqrt_f32 %s, %s' % (sc[1], a[1])]
            ops += self.aug_ops(mB, a[0], a[2], False)[:-2]
            ops += ['v_mov_b32 %s, %s' % (mB[2], mB[0]), 'v_mov_b32 %s, %s' % (mB[3], mB[0]),
                    'v_mul_f32 %s, %s, %s' % (sc[0], hexf(-LOG2E), sc[0])]
            return ops

        def aug(tl):
            return 'v_mfma_f32_32x32x16_bf16 %s, %s, %s, %s' % (acc[tl], cT[tl], mB, acc[tl])

        et = t.sub(2, 4)
        self.h1_st = {}

        def epi(tl, packed=False):
            ops = []
            a = acc[tl]
            PK = a
            for r in range(0, 16, 2):
                x, y = et[(r // 2 % 2) * 2], et[(r // 2 % 2) * 2 + 1]
                ops += ['v_mul_f32 %s, %s, %s' % (x, sc[0], a[r]), 'v_mul_f32 %s, %s, %s' % (y, sc[0], a[r + 1]),
                        'v_exp_f32 %s, %s' % (x, x), 'v_exp_f32 %s, %s' % (y, y),
                        'v_fma_f32 %s, %s, %s, %s' % (x, x, sc[1], sc[1]),
                        'v_fma_f32 %s, %s, %s, %s' % (y, y, sc[1], sc[1]),
                        'v_rcp_f32 %s, %s' % (x, x), 'v_rcp_f32 %s, %s' % (y, y),
                        'v_mul_f32 %s, %s, %s' % (a[r], a[r], x),
                        'v_mul_f32 %s, %s, %s' % (a[r + 1], a[r + 1], y),
                        'v_cvt_pk_bf16_f32 %s, %s, %s' % (PK[r // 2], a[r], a[r + 1])]
                if r in (6, 14):
                    ops.append(store(tl, r // 8))
            return ops

        def epi_packed(tl):
            ops = []
            a = acc[tl]
            for r in range(0, 16, 4):
                u, v = et.sub(0, 2), et.sub(2, 2)
                ops += ['v_pk_mul_f32 %s, %s, %s op_sel_hi:[1,0]' % (u, a.sub(r, 2), sc),
                        'v_pk_mul_f32 %s, %s, %s op_sel_hi:[1,0]' % (v, a.sub(r + 2, 2), sc)]
                ops += ['v_exp_f32 %s, %s' % (et[k], et[k]) for k in range(4)]
                ops += ['v_pk_fma_f32 %s, %s, %s, %s op_sel:[0,1,1] op_sel_hi:[1,1,1]' % (u, u, sc, sc),
                        'v_pk_fma_f32 %s, %s, %s, %s op_sel:[0,1,1] op_sel_hi:[1,1,1]' % (v, v, sc, sc)]
                ops += ['v_rcp_f32 %s, %s' % (et[k], et[k]) for k in range(4)]
                ops += ['v_pk_mul_f32 %s, %s, %s' % (a.sub(r, 2), a.sub(r, 2), u),
                        'v_pk_mul_f32 %s, %s, %s' % (a.sub(r + 2, 2), a.sub(r + 2, 2), v),
                        'v_cvt_pk_bf16_f32 %s, %s, %s' % (a[r // 2], a[r], a[r + 1]),
                        'v_cvt_pk_bf16_f32 %s, %s, %s' % (a[r // 2 + 1], a[r + 2], a[r + 3])]
                if r in (4, 12):
                    ops.append(store(tl, r // 8))
            return ops

        def store(tl, m):
            def st():
                h, e.hook = e.hook, None
                if m == 0:
                    e('s_add_u32 s93, s54, %d' % (tl * 2048))
                tok = e('buffer_store_dwordx4 %s, %s, s[32:35], s93 offen offset:%d sc1' % (
                    acc[tl].sub(4 * m, 4), self.vl16, m * 1024))
                e.hook = h
                self.extra_gap = o.get('stgap', 64)
                self.h1_st.setdefault(tl, []).append(tok)
            return st

        def flag(part, tiles):
            def f():
                w = []
                for tl in tiles:
                    w += self.h1_st[tl]
                e.wait(vm=w)
                self.mode_stores(['buffer_store_dword %s, %s, s[32:35], s55 offen offset:%d' % (
                    self.vtag, self.vflag, part * 128)])
            return f

        so = stats_ops()
        S0 = 64 - (len(so) + 2) // 3 - 1
        for n, (tl, s) in enumerate(seq1):
            e('v_mfma_f32_32x32x16_bf16 %s, %s, %s, %s' % (acc[tl], WB.sub((n % 8) * 4, 4), HF.sub(4 * s, 4),
                                                           '0' if s == 0 else acc[tl]))
            if n + RA < 64:
                for x in wreads(seq1[n + RA][0], seq1[n + RA][1], (n + RA) % 8):
                    e(x)
            if (n % 2 == 0 or (SAT - LA) * 2 <= n < (SAT - LA) * 2 + 8) and q:
                q.pop(0)()
            if n >= S0:
                for x in so[(n - S0) * 3:(n - S0) * 3 + 3]:
                    e(x)
        for f in q:
            f()
        V.release('vw1')
        e(aug(0))
        e(aug(1))
        self.stamp('p4a')
        e('v_subrev_u32 %s, %d, %s' % (vA[0], L_W1A - L_W1B, vA[0]))
        e('v_subrev_u32 %s, %d, %s' % (vA[1], L_W1A - L_W1B, vA[1]))
        self.vh1 = V.alloc('vh1', 2)
        vpf = V.alloc('vpf5')
        self.vpf5 = vpf
        setup = ['s_mul_i32 s98, s41, %d' % H1_GT,
                 'v_add_u32 %s, s98, %s' % (self.vh1[0], self.vl16),
                 's_xor_b32 s98, s41, 1',
                 's_mul_i32 s98, s98, %d' % H1_GT,
                 'v_add_u32 %s, s98, %s' % (self.vh1[1], self.vl16),
                 's_mul_i32 s44, s4, %d' % (2 * H1_GT),
                 's_add_u32 s44, s44, 0x%x' % WS_H1,
                 'v_and_b32 %s, 15, %s' % (t[0], vlane),
                 'v_min_u32 %s, 13, %s' % (t[0], t[0]),
                 'v_bfe_u32 %s, %s, 4, 1' % (t[1], vlane),
                 'v_mul_u32_u24 %s, 384, %s' % (t[1], t[1]),
                 'v_lshl_add_u32 %s, %s, 2, %s' % (vpf, t[0], t[1]),
                 's_mul_i32 s45, s4, 768',
                 's_add_u32 s45, s45, 0x%x' % WS_H1F]
        for x in setup:
            e(x)
        e0 = epi(0)
        pre = o.get('epi_pre', 22)
        self.bg.extend(self.w2_loads(self.w2_next, 56))
        self.pace(True)
        for x in e0[:pre]:
            x() if callable(x) else e(x)
        self.pace(False)
        e('s_barrier', wait_vm=self.w1b_tok)
        self.pace(True)
        seq2 = [(2, s) for s in range(32)] + [(3, s) for s in range(32)]
        for n in range(RA):
            for x in wreads(seq2[n][0], seq2[n][1], n):
                e(x)
        for x in e0[pre:pre + 11]:
            x() if callable(x) else e(x)
        e1 = epi(1)
        cut = o.get('epi_cut', 45)
        fillA = e0[pre + 11:] + e1[:cut]
        fillB = e1[cut:] + epi(2)

        def run(seq, base, fill, extra, lo):
            pos = 0
            for k in range(32):
                n = base + k
                tl, s = seq[n]
                e('v_mfma_f32_32x32x16_bf16 %s, %s, %s, %s' % (acc[tl], WB.sub((n % 8) * 4, 4), HF.sub(4 * s, 4),
                                                               '0' if s == 0 else acc[tl]))
                if n + RA < 64:
                    for x in wreads(seq[n + RA][0], seq[n + RA][1], (n + RA) % 8):
                        e(x)
                upto = (len(fill) * (k + 1) + 31) // 32
                while pos < upto:
                    f = fill[pos]
                    f() if callable(f) else e(f)
                    pos += 1
                for f in extra.get(k, []):
                    f() if callable(f) else e(f)
        run(seq2, 0, fillA, {}, 0)
        e(aug(2))
        self.stamp('t2')
        run(seq2, 32, fillB, {o.get('flagA_at', 24): [flag(0, [0, 1])]}, 0)
        e(aug(3))
        self.stamp('t3')
        print('bg left after tile 3:', len(self.bg), file=sys.stderr)
        ep = epi_packed(3)
        pa = o.get('pollA_at', 20)
        for k, x in enumerate(ep):
            x() if callable(x) else e(x)
            if k == pa:
                self.bg.appendleft(lambda: self.poll_issue(vpf, 's45', t[6], 0))
        self.bg_flush()
        self.pace(False)
        self.flagB = flag(1, [2])
        self.flagC = flag(2, [3])
        self.stamp('p4end')
        V.release('vA', 'cA0', 'cA1', 'vst', 'mB2', 'sc')

    def h1_item(self, n):
        e = self.e
        p, m, a = n >> 2, (n >> 1) & 1, n & 1
        if n % 4 == 0:
            e('s_add_u32 s89, s%d, s44' % (56 + p))
        e('buffer_load_dwordx4 %s, %s, s[32:35], s89 offen offset:%d sc1' % (
            self.HF.sub((n % 32) * 4, 4), self.vh1[a], m * 1024))

    def p5(self):
        e, V, A = self.e, self.V, self.A
        o = self.o
        t = self.pt
        acc = [self.H, self.acc[0], self.acc[1], self.acc[2]]
        HF, W2 = self.HF, self.W2
        vr = V.alloc('vr5', 4)

        def mf(p):
            out = []
            for m in range(2):
                for a in range(2):
                    for b in range(2):
                        u = 2 * a + b
                        c = '0' if (p == 0 and m == 0 and u != 0) else acc[u]
                        out.append('v_mfma_f32_32x32x16_bf16 %s, %s, %s, %s' % (
                            acc[u], W2.sub((p * 4 + m * 2 + b) * 4, 4), HF.sub(((p % 8) * 4 + m * 2 + a) * 4, 4), c))
            return out
        self.poll_check(self.vpf5, 's45', t[6], 0)
        LA = o.get('la5', 8)
        for n in range(LA):
            self.h1_item(n)
            if n == 1:
                self.flagB()
        nxt = LA
        extra = {}

        def add(k, f):
            extra.setdefault(k, []).append(f)
        add(o.get('flagC_at', 6), self.flagC)
        add(24 - LA - 8, lambda: self.poll_issue(self.vpf5, 's45', t[6], 128))
        add(24 - LA - 1, lambda: self.poll_check(self.vpf5, 's45', t[6], 128))
        add(40 - LA - 8, lambda: self.poll_issue(self.vpf5, 's45', t[7], 256))
        add(40 - LA - 1, lambda: self.poll_check(self.vpf5, 's45', t[7], 256))

        def addr():
            for u in range(1, 4):
                e('s_xor_b32 s98, s3, %d' % u)
                e('s_mul_i32 s98, s98, 12288')
                e('s_add_u32 s98, s98, %d' % (L_RED5 + (u - 1) * 4096))
                e('v_add_u32 %s, s98, %s' % (vr[u], self.vl16))
            e('s_mul_i32 s98, s3, 12288')
            e('s_add_u32 s98, s98, %d' % L_RED5)
            e('v_add_u32 %s, s98, %s' % (vr[0], self.vl16))
        add(50, addr)
        slot = 0
        for p in range(13):
            for k, s in enumerate(mf(p)):
                e(s)
                if k % 2 == 0:
                    if nxt < 56:
                        self.h1_item(nxt)
                        nxt += 1
                    for f in extra.get(slot, []):
                        f()
                    slot += 1
        last = mf(13)
        for k in [3, 7, 2, 6, 1, 5, 0, 4]:
            e(last[k])
        self.stamp('p5mm')
        wr = []
        for u in (3, 2, 1):
            for g in range(4):
                wr.append(e('ds_write_b128 %s, %s offset:%d' % (vr[u], acc[u].sub(4 * g, 4), g * 1024)))
        e('s_barrier', wait_lgkm=wr)
        for g in range(4):
            for u in (1, 2, 3):
                e('ds_read_b128 %s, %s offset:%d' % (acc[u].sub(4 * g, 4), vr[0], (u - 1) * 4096 + g * 1024))
        PK = HF
        fl = self.o.get('out_flags', '')
        for hf in range(2):
            for g in (2 * hf, 2 * hf + 1):
                for u in (1, 2, 3):
                    for r in range(4 * g, 4 * g + 4, 2):
                        e('v_pk_add_f32 %s, %s, %s' % (acc[0].sub(r, 2), acc[0].sub(r, 2), acc[u].sub(r, 2)))
                for r in range(2 * g, 2 * g + 2):
                    e('v_cvt_pk_bf16_f32 %s, %s, %s' % (PK[r], acc[0][2 * r], acc[0][2 * r + 1]))
            e('v_permlane32_swap_b32 %s, %s' % (PK[4 * hf], PK[4 * hf + 2]))
            e('v_permlane32_swap_b32 %s, %s' % (PK[4 * hf + 1], PK[4 * hf + 3]))
            e('buffer_store_dwordx4 %s, %s, s[28:31], 0 offen offset:%d %s' % (PK.sub(4 * hf, 4), self.vout, 32 * hf, fl))

    def finish(self):
        e = self.e
        t = self.pt
        if self.o.get('stamps'):
            self.stamp('end')
            self.stamp('dummy')
            e('s_waitcnt vmcnt(0) lgkmcnt(0)')
            e('s_memrealtime s[82:83]')
            e('s_lshl_b32 s98, s2, 2')
            e('s_add_u32 s98, s98, s3')
            e('s_lshl_b32 s98, s98, 7')
            e('s_add_u32 s98, s98, 0x%x' % WS_STAMP)
            for k, r in ((27, 's82'), (28, 's94'), (29, 's96'), (30, 's7'), (31, 's51')):
                e('v_writelane_b32 %s, %s, %d' % (self.vstamp, r, k))
            e('v_lshlrev_b32 %s, 2, %s' % (t[0], self.vlane))
            e('v_lshl_add_u32 %s, %s, 29, %s' % (t[0], self.vh, t[0]))
            e('buffer_store_dword %s, %s, s[32:35], s98 offen' % (self.vstamp, t[0]))
            if self.o.get('dbgstamps'):
                e('s_not_b32 s98, s94')
                e('v_mov_b32 %s, s98' % t[2])
                e('v_mov_b32 %s, s82' % t[3])
                e('v_mov_b32 %s, 4' % t[4])
                e('s_mov_b64 exec, 1')
                e.raw('    global_atomic_umax %s, %s, s[36:37]' % (t[4], t[2]))
                e.raw('    global_atomic_umax %s, %s, s[36:37] offset:4' % (t[4], t[3]))
                e('s_mov_b64 exec, -1')
                e('s_cmp_lg_u32 s2, %d' % self.o.get('dbgwg', 100))
                e('s_cbranch_scc1 L_nodbg')
                e('s_cmp_lg_u32 s3, 0')
                e('s_cbranch_scc1 L_nodbg')
                e('v_readlane_b32 s98, %s, 0' % self.vstamp)
                e('s_sub_u32 s99, s82, s94')
                e('v_subrev_u32 %s, s98, %s' % (self.vstamp, self.vstamp))
                sel = self.o.get('dbgsel', 'dma0,chunk0,kvpub,qdone,attn,oflag,hflag,p4a,p4end,p5mm,end').split(',')
                e('v_mov_b32 %s, s99' % t[2])
                e('v_mov_b32 %s, 12' % t[4])
                e.raw('    global_store_dword %s, %s, s[36:37]' % (t[4], t[2]))
                for k, nm in enumerate(sel):
                    e('v_readlane_b32 s98, %s, %d' % (self.vstamp, self.stamp_names.index(nm)))
                    e('s_nop 3')
                    e('v_mov_b32 %s, s98' % t[2])
                    e('v_mov_b32 %s, %d' % (t[4], 20 + 4 * k))
                    e.raw('    global_store_dword %s, %s, s[36:37]' % (t[4], t[2]))
                    e('s_nop 1')
                e('L_nodbg:')
        if self.o.get('padto'):
            if self.o.get('pad0'):
                e('v_mov_b32 %s, 0' % t[1])
                e('global_load_dword %s, %s, s[36:37] offset:32 sc1' % (t[2], t[1]))
                e('v_readfirstlane_b32 s94, %s' % t[2])
                e('s_nop 3')
            e('L_pad:')
            e('s_memrealtime s[82:83]')
            e('s_waitcnt lgkmcnt(0)')
            e('s_sub_u32 s98, s82, s94')
            e('s_cmp_lt_u32 s98, %d' % self.o.get('padto'))
            e('s_cbranch_scc1 L_pad')
        e('s_cmp_gt_u32 s96, s97')
        e('s_cbranch_scc0 L_end')
        e('v_mov_b32 %s, 16' % t[0])
        e('v_mov_b32 %s, 0xdead' % t[1])
        e('global_store_dword %s, %s, s[36:37]' % (t[0], t[1]))
        e('L_end:')
        e('s_endpgm')

    def text(self):
        hdr = open('sequential_preLN__sliding_block__dense_activation_silu__prompt.s.ref').read()
        head = [l for l in hdr.split('\n') if l.startswith(';') and '@launch' not in l]
        out = '\n'.join(head) + '\n'
        if self.stamp_names:
            out += '; stamps %s\n' % ','.join(self.stamp_names[:-1])
        out += '; @launch grid=(256,1,1) block=(256,1,1) lds=%d\n' % LDS_BYTES
        out += '.amdgcn_target "amdgcn-amd-amdhsa--gfx950"\n.text\n.globl %s\n.p2align 8\n.type %s,@function\n%s:\n' % (
            KNAME, KNAME, KNAME)
        out += self.e.text()
        for tl in self.tail:
            out += tl
        out += 'L_codeend:\n'
        out += self.cold
        out += '.p2align 6\n.type L_tab,@object\nL_tab:\n'
        for row in p5_table():
            vals = [(8 * jj + 2 * tl) * 1024 for jj, tl in row] + [0, 0]
            out += '    .long ' + ', '.join(str(v) for v in vals) + '\n'
        out += '.size L_tab, 256\n'
        out += '.section .rodata,"a"\n.p2align 6\n.amdhsa_kernel %s\n' % KNAME
        out += '  .amdhsa_next_free_vgpr 512\n  .amdhsa_next_free_sgpr 102\n  .amdhsa_accum_offset 256\n'
        out += '  .amdhsa_group_segment_fixed_size 0\n  .amdhsa_kernarg_size 72\n  .amdhsa_user_sgpr_count 2\n'
        out += '  .amdhsa_user_sgpr_kernarg_segment_ptr 1\n  .amdhsa_system_sgpr_workgroup_id_x 1\n.end_amdhsa_kernel\n'
        return out


def parse_opts(args):
    o = {}
    for a in args:
        if '=' in a:
            k, v = a.split('=', 1)
            try:
                v = int(v)
            except ValueError:
                pass
            o[k] = v
        else:
            o[a] = 1
    return o


if __name__ == '__main__':
    path = sys.argv[1]
    g = Gen(parse_opts(sys.argv[2:]))
    txt = g.build()
    open(path, 'w').write(txt)
    print('wrote', path, len(txt), 'bytes; model cycles', g.e.now, 'stamps', ','.join(g.stamp_names[:-1]))
```

```python
import sys
import struct
import collections
from emit import Emitter, Regs, R, Ins

KNAME = 'sequential_preLN__sliding_block__dense_activation_silu__prompt_kernel'

WS_EPOCH = 0
WS_XCC = 0x1000
WS_KVF = 0x10000
WS_W2F = 0xA0000
WS_OF = 0x30000
WS_HF = 0x31000
WS_H1F = 0x33000
WS_CSP = 0x40000
WS_ST2 = 0x60000
WS_KV = 0x100000
WS_W2P = 0x500000
WS_H1 = 0x700000
WS_STAMP = 0xF00000
WS_DUMP = 0x1000000
WS_BYTES = 0x10000000
OOB = 0x20000000
H1_GT = 112 * 1024

K = 1024
L_ST = 0
L_CS = 2048
L_CSW1 = 5120
L_DUMMY = 7936
L_RS = 7168
L_CA = 8 * K
L_QX = 8 * K
L_XR = 16 * K
L_WK = 80 * K
L_WO = 80 * K
L_W1A = 16 * K
L_W1B = 80 * K
L_SIDE = 64 * K
L_KX = 144 * K
L_VX = 152 * K
L_RED3 = 144 * K
L_RED5 = 16 * K
LDS_BYTES = 160 * K

LOG2E = 1.4426950408889634
SPIN_LIMIT = 400000


def f2u(x):
    return struct.unpack('<I', struct.pack('<f', x))[0]


def hexf(x):
    return '0x%08x' % f2u(x)


def p5_table():
    tab = []
    for kq in range(4):
        by = {t: [jj for jj in range(14) if (kq + jj) % 4 == t] for t in range(4)}
        early = sorted([(jj, t) for t in (0, 1) for jj in by[t]], key=lambda x: (x[1], x[0]))
        mid = [(jj, 2) for jj in by[2]]
        late = [(jj, 3) for jj in by[3]]
        first, extra = early[:6], early[6:]
        while len(mid) < 4:
            mid.insert(0, extra.pop(0))
        while len(late) < 4:
            late.insert(0, extra.pop(0))
        assert not extra
        tab.append(first + mid + late)
    return tab


TAB_STRIDE = 208


def role_rot(rb, hg, opts):
    return (2 * rb + (hg if opts.get('rotx') else 0)) & 7


def table_entry(p, w, opts):
    rb, hg = p >> 3, p & 7
    i, jj = rb >> 1, p & 15
    jc = min(jj, 13)
    lo, hi = w & 1, w >> 1
    sv = p < 224
    d, m = p // 28, p % 28
    so = lambda v: v if sv else OOB
    mask = 0
    for l in range(64):
        if rb + ((l >> 1) & 3) >= 4:
            mask |= 1 << l
    h1base = WS_H1 + 2 * rb * H1_GT
    gtq, prod, gt = 2 * rb + hi, 2 * hg + lo, 4 * i + w
    t1 = [WS_KV + (p + (n - 4) * 8) * 16384 + w * 4096 if rb + n >= 4 else OOB for n in range(4)]
    t1 += [mask & 0xffffffff, mask >> 32,
           WS_KVF + (p - 32) * 512 + hi * 256,
           so(WS_W2P + d * 229376 + (4 * m + w) * 2048),
           WS_KV + p * 16384 + hi * 8192 + lo * 2048,
           WS_KVF + (4 * p + w) * 128,
           WS_XCC + p * 128 if w == 0 else OOB,
           WS_XCC + i * 2048,
           so((64 * d + 16 * w) * 3584 + m * 128),
           so(m * 65536 + d * 128 + w * 16384),
           L_XR + ((hg - role_rot(rb, hg, opts)) & 7) * 8192 + hi * 4096,
           h1base + (4 * hg + w) * 1024]
    t2 = [so(WS_W2F + (d * 112 + 4 * m + w) * 128),
          so(WS_CSP + m * 4096 + d * 512) if w == 0 else OOB,
          jc * 256 + w * 32 * 3584,
          WS_CSP + (2 * jc + hi) * 4096 + lo * 256,
          h1base + hi * H1_GT + lo * 16384,
          WS_OF + rb * 128 + (4 * hg + w) * 4,
          WS_OF + rb * 128 + lo * 64,
          WS_W2F + hg * 112 * 128,
          (WS_W2P + hg * 229376 - 2 * h1base) & 0xffffffff,
          gtq * 32768 + prod * 2048,
          WS_ST2 + gtq * 4096 + prod * 256,
          WS_HF + gtq * 128 + prod * 4]
    act = jj < 14
    t4 = [gt * 32768, WS_HF + gt * 128, WS_ST2 + gt * 4096,
          WS_H1 + gt * H1_GT + jc * 8192 if act else OOB,
          WS_H1F + gt * 384 + jc * 4 if act else OOB,
          0, WS_H1F + rb * 768, gtq * 32768 + hg * 128 + lo * 64]
    r = (rb + hg) & 3 if opts.get('rot5', 1) else 0
    rr = (r * 3 + 1) // 2
    row = p5_table()[w]
    row = row[rr:6] + row[:rr] + row[6 + r:10] + row[6:6 + r] + row[10 + r:14] + row[10:10 + r]
    t3 = [h1base + (8 * a + 2 * b) * 1024 for a, b in row] + [0, 0]
    out = t1 + t2 + t4 + t3
    assert len(out) * 4 == TAB_STRIDE and all(0 <= v < 2 ** 32 for v in out)
    return out


class Gen:
    def __init__(self, opts):
        self.o = opts
        self.e = Emitter()
        self.tail = []
        self.V = Regs('v', 1, 256)
        self.V.small_hi = 48
        self.A = Regs('a', 0, 256)
        self.nstamp = 0
        self.npoll = 0
        self.nslow = 0
        self.stamp_names = []
        self.stamp_model = []
        self.bg = collections.deque()
        self.gap = opts.get('gap', 48)
        self.extra_gap = 0
        self.nasync = 0
        self.cache = {}

    def setup(self, reg, key, texts):
        if self.cache.get(reg) != key:
            for x in texts:
                self.e(x)
            self.cache[reg] = key

    def _hook(self):
        e = self.e
        if self.bg and e.now - e.last_vm >= self.gap + self.extra_gap:
            self.extra_gap = 0
            self.bg_one()

    def bg_one(self):
        self.bg.popleft()()
        if self.bg and hasattr(self.bg[0], 'pre'):
            for a in self.bg[0].pre:
                self.setup(*a)

    def pace(self, on):
        self.e.hook = self._hook if on else None

    def bg_flush(self, n=None):
        e = self.e
        h, e.hook = e.hook, None
        k = 0
        while self.bg and (n is None or k < n):
            self.bg_one()
            k += 1
        e.hook = h

    def bg_until(self, cond):
        e = self.e
        h, e.hook = e.hook, None
        while not cond():
            self.bg_one()
        e.hook = h

    def poll_issue(self, voff, soff, vtmp, imm=0):
        self.e('buffer_load_dword %s, %s, s[32:35], %s offen offset:%d sc1' % (vtmp, voff, soff, imm))

    def poll_check(self, voff, soff, vtmp, imm=0):
        e = self.e
        h, e.hook = e.hook, None
        k = self.nasync
        self.nasync += 1
        e('v_cmp_ne_u32 vcc, s6, %s' % vtmp)
        e('s_cbranch_vccnz L_aspin%d' % k)
        e('L_aok%d:' % k)
        e.hook = h
        self.tail.append(
            'L_aspin%d:\n    buffer_load_dword %s, %s, s[32:35], %s offen offset:%d sc1\n    s_add_u32 s96, s96, 1\n'
            '    s_cmp_gt_u32 s96, s97\n    s_waitcnt vmcnt(0)\n    s_cbranch_scc1 L_aok%d\n'
            '    v_cmp_ne_u32 vcc, s6, %s\n    s_nop 1\n    s_cbranch_vccnz L_aspin%d\n    s_branch L_aok%d\n'
            % (k, vtmp, voff, soff, imm, k, vtmp, k, k))

    def stamp(self, name):
        if not self.o.get('stamps'):
            return
        if self.o.get('only') and name not in ('start', 'end', 'dummy') and name not in self.o['only'].split(',') \
                and not any(name.startswith(x[:-1]) for x in self.o['only'].split(',') if x.endswith('*')):
            return
        k = self.nstamp
        assert k < 28
        if k > 0:
            self.e('v_writelane_b32 %s, s%d, %d' % (self.vstamp, 72 + 2 * ((k - 1) & 1), k - 1))
        self.e('s_memtime s[%d:%d]' % (72 + 2 * (k & 1), 73 + 2 * (k & 1)))
        self.stamp_names.append(name)
        self.stamp_model.append(self.e.now)
        self.nstamp += 1

    def poll(self, voff, soff, vtmp, mask=None, width=1, imm=0):
        e = self.e
        k = self.npoll
        self.npoll += 1
        e('v_mov_b32 %s, 0' % vtmp[0])
        if width == 2:
            e('v_mov_b32 %s, 0' % vtmp[1])
        r = lambda x: e.raw('    ' + x)
        e.raw('L_poll%d:' % k)
        if width == 1:
            r('buffer_load_dword %s, %s, s[32:35], %s offen offset:%d sc1' % (vtmp[0], voff, soff, imm))
        else:
            r('buffer_load_dwordx2 %s, %s, s[32:35], %s offen offset:%d sc1' % (vtmp.sub(0, 2), voff, soff, imm))
        r('s_add_u32 s96, s96, 1')
        r('s_cmp_gt_u32 s96, s97')
        r('s_waitcnt vmcnt(0)')
        r('s_cbranch_scc1 L_pdone%d' % k)
        if width == 1:
            r('v_cmp_ne_u32 vcc, s6, %s' % vtmp[0])
        else:
            r('v_xor_b32 %s, s6, %s' % (vtmp[0], vtmp[0]))
            r('v_xor_b32 %s, s6, %s' % (vtmp[1], vtmp[1]))
            r('v_or_b32 %s, %s, %s' % (vtmp[0], vtmp[0], vtmp[1]))
            r('v_cmp_ne_u32 vcc, 0, %s' % vtmp[0])
        if mask is not None:
            r('s_nop 0')
            r('s_and_b64 vcc, vcc, %s' % mask)
        else:
            r('s_nop 0')
        r('s_cbranch_vccnz L_poll%d' % k)
        e.raw('L_pdone%d:' % k)

    def data_stores(self, stores):
        if self.o.get('ftype'):
            return self.mode_stores(stores)
        return [self.e(s + ' sc1') for s in stores]

    def mode_stores(self, stores):
        e = self.e
        if self.o.get('force_sc1'):
            return [e(s + ' sc1') for s in stores]
        k = self.nslow
        self.nslow += 1
        hook, e.hook = e.hook, None
        e('s_cmp_eq_u32 s7, 0')
        e('s_cbranch_scc1 L_slow%d' % k)
        toks = [e(s) for s in stores]
        e('L_back%d:' % k)
        e.hook = hook
        t = 'L_slow%d:\n    s_nop 4\n' % k
        for s in stores:
            t += '    ' + s + ' sc1\n'
        t += '    s_nop 1\n    s_branch L_back%d\n' % k
        self.tail.append(t)
        return toks

    @staticmethod
    def weave(e, main, fill, per=None, lead=0):
        def put(x):
            if callable(x):
                x()
            else:
                e(x)
        fill = list(fill)
        n = len(main)
        pos = 0
        for k, m in enumerate(main):
            put(m)
            if per is None:
                upto = (len(fill) * (k + 1) + n - 1) // n
            else:
                upto = min(len(fill), pos + (per[k] if isinstance(per, (list, tuple)) else per))
            while pos < upto:
                put(fill[pos])
                pos += 1
        while pos < len(fill):
            put(fill[pos])
            pos += 1

    def dump_v(self, regs, slot, nregs_total=None):
        e = self.e
        e('s_lshl_b32 s98, s2, 2')
        e('s_add_u32 s98, s98, s3')
        e('s_lshl_b32 s98, s98, 14')
        e('s_add_u32 s98, s98, 0x%x' % (WS_DUMP + slot * 0x1000000))
        t = self.V.alloc('dump_t', 2)
        e('v_lshlrev_b32 %s, 2, %s' % (t[0], self.vlane))
        for k, r in enumerate(regs):
            src = r
            if r.kind == 'a':
                e('v_accvgpr_read_b32 %s, %s' % (t[1], r))
                src = t[1]
            e('buffer_store_dword %s, %s, s[32:35], s98 offen offset:%d' % (src, t[0], (k % 16) * 256))
            if k % 16 == 15:
                e('s_add_u32 s98, s98, 4096')
            e('s_waitcnt vmcnt(0)')
        self.V.release('dump_t')

    def build(self):
        stop = self.o.get('stop', '')
        self.cold = ''
        for name, fn in (('pro', self.prologue), ('p1', self.p1), ('attn', self.attention),
                         ('p3', self.p3), ('p4', self.p4), ('p5', self.p5)):
            fn()
            if name == stop:
                break
        self.finish()
        return self.text()

    def prologue(self):
        e, V, A = self.e, self.V, self.A
        o = self.o
        e('s_load_dwordx4 s[40:43], s[0:1], 0')
        e('s_cmp_ge_u32 s2, 256')
        e('s_cbranch_scc1 L_end')
        if o.get('stamps') or o.get('padto'):
            e('s_memrealtime s[94:95]')
            self.vstamp = R('v', 0, 1)
        self.stamp('start')
        self.vlane = V.alloc('lane', at=1)
        self.vflag = V.alloc('flagoff', at=3)
        self.vtag = V.alloc('tag', at=12)
        self.vh = V.alloc('h', at=13)
        self.hz = V.alloc('hz', at=14)
        self.vout = V.alloc('vout', at=15)
        self.vw2 = V.alloc('vw2', 2, at=16)
        V.alloc('resv_vw1', 4, at=18)
        self.vl16 = V.alloc('l16', at=2)
        vlane, vl16 = self.vlane, self.vl16
        t = V.alloc('pt', 8, 2, at=4)
        self.pt = t
        self.vdummy = V.alloc('dummy')
        e('s_getpc_b64 s[92:93]')
        e('L_pc:')
        e('v_lshrrev_b32 %s, 5, v0' % t[1])
        e('v_and_or_b32 %s, s2, -8, %s' % (t[1], t[1]))
        e('v_lshrrev_b32 %s, 6, v0' % t[0])
        e('v_lshlrev_b32 %s, 7, %s' % (t[1], t[1]))
        e('v_and_b32 %s, 63, v0' % vlane)
        e('v_min_u32 %s, L_codeend-L_pc-4, %s' % (t[1], t[1]))
        e('v_readfirstlane_b32 s3, %s' % t[0])
        e('global_load_dword %s, %s, s[92:93]' % (self.vdummy, t[1]))
        if o.get('spread'):
            e('s_lshr_b32 s4, s2, 3')
            e('s_and_b32 s5, s2, 7')
        else:
            e('s_and_b32 s4, s2, 7')
            e('s_lshl_b32 s4, s4, 2')
            e('s_lshr_b32 s5, s2, 6')
            e('s_add_u32 s4, s4, s5')
            e('s_bfe_u32 s5, s2, 0x30003')
        self.vxA, self.vxB = V.alloc('xA'), V.alloc('xB')
        self.vwA, self.vwQ = V.alloc('wA'), V.alloc('wQ')
        self.vsw = V.alloc('swz')
        e('v_lshrrev_b32 %s, 3, %s' % (t[3], vlane))
        e('v_and_b32 %s, 7, %s' % (t[4], vlane))
        e('v_lshrrev_b32 %s, 4, %s' % (t[5], vlane))
        e('s_lshl_b32 s98, s4, 6')
        e('s_lshl_b32 s99, s3, 4')
        e('s_add_u32 s98, s98, s99')
        e('v_add_lshl_u32 %s, %s, s98, 10' % (t[6], t[3]))
        e('v_xor_b32 %s, %s, %s' % (t[7], t[4], t[5]))
        e('v_lshl_add_u32 %s, %s, 4, %s' % (self.vxA, t[7], t[6]))
        e('v_and_b32 %s, 1, %s' % (t[5], t[5]))
        e('v_lshlrev_b32 %s, 2, %s' % (t[5], t[5]))
        e('v_xor_b32 %s, %s, %s' % (t[4], t[4], t[5]))
        e('v_lshlrev_b32 %s, 4, %s' % (self.vsw, t[4]))
        e('v_add_u32 %s, s99, %s' % (t[2], t[3]))
        e('v_mul_u32_u24 %s, 3072, %s' % (t[2], t[2]))
        e('s_lshl_b32 s98, s5, 7')
        e('v_add3_u32 %s, %s, s98, %s' % (self.vwA, t[2], self.vsw))
        e('s_lshl_b32 s101, s3, 11')
        e('s_mov_b32 s10, 0x%x' % (2048 * 1024))
        e('s_mov_b32 s11, 0x20000')
        e('s_mov_b32 s14, 0x%x' % (512 * 3072))
        e('s_mov_b32 s15, 0x20000')
        e('v_xor_b32 %s, 64, %s' % (self.vxB, self.vxA))
        e('v_add_u32 %s, %d, %s' % (self.vxB, 8192 - 1024, self.vxB))
        e('v_add_u32 %s, %d, %s' % (self.vwQ, 24576 - 1024, self.vwA))
        for base, src in ((8, 40), (12, 42)):
            e('s_mov_b32 s%d, s%d' % (base, src))
            e('s_and_b32 s%d, s%d, 0xffff' % (base + 1, src + 1))
        e('s_lshl_b32 s43, s4, 1')
        if o.get('rotx'):
            e('s_add_u32 s43, s43, s5')
        self.dma_tok = {(k, c): [] for k in 'xkvq' for c in range(8)}
        self.dmaq = []
        order = o.get('order', 'x0,k0,x1,k1,x2,k2,x3,k3,x4,k4,x5,k5,x6,k6,v0,x7,k7,v1,v2,v3,q0,v4,v5,v6,v7,q1,q2,q3,q4,q5,q6,q7').split(',')
        self.dma_order = [(x[0], int(x[1])) for x in order]
        for k, c in self.dma_order:
            self.dmaq += self.p1_items(k, c)
        self.dma_pos = 0
        self.release_dma(o.get('win', 14))
        self.stamp('dma0')
        self.bg_flush(4)
        e('s_load_dwordx8 s[44:51], s[0:1], 16')
        e('s_load_dwordx4 s[52:55], s[0:1], 48')
        e('s_load_dwordx2 s[32:33], s[0:1], 64')
        e('s_lshl_b32 s98, s4, 5')
        e('s_lshl2_add_u32 s98, s5, s98')
        e('s_add_u32 s98, s98, s3')
        e('s_mul_i32 s98, s98, %d' % TAB_STRIDE)
        e('s_add_u32 s98, s98, L_tab-L_pc')
        e('s_add_u32 s92, s92, s98')
        e('s_addc_u32 s93, s93, 0')
        e('s_load_dwordx16 s[76:91], s[92:93], 0')
        e('s_lshl_b32 s1, s5, 7')
        e('s_lshl_b32 s98, s3, 15')
        e('s_add_u32 s1, s1, s98')
        e('s_lshl_b32 s5, s3, 12')
        self.pace(True)
        e('v_lshlrev_b32 %s, 4, %s' % (vl16, vlane))
        e('s_mov_b32 s38, 0x0000ffff')
        e('s_mov_b32 s39, 0x0000ffff')
        e('s_mov_b32 s96, 0')
        e('s_mov_b32 s97, %d' % SPIN_LIMIT)
        e('v_cmp_eq_u32 vcc, 0, %s' % vlane)
        e('v_mov_b32 %s, 0x%x' % (t[0], OOB))
        e('v_cndmask_b32 %s, %s, 0, vcc' % (self.vflag, t[0]))

    def late_args(self):
        e, t = self.e, self.pt
        for base, src, nbytes in ((16, 44, 512 * 1024), (20, 48, 512 * 3584), (24, 50, 1792 * 1024),
                                  (28, 52, 2048 * 1024)):
            e('s_mov_b32 s%d, s%d' % (base, src))
            e('s_and_b32 s%d, s%d, 0xffff' % (base + 1, src + 1))
            e('s_mov_b32 s%d, 0x%x' % (base + 2, nbytes))
            e('s_mov_b32 s%d, 0x20000' % (base + 3))
        e('s_and_b32 s33, s33, 0xffff')
        e('s_mov_b32 s34, 0x%x' % WS_BYTES)
        e('s_mov_b32 s35, 0x20000')
        e('s_mov_b64 s[36:37], s[54:55]')
        self.pace(False)
        e('s_or_b32 s98, s2, s3')
        e('s_cmp_lg_u32 s98, 0')
        e('s_cbranch_scc1 L_notag')
        e('s_load_dword s98, s[32:33], 0')
        e('s_waitcnt lgkmcnt(0)')
        e('s_mul_i32 s98, s98, 0x9E3779B1')
        e('s_add_u32 s98, s98, 0x7F4A7C15')
        e('s_cmp_lt_u32 s98, 16')
        e('s_cselect_b32 s98, 0x2545F491, s98')
        e('v_mov_b32 %s, s98' % t[0])
        e('v_mov_b32 %s, 0' % t[1])
        e('s_mov_b64 exec, 1')
        if self.o.get('pad0'):
            e('v_mov_b32 %s, s94' % t[2])
            e.raw('    global_store_dword %s, %s, s[36:37] offset:32 sc1' % (t[1], t[2]))
            e.raw('    s_waitcnt vmcnt(0)')
        e.raw('    global_store_dword %s, %s, s[36:37] sc1' % (t[1], t[0]))
        e.raw('    buffer_store_dword %s, %s, s[32:35], 0 offen sc1' % (t[0], t[1]))
        e('s_mov_b64 exec, -1')
        e('s_nop 1')
        e('L_notag:')
        e('s_load_dwordx8 s[44:51], s[92:93], 64')
        e('s_load_dwordx4 s[52:55], s[92:93], 96')
        self.pace(True)

    def release_dma(self, upto):
        upto = min(upto, len(self.dmaq))
        while self.dma_pos < upto:
            self.bg.append(self.dmaq[self.dma_pos])
            self.dma_pos += 1

    @staticmethod
    def p1_base(kind, c):
        special = {('v', 0): L_KX, ('v', 1): L_VX, ('q', 0): L_QX}
        return special.get((kind, c), (L_XR if kind in 'xq' else L_WK) + c * 8192)

    def release_p1(self, landed, bar):
        idx = 2 * (self.dma_order.index(landed) + 1) + self.o.get('win', 14)
        n = 0
        for k, c in self.dma_order:
            if (k == 'v' and c >= 2 and c + 1 > bar) or (k == 'q' and c >= 1 and bar < 8):
                break
            n += 2
        self.release_dma(min(idx, n))

    def p1_items(self, kind, c):
        e = self.e
        tk = self.dma_tok[(kind, c)]
        base = self.p1_base(kind, c)
        srd = 's[8:11]' if kind == 'x' else 's[12:15]'
        va, vb = (self.vxA, self.vxB) if kind == 'x' else (self.vwA, self.vwQ)

        sec = {'x': 0, 'q': 0, 'k': 1024, 'v': 2048}[kind]
        so = 's%d' % ((64 if kind == 'x' else 56) + c)
        pre = [('m0', ('w2k', base - sec), ['s_add_u32 m0, s101, %d' % (base - sec)]),
               ('so%d' % c, 1, ['s_add_u32 s100, s43, %d' % c, 's_and_b32 s100, s100, 7',
                                's_lshl_b32 s%d, s100, 7' % (64 + c), 's_mul_i32 s%d, s100, 196608' % (56 + c)])]

        def it(v, imm):
            def f():
                for a in pre:
                    self.setup(*a)
                if self.o.get('nodma') and (kind, c) not in (('x', 0), ('k', 0)):
                    tk.append(self.dma_tok[('x', 0)][0])
                    e('s_nop 0')
                    e.last_vm = e.now
                    return
                nt = ' nt' if kind in str(self.o.get('nt', '')) else ''
                tk.append(e('buffer_load_dwordx4 %s, %s, %s offen offset:%d%s lds' % (v, srd, so, imm + sec, nt)))
            f.pre = pre
            return f
        return [it(va, 0), it(vb, 1024)]

    def p1(self):
        e, V, A = self.e, self.V, self.A
        o = self.o
        t = self.pt
        vlane = self.vlane
        WIN = o.get('win', 14)
        e('s_and_b32 s40, s3, 1')
        e('s_lshr_b32 s41, s3, 1')
        e('s_lshl_b32 s42, s40, 1')
        e('s_or_b32 s42, s42, s41')
        vx = V.alloc('vx', 4)
        vw = V.alloc('vw', 4)
        vv = V.alloc('vv', 4, at=140)
        vz = V.alloc('vz', 4, at=148)
        self.vtrb = V.alloc('trb')
        self.vq3 = V.alloc('q3')
        vh = self.vh
        e('v_lshrrev_b32 %s, 5, %s' % (vh, vlane))
        e('v_bfe_u32 %s, %s, 3, 1' % (self.vq3, vlane))
        e('v_bfe_u32 %s, %s, 2, 2' % (t[0], vlane))
        e('v_lshlrev_b32 %s, 7, %s' % (t[0], t[0]))
        e('v_bfe_u32 %s, %s, 4, 1' % (t[2], vlane))
        e('v_lshl_add_u32 %s, %s, 5, %s' % (t[0], t[2], t[0]))
        e('v_and_b32 %s, 3, %s' % (t[1], vlane))
        e('v_lshl_add_u32 %s, %s, 3, %s' % (self.vtrb, t[1], t[0]))
        e('v_xor_b32 %s, s41, %s' % (t[1], self.vq3))
        e('v_lshl_add_u32 %s, %s, 6, %s' % (t[1], t[1], self.vtrb))
        e('v_lshl_add_u32 %s, %s, 10, %s' % (t[1], vh, t[1]))
        e('v_and_b32 %s, 31, %s' % (t[2], vlane))
        e('s_lshl_b32 s98, s40, 12')
        e('s_add_u32 s98, s98, %d' % L_XR)
        e('v_lshl_add_u32 %s, %s, 7, s98' % (t[2], t[2]))
        e('v_bfe_u32 %s, %s, 1, 3' % (t[3], vlane))
        e('v_xor_b32 %s, %s, %s' % (t[3], t[3], vh))
        for p in range(4):
            e('s_xor_b32 s98, s42, %d' % p)
            e('s_lshl_b32 s99, s98, 11')
            e('s_add_u32 s99, s99, %d' % L_WK)
            e('v_add_u32 %s, s99, %s' % (vw[p], t[1]))
            e('s_lshl_b32 s98, s98, 1')
            e('v_xor_b32 %s, s98, %s' % (t[7], t[3]))
            e('v_lshl_add_u32 %s, %s, 4, %s' % (vx[p], t[7], t[2]))
        ones = V.alloc('ones', 4, 2)
        self.ones = ones
        e('v_lshrrev_b32 %s, 4, %s' % (t[0], vlane))
        e('v_xor_b32 %s, %s, %s' % (t[0], t[0], vlane))
        e('v_and_b32 %s, 1, %s' % (t[0], t[0]))
        e('v_add_u32 %s, -1, %s' % (t[0], t[0]))
        for k in range(4):
            e('v_and_b32 %s, 0x3f803f80, %s' % (ones[k], t[0]))
        X = A.alloc('X', 128, at=0)
        accK = V.alloc('accK', 16, at=48)
        accV = V.alloc('accV', 16, at=64)
        accQ = accK
        sm = V.alloc('smalls', 16, at=80)
        NB = 6
        WB = A.alloc('WB', 4 * NB, at=128)
        self.HV = V.alloc('HV', 64, at=192)
        self.OWN = A.alloc('OWN', 32, at=224)
        self.bg_flush()
        self.late_args()
        setup = []
        q = setup.append
        for p in range(4):
            q('v_subrev_u32 %s, %d, %s' % (vv[p], L_WK - L_XR, vw[p]))
            q('v_add_u32 %s, %d, %s' % (vz[p], L_KX - L_WK, vw[p]))
        a0, a1 = V.alloc('a0', 2, at=138), V.alloc('a1', 2)
        q('v_and_b32 %s, 31, %s' % (t[0], vlane))
        q('s_lshl_b32 s98, s40, 9')
        q('v_lshl_add_u32 %s, %s, 4, s98' % (a0[0], t[0]))
        q('s_lshl_b32 s98, s41, 3')
        q('v_add_u32 %s, s98, %s' % (a0[1], a0[0]))
        q('v_bfe_u32 %s, %s, 2, 1' % (t[1], vlane))
        q('v_cmp_eq_u32 vcc, %s, %s' % (t[1], vh))
        q('v_mov_b32 %s, %d' % (t[1], L_DUMMY))
        q('s_lshl_b32 s98, s41, 8')
        q('v_cndmask_b32 %s, %s, %s, vcc' % (a0[1], t[1], a0[1]))
        q('v_lshl_add_u32 %s, %s, 3, s98' % (a1[0], t[0]))
        q('s_lshl_b32 s98, s40, 2')
        q('v_add_u32 %s, s98, %s' % (a1[1], a1[0]))
        q('v_sub_u32 %s, 1, %s' % (self.hz, vh))
        q('v_cvt_f32_u32 %s, %s' % (self.hz, self.hz))
        rsa = V.alloc('rsa', 2, at=132)
        q('s_lshl_b32 s98, s3, 7')
        q('v_lshl_add_u32 %s, %s, 2, s98' % (rsa[0], t[0]))
        q('v_lshl_add_u32 %s, %s, 4, s98' % (rsa[1], vh))
        vkg, vvg, vkx, vvx = (V.alloc('vkg', at=128), V.alloc('vvg', at=129), V.alloc('vkx', at=130),
                              V.alloc('vvx', at=131))
        q('v_add_u32 %s, 4096, %s' % (vkg, self.vl16))
        q('v_and_b32 %s, 15, %s' % (t[0], vlane))
        q('v_lshl_add_u32 %s, %s, 4, %s' % (t[0], vh, t[0]))
        self.vidx16 = V.alloc('idx16')
        q('v_lshlrev_b32 %s, 4, %s' % (self.vidx16, t[0]))
        q('v_bfe_u32 %s, %s, 4, 1' % (t[1], vlane))
        q('v_lshl_add_u32 %s, %s, 12, %s' % (vvg, t[1], self.vidx16))
        q('s_lshl_b32 s98, s41, 12')
        q('s_lshl_b32 s99, s40, 10')
        q('s_add_u32 s98, s98, s99')
        q('v_add_u32 %s, s98, %s' % (vkx, self.vl16))
        q('v_lshl_add_u32 %s, %s, 11, %s' % (t[2], t[1], self.vidx16))
        q('v_add_u32 %s, s98, %s' % (vvx, t[2]))
        q('v_add_u32 %s, %d, %s' % (vvx, L_VX, vvx))
        vqx = self.vw2[0]
        q('v_add_u32 %s, %d, %s' % (vqx, L_QX, vkx))
        q('v_add_u32 %s, %d, %s' % (vkx, L_KX, vkx))
        self.vpf = V.alloc('vpf')
        q('v_bfe_u32 %s, %s, 1, 2' % (t[0], vlane))
        q('v_lshlrev_b32 %s, 12, %s' % (t[2], t[0]))
        q('v_and_b32 %s, 1, %s' % (t[1], vlane))
        q('v_lshl_add_u32 %s, %s, 7, %s' % (self.vpf, t[1], t[2]))
        vxr = self.vout
        q('v_bfe_u32 %s, %s, 1, 3' % (t[0], vlane))
        q('v_xor_b32 %s, %s, %s' % (t[0], t[0], vh))
        q('s_lshl_b32 s98, s40, 2')
        q('v_xor_b32 %s, s98, %s' % (t[0], t[0]))
        q('v_and_b32 %s, 31, %s' % (t[1], vlane))
        q('v_lshlrev_b32 %s, 7, %s' % (t[1], t[1]))
        q('v_lshl_add_u32 %s, %s, 4, %s' % (vxr, t[0], t[1]))
        vt = self.vw2[1]
        self.vt = vt
        q('v_mov_b32 %s, 0' % vt)
        vr = V.alloc('vr', 3, at=134)
        q('v_add_u32 %s, s101, %s' % (vr[0], self.vl16))
        q('v_add_u32 %s, %d, %s' % (vr[1], L_KX, vr[0]))
        q('v_add_u32 %s, s101, %s' % (vr[2], self.vidx16))
        q('v_add_u32 %s, %d, %s' % (vr[2], L_VX, vr[2]))
        Cl = V.alloc('Cl', 16, at=160)
        Cu = V.alloc('Cu', 16, at=176)
        self.Cl, self.Cu = Cl, Cu
        BIG = 2.0 ** 100
        q('v_and_b32 %s, 31, %s' % (t[0], vlane))
        q('v_lshlrev_b32 %s, 2, %s' % (t[1], vh))
        q('v_sub_u32 %s, %s, %s' % (t[0], t[0], t[1]))
        q('v_cvt_f32_i32 %s, %s' % (t[0], t[0]))
        q('v_mov_b32 %s, %s' % (t[1], hexf(BIG)))
        q('v_mov_b32 %s, %s' % (t[2], hexf(-BIG)))
        for r in range(16):
            cr = (r & 3) + 8 * (r >> 2)
            q('v_fmaak_f32 %s, %s, %s, %s' % (Cl[r], t[0], t[1], hexf(-cr * BIG)))
            q('v_med3_f32 %s, %s, %s, 0' % (Cl[r], Cl[r], t[2]))
            q('v_sub_f32 %s, %s, %s' % (Cu[r], t[2], Cl[r]))
        for n in range(4):
            q('s_add_u32 s98, s4, %d' % n)
            q('s_cmp_ge_u32 s98, 4')
            q('s_cselect_b32 s98, 0x3f803f80, 0')
            q('s_mov_b32 s99, s98')
            for r in range(0, 16, 2):
                q('v_mov_b64 %s, s[98:99]' % self.HV.sub(n * 16 + r, 2))
        q('v_mov_b32 %s, 0x3f803f80' % t[0])
        for r in range(16):
            q('v_accvgpr_write_b32 %s, %s' % (self.OWN[8 + r], t[0]))

        M4 = 'v_mfma_f32_4x4x4_16b_bf16 %s, %s, %s, %s'

        def buf(n):
            return WB.sub((n % NB) * 4, 4)

        def reads(n):
            ps, pa = divmod(n, 32)
            c, p = divmod(pa, 4)
            out = []
            if ps == 0:
                out.append('ds_read_b128 %s, %s offset:%d' % (X.sub(4 * pa, 4), vx[p], c * 8192))
            base = self.p1_base('kvq'[ps], c)
            if base >= L_KX:
                ad, off = vz[p], base - L_KX
            elif base >= L_WK:
                ad, off = vw[p], base - L_WK
            elif base >= L_XR:
                ad, off = vv[p], base - L_XR
            else:
                ad, off = vz[p], 0
            out += ['ds_read_b64_tr_b16 %s, %s offset:%d' % (buf(n).sub(0, 2), ad, off),
                    'ds_read_b64_tr_b16 %s, %s offset:%d' % (buf(n).sub(2, 2), ad, off + 512)]
            return out

        def big(n):
            ps, pa = divmod(n, 32)
            x = X.sub(4 * pa, 4)
            acc = accV if ps == 1 else accK
            c0 = '0' if pa == 0 else acc
            if ps == 1:
                return 'v_mfma_f32_32x32x16_bf16 %s, %s, %s, %s' % (acc, x, buf(n), c0)
            return 'v_mfma_f32_32x32x16_bf16 %s, %s, %s, %s' % (acc, buf(n), x, c0)

        G = R('v', 96, 16)
        M16 = 'v_mfma_f32_16x16x32_bf16 %s, %s, %s, %s'

        def smalls(n):
            ps, pa = divmod(n, 32)
            p = pa % 4
            x = X.sub(4 * pa, 4)
            a = []
            if ps == 0 and p & 1 == 0:
                a += ['v_mfma_f32_32x32x16_bf16 %s, %s, %s, %s' % (G, x, x, '0' if pa == 0 else G),
                      M16 % (sm.sub(4, 4), ones, x, '0' if pa == 0 else sm.sub(4, 4))]
            if p & 2 == 0:
                a += [M16 % (sm.sub(8, 4), ones, buf(n), '0' if pa == 0 else sm.sub(8, 4))]
            return a

        last_read = [None]

        def barrier(vm=(), lgkm=()):
            toks = []
            for k in vm:
                self.bg_until(lambda: len(self.dma_tok[k]) == 2)
                toks += self.dma_tok[k]
            self.pace(False)
            e('s_barrier' if not o.get('nobar') else 's_nop 0', wait_vm=toks,
              wait_lgkm=list(lgkm) + ([last_read[0]] if last_read[0] else []))
            self.pace(True)

        RA = 2
        PK = V.alloc('PK', 16, at=96)
        stb = V.alloc('stb', 12, at=112)
        st = V.alloc('st', 2, at=156)
        cc = V.alloc('cc', at=158)
        mB = V.alloc('mB', 4, at=152)
        cF = V.alloc('cF', 4, at=144)
        rs = V.alloc('rs', 2, 2)
        kv_st = []
        xw = []
        fills = collections.deque()

        def cs_write(sec):
            def f():
                e('v_cndmask_b32 %s, %s, %s, s[38:39]' % (t[3], sm[9], sm[8]))
                return e('ds_write_b32 %s, %s offset:%d' % (a1[1], t[3], L_CS + 512 * sec))
            return f

        def cs_chain(sec):
            c4 = stb.sub(8, 2)
            return ['v_add_f32 %s, %s, %s' % (cc, c4[0], c4[1]),
                    'v_mul_f32 %s, %s, %s' % (cc, self.hz, cc)] + self.aug_ops(cF, cc, t[6], True)[:4]

        def gstore(txt):
            def f():
                h, e.hook = e.hook, None
                kv_st.append(e(txt) if not o.get('nostore') else self.dma_tok[('x', 0)][0])
                e.hook = h
                self.extra_gap = o.get('stgap1', 128)
            return f

        def k_epi():
            ops = []
            for hd in range(2):
                ops += ['v_mul_f32 %s, %s, %s' % (accK[r], rs[0], accK[r]) for r in range(8 * hd, 8 * hd + 8)]
                ops += ['v_cvt_pk_bf16_f32 %s, %s, %s' % (PK[r], accK[2 * r], accK[2 * r + 1])
                        for r in range(4 * hd, 4 * hd + 4)]
                ops.append(gstore('buffer_store_dwordx4 %s, %s, s[32:35], s84 offen sc1' % (
                    PK.sub(4 * hd, 4), vkg if hd else self.vl16)))
                ops.append(lambda hd=hd: xw.append(e('ds_write_b128 %s, %s offset:%d' % (vkx, PK.sub(4 * hd, 4), 2048 * hd))))
            return ops

        rTr = [stb.sub(0, 4), stb.sub(4, 4), sm.sub(0, 4), sm.sub(12, 4)]

        def v_epi():
            ops = []
            for m in range(2):
                ops += ['v_mul_f32 %s, %s, %s' % (accV[r], rTr[r >> 2][r & 3], accV[r]) for r in range(8 * m, 8 * m + 8)]
                ops += ['v_cvt_pk_bf16_f32 %s, %s, %s' % (PK[8 + r], accV[2 * r], accV[2 * r + 1])
                        for r in range(4 * m, 4 * m + 4)]
                ops.append(gstore('buffer_store_dwordx4 %s, %s, s[32:35], s84 offen offset:%d sc1' % (
                    PK.sub(8 + 4 * m, 4), vvg, 1024 + 512 * m)))
                ops.append(lambda m=m: xw.append(e('ds_write_b128 %s, %s offset:%d' % (vvx, PK.sub(8 + 4 * m, 4), 512 * m))))
            return ops

        def tag_and_flag():
            self.pace(False)
            e('v_cmp_eq_u32 vcc, 0, %s' % self.vtag)
            e('s_cbranch_vccnz L_tagspin')
            e('L_tagok:')
            self.tail.append(
                'L_tagspin:\n    global_load_dword %s, %s, s[36:37] sc1\n    s_add_u32 s96, s96, 1\n'
                '    s_cmp_gt_u32 s96, s97\n    s_waitcnt vmcnt(0)\n    s_cbranch_scc1 L_tagok\n'
                '    v_cmp_eq_u32 vcc, 0, %s\n    s_nop 1\n    s_cbranch_vccnz L_tagspin\n    s_branch L_tagok\n'
                % (self.vtag, vt, self.vtag))
            assert len(kv_st) == 4
            e('buffer_store_dword %s, %s, s[32:35], s85 offen sc1' % (self.vtag, self.vflag), wait_vm=kv_st)
            self.stamp('kvflag')
            e('v_readfirstlane_b32 s6, %s' % self.vtag)
            self.pace(True)

        V.release('resv_vw1')
        vwo, wo_ops = self.img_voff('vwo', 1024)
        self.vwo = vwo
        vs = V.alloc('vside', 2, at=124)
        side_ops = ['v_lshrrev_b32 %s, 3, %s' % (t[0], vlane),
                    'v_mul_u32_u24 %s, 3584, %s' % (vs[0], t[0]),
                    'v_add_u32 %s, %s, %s' % (vs[0], vs[0], self.vsw),
                    'v_add_u32 %s, %d, %s' % (vs[1], 8 * 3584 - 1024, vs[0])]
        vpt = V.alloc('vpt', 2, at=126)
        pt_ops = ['v_and_b32 %s, 7, %s' % (t[0], vlane),
                  'v_lshlrev_b32 %s, 7, %s' % (t[0], t[0]),
                  'v_mul_u32_u24 %s, %d, %s' % (t[4], H1_GT, self.vq3),
                  'v_add3_u32 %s, %s, %s, s91' % (t[4], t[0], t[4]),
                  'v_and_b32 %s, 0x180, %s' % (t[5], t[0]),
                  'v_add_u32 %s, s54, %s' % (t[5], t[5]),
                  'v_cmp_gt_u32 vcc, 16, %s' % vlane,
                  'v_and_b32 %s, 15, %s' % (t[0], vlane),
                  'v_lshlrev_b32 %s, 7, %s' % (vpt[1], t[0]),
                  'v_cndmask_b32 %s, %s, %s, vcc' % (vpt[0], t[5], t[4]),
                  's_and_b32 s98, s4, 3',
                  'v_add_u32 %s, s90, %s' % (vxr, vxr),
                  's_lshl_b32 s42, s98, 14']

        def pre0():
            e('s_mov_b64 exec, 0xfffff')
            e('buffer_load_dword %s, %s, s[32:35], 0 offen sc1' % (self.vdummy, vpt[0]))
            e('s_mov_b64 exec, 0xffff')
            e('buffer_load_dword %s, %s, s[28:31], s53 offen sc1' % (vpt[0], vpt[1]))
            e('s_mov_b64 exec, -1')
        setup += wo_ops + side_ops
        npre = o.get('npre', 1000)
        for x in setup[:npre]:
            e(x)
        fills.extend(setup[npre:] + (pt_ops if o.get('ftype') else pt_ops[-3:]))
        side = []
        self.side_dma = side

        SL = A.alloc('SL', 16, at=160)
        self.SL = SL

        def sd(v, srd, so, k):
            nt = ' nt' if ('2' if k >= 2 else '1') in str(o.get('nt', '')) else ''
            return lambda: side.append(e('buffer_load_dwordx4 %s, %s, %s, %s offen offset:%d%s' % (
                SL.sub(4 * k, 4), v, srd, so, (k & 1) * 1024, nt)))
        side_items = [sd(vwo[0], 's[24:27]', 's89', 2), sd(vwo[1], 's[24:27]', 's89', 3),
                      sd(vs[0], 's[20:23]', 's88', 0), sd(vs[1], 's[20:23]', 's88', 1)]
        wo_f, self.wo_tok = self.img_dma(vwo, 's[16:19]', 1024, L_WO, 's1')
        self.wo_tok3 = []

        def put(x):
            x() if callable(x) else e(x)

        def step(n, nfill):
            ms = [big(n)] + smalls(n)
            rd = reads(n + RA) if n + RA < 96 else []
            for k, m in enumerate(ms):
                e(m)
                room = 6 if '32x32' in m else 2
                while rd and room > 0:
                    last_read[0] = e(rd.pop(0))
                    room -= 1
                    if k == 0 and len(ms) > 1 and room <= 3:
                        break
                while fills and nfill > 0 and (room > 1 or k == len(ms) - 1):
                    put(fills.popleft())
                    nfill -= 1
                    room -= 1
                while e.scc_live:
                    put(fills.popleft())
            assert not rd

        barrier(vm=[('x', 0), ('k', 0)])
        self.release_p1(('k', 0), 0)
        self.stamp('chunk0')
        for s in reads(0) + reads(1):
            last_read[0] = e(s)
        for n in range(29):
            nxt = n + RA
            if nxt % 4 == 0:
                c = nxt // 4
                barrier(vm=[('x', c), ('k', c)])
                if o.get('chunkstamps'):
                    self.stamp('c%d' % c)
                self.release_p1(('k', c), c)
                if c == 5:
                    self.bg.append(lambda: setattr(self, 'tagld', e(
                        'global_load_dword %s, %s, s[36:37] sc1' % (self.vtag, vt))))
            step(n, o.get('nf1', 4))
        while fills:
            put(fills.popleft())
        s30 = smalls(30)
        e(s30[0])
        for s in reads(31):
            last_read[0] = e(s)
        e(s30[1])
        e(smalls(29)[0])
        e(big(29))
        XRS = A.alloc('xres', 8, at=200)
        self.XRS = XRS
        e('ds_read_b128 %s, %s' % (XRS.sub(0, 4), vxr))
        e('v_xor_b32 %s, 32, %s' % (vxr, vxr))
        e('s_mov_b32 vcc_lo, 0xaaaaaaaa')
        e('s_mov_b32 vcc_hi, 0xaaaaaaaa')
        last_read[0] = e('ds_read_b128 %s, %s' % (XRS.sub(4, 4), vxr))
        e('v_cndmask_b32 %s, %s, %s, s[38:39]' % (sm[4], sm[5], sm[4]))
        w1 = cs_write(1)()
        for j in range(4):
            e('v_cndmask_b32 %s, %s, %s, vcc' % (G[4 * j], G[4 * j], G[4 * j + 1]))
            e('v_cndmask_b32 %s, %s, %s, vcc' % (G[4 * j + 2], G[4 * j + 2], G[4 * j + 3]))
            if j == 1:
                e(big(30))
                e('s_mov_b32 s98, 0xcccccccc')
                e('s_mov_b32 s99, 0xcccccccc')
        e('s_mov_b32 vcc_lo, 0xff00ff00')
        e('s_mov_b32 vcc_hi, 0xff00ff00')
        for j in range(4):
            e('v_cndmask_b32 %s, %s, %s, s[98:99]' % (G[4 * j], G[4 * j], G[4 * j + 2]))
        e('v_cndmask_b32 %s, %s, %s, vcc' % (G[0], G[0], G[4]))
        e('v_cndmask_b32 %s, %s, %s, vcc' % (G[8], G[8], G[12]))
        e('v_cndmask_b32 %s, %s, %s, s[38:39]' % (sm[5], G[8], G[0]))
        w0 = e('ds_write_b64 %s, %s offset:%d' % (a0[1], sm.sub(4, 2), L_ST))
        barrier(vm=[('v', 0), ('v', 1)], lgkm=[w0, w1])
        self.release_dma(o.get('rel_k', 52))
        self.stamp('kdone')
        for s in reads(32) + reads(33):
            last_read[0] = e(s)
        e(big(31))
        e('ds_read_b128 %s, %s offset:%d' % (stb.sub(0, 4), a0[0], L_ST))
        e('ds_read_b64 %s, %s offset:%d' % (stb.sub(8, 2), a1[0], L_CS + 512))
        chain = [
            'v_add_f32 %s, %s, %s' % (st[0], stb[0], stb[2]),
            'v_add_f32 %s, %s, %s' % (st[1], stb[1], stb[3]),
            'v_mul_f32 %s, %s, %s' % (st[0], hexf(-1.0 / 512), st[0]),
            'v_mul_f32 %s, %s, %s' % (st[1], hexf(1.0 / 512), st[1]),
            'v_fma_f32 %s, -%s, %s, %s' % (st[1], st[0], st[0], st[1]),
            'v_max_f32 %s, 0, %s' % (st[1], st[1]),
            'v_add_f32 %s, %s, %s' % (st[1], hexf(1e-5), st[1]),
            'v_rsq_f32 %s, %s' % (rs[0], st[1])]
        chain += self.aug_ops(mB, st[0], t[7], False)
        chain += [lambda: setattr(self, 'rsw', e('ds_write_b32 %s, %s offset:%d' % (rsa[0], rs[0], L_RS)))]
        chain += cs_chain(1) + ['v_mov_b32 %s, 0' % cF[2], 'v_mov_b32 %s, 0' % cF[3]]
        chain += ['v_mfma_f32_32x32x16_bf16 %s, %s, %s, %s' % (accK, cF, mB, accK)]
        for g in range(4):
            chain.append(lambda g=g: e('ds_read_b128 %s, %s offset:%d' % (rTr[g], rsa[1], L_RS + 32 * g),
                                       wait_lgkm=[self.rsw] if g == 0 else None))
        chain += ['s_nop 0'] * 0 + k_epi()
        fills.extend(chain)
        NF = o.get('nf2', 4)
        for n in range(32, 61):
            if n + RA == 40:
                barrier(vm=[('v', c) for c in range(2, 5)])
            if n + RA == 52:
                barrier(vm=[('v', c) for c in range(5, 8)])
            if n == 40:
                for p in range(4):
                    e('v_subrev_u32 %s, %d, %s' % (vz[p], L_KX - L_QX, vz[p]))
            step(n, NF)
            if len(kv_st) == 2 and self.dma_pos < 64:
                self.release_dma(64)
                if o.get('ftype'):
                    self.bg.append(pre0)
        while fills:
            put(fills.popleft())
        for s in smalls(61):
            e(s)
        for s in reads(63):
            last_read[0] = e(s)
        e(big(61))
        w2 = cs_write(2)()
        e(big(62))
        barrier(vm=[('q', 0), ('q', 1)], lgkm=[w2])
        self.stamp('vdone')
        for s in reads(64) + reads(65):
            last_read[0] = e(s)
        e(big(63))
        e('ds_read_b64 %s, %s offset:%d' % (stb.sub(8, 2), a1[0], L_CS + 1024))
        fills.extend(cs_chain(2) + ['v_mfma_f32_32x32x16_bf16 %s, %s, %s, %s' % (accV, mB, cF, accV),
                                    'v_mul_f32 %s, %s, %s' % (rs[0], hexf(0.25 * LOG2E), rs[0])])
        fills.extend(v_epi())
        for n in range(64, 93):
            if n + RA == 72:
                barrier(vm=[('q', c) for c in range(2, 5)])
            if n + RA == 84:
                barrier(vm=[('q', c) for c in range(5, 8)])
            step(n, NF)
            if len(kv_st) == 4 and wo_f:
                self.stamp('kvpub')
                nwo = o.get('wo_early', 6)
                self.bg.extend(side_items + wo_f[:nwo])
                self.wo_rest = wo_f[nwo:]
                wo_f = None
            if n == o.get('kvflag_at', 90):
                tag_and_flag()
        assert not fills
        for s in smalls(93):
            e(s)
        for s in reads(95):
            last_read[0] = e(s)
        e(big(93))
        w3 = cs_write(0)()
        e(big(94))
        barrier(lgkm=[w3] + xw)
        e('ds_read_b64 %s, %s offset:%d' % (stb.sub(8, 2), a1[0], L_CS))
        e(big(95))
        OWN = self.OWN
        e('ds_read_b128 %s, %s offset:1024' % (OWN.sub(4, 4), vr[1]))
        e('ds_read_b128 %s, %s' % (OWN.sub(0, 4), vr[1]))
        for s in cs_chain(0):
            e(s)
        e('v_mfma_f32_32x32x16_bf16 %s, %s, %s, %s' % (accQ, cF, mB, accQ))
        self.pace(False)
        e('s_mov_b64 exec, s[38:39]')
        e('ds_read_b128 %s, %s offset:1024' % (OWN.sub(16, 4), vr[2]))
        e('ds_read_b128 %s, %s offset:1536' % (OWN.sub(20, 4), vr[2]))
        e('ds_read_b128 %s, %s' % (OWN.sub(8, 4), vr[2]))
        e('ds_read_b128 %s, %s offset:512' % (OWN.sub(12, 4), vr[2]))
        e('s_mov_b64 exec, -1')
        self.pace(True)
        e('s_getreg_b32 s0, hwreg(HW_REG_XCC_ID, 0, 4)')
        e('v_xor_b32 %s, s0, %s' % (vt, self.vtag))
        e('buffer_store_dword %s, %s, s[32:35], s86 offen sc1' % (vt, self.vflag))
        w = []
        for hd in range(2):
            for r in range(8 * hd, 8 * hd + 8, 2):
                e('v_pk_mul_f32 %s, %s, %s op_sel_hi:[1,0]' % (accQ.sub(r, 2), accQ.sub(r, 2), rs))
            for r in range(4 * hd, 4 * hd + 4):
                e('v_cvt_pk_bf16_f32 %s, %s, %s' % (PK[r], accQ[2 * r], accQ[2 * r + 1]))
            w.append(e('ds_write_b128 %s, %s offset:%d' % (vqx, PK.sub(4 * hd, 4), 2048 * hd)))
        self.bg_until(lambda: len(side) == 4)
        self.pace(False)
        e('s_barrier', wait_lgkm=w)
        self.pace(True)
        e('ds_read_b128 %s, %s offset:%d' % (OWN.sub(28, 4), vr[0], L_QX + 1024))
        e('ds_read_b128 %s, %s offset:%d' % (OWN.sub(24, 4), vr[0], L_QX))
        self.stamp('qdone')
        V.release('accK', 'accV', 'st', 'cc', 'cF', 'stb', 'vkg', 'vvg', 'vkx', 'vvx', 'rsa', 'xA', 'xB', 'vx', 'a0',
                  'vv', 'vz', 'vr', 'mB', 'rs', 'a1', 'vw', 'wA', 'wQ', 'PK', 'smalls', 'vside', 'dummy', 'vpt')
        A.release('WB', 'X')

    def aug_ops(self, dst, val, tmp, dup):
        ops = ['v_cvt_pk_bf16_f32 %s, %s, %s' % (dst[0], val, val),
               'v_and_b32 %s, 0xffff0000, %s' % (tmp, dst[0]),
               'v_sub_f32 %s, %s, %s' % (tmp, val, tmp)]
        if dup:
            ops += ['v_cvt_pk_bf16_f32 %s, %s, %s' % (dst[1], tmp, tmp)]
        else:
            ops += ['v_cvt_pk_bf16_f32 %s, %s, %s' % (dst[0], val, tmp),
                    'v_mov_b32 %s, %s' % (dst[1], dst[0])]
        ops += ['v_mov_b32 %s, 0' % dst[2], 'v_mov_b32 %s, 0' % dst[3]]
        return ops

    def img_dma(self, vq, srd, stride, lds_base, sbase, extra=0):
        e = self.e
        out = []
        toks = []
        for g in range(4):
            for k in range(4):
                so = ['s_xor_b32 s100, s42, %d' % (g * 16384),
                      's_add_u32 m0, s100, s5',
                      's_mul_i32 s100, s100, %d' % (stride // 128),
                      's_add_u32 m0, m0, %d' % lds_base,
                      's_add_u32 s100, s100, %s' % sbase]
                pre = [('m0', ('img', srd, lds_base, g), so)]

                def f(g=g, k=k, pre=pre):
                    for a in pre:
                        self.setup(*a)
                    toks.append(e('buffer_load_dwordx4 %s, %s, s100 offen offset:%d lds' % (vq[k], srd, k * 1024)))
                f.pre = pre
                out.append(f)
        return out, toks

    def img_voff(self, name, stride):
        e, V = self.e, self.V
        vq = V.alloc(name, 4, at=18)
        ops = ['v_lshrrev_b32 %s, 3, %s' % (vq[0], self.vlane),
               'v_mul_u32_u24 %s, %d, %s' % (vq[0], stride, vq[0]),
               'v_add_u32 %s, %s, %s' % (vq[0], vq[0], self.vsw)]
        for k in range(1, 4):
            ops.append('v_add_u32 %s, %d, %s' % (vq[k], k * (8 * stride - 1024), vq[0]))
        return vq, ops

    def kfrag(self, s):
        return self.HK.sub(4 * s, 4) if s < 8 else self.OWN.sub(4 * (s - 8), 4)

    def vfrag(self, s, m):
        return self.HV.sub(8 * s + 4 * m, 4) if s < 8 else self.OWN.sub(8 + 8 * (s - 8) + 4 * m, 4)

    def qfrag(self, qb):
        return self.OWN.sub(24 + 4 * qb, 4)

    def cmask(self, s, qb):
        if s == qb:
            return str(self.Cu)
        if s == qb + 8:
            return str(self.Cl)
        return '0'

    def attn_run(self, e, blocks, S, P, O, first, fill_at, cfun=None, last_pv=True):
        cfun = cfun or self.cmask

        def smf(n):
            s, qb = blocks[n]
            if s < 8 and e is self.e:
                self.bg_until(lambda: (s, 2) in self.halo_done or (s, 0) in self.halo_done)
            return 'v_mfma_f32_32x32x16_bf16 %s, %s, %s, %s' % (S[n % 2], self.kfrag(s), self.qfrag(qb), cfun(s, qb))

        def pv(n, m):
            s, qb = blocks[n]
            if s < 8 and e is self.e:
                self.bg_until(lambda: (s, 1) in self.halo_done)
            c = O[qb]
            if qb in first:
                first.discard(qb)
                c = '0'
            return 'v_mfma_f32_32x32x16_bf16 %s, %s, %s, %s' % (O[qb], self.vfrag(s, m), P.sub(4 * m, 4), c)

        e(smf(0))
        pending = None
        for n in range(len(blocks)):
            s_ = S[n % 2]
            fl = list(fill_at.get(n, []))
            ex = ['v_exp_f32 %s, %s' % (s_[r], s_[r]) for r in range(16)]
            cv = ['v_cvt_pk_bf16_f32 %s, %s, %s' % (P[r], s_[2 * r], s_[2 * r + 1]) for r in range(8)]
            if n == 0 and len(blocks) > 1:
                e(smf(1))
                for f in fl:
                    f() if callable(f) else e(f)
                fl = []
            e(ex[0])
            e(ex[1])
            if pending:
                e(pending)
                pending = None
            for s in ex[2:5]:
                e(s)
            if n > 0 and n + 1 < len(blocks):
                e(smf(n + 1))
            for s in ex[5:8]:
                e(s)
            for s in cv[0:4]:
                e(s)
            e(ex[8])
            e(ex[9])
            e(pv(n, 0))
            for f in fl:
                f() if callable(f) else e(f)
            for s in ex[10:16]:
                e(s)
            for s in cv[4:8]:
                e(s)
            pending = pv(n, 1)
        return pending

    def attention(self):
        e, V, A = self.e, self.V, self.A
        o = self.o
        t, vlane, vh = self.pt, self.vlane, self.vh
        ones = self.ones
        self.HK = V.alloc('HK', 32, at=128)
        S = [V.alloc('S0', 16, at=48), V.alloc('S1', 16, at=64)]
        P = V.alloc('P', 8, at=112)
        O = [V.alloc('O0', 16, at=80), V.alloc('O1', 16, at=96)]
        self.S, self.P, self.O = S, P, O
        first = {0, 1}
        own = [(9, 1), (8, 1), (8, 0)]
        vpf = self.vpf
        vsr = V.alloc('vsr', 2)
        SB = A.alloc('SB', 16, at=176)
        sm = V.alloc('sm2', 8, at=120)
        self.halo_done = set()
        items = []
        for s in range(7, -1, -1):
            items.append(lambda s=s: e('buffer_load_dwordx4 %s, %s, s[32:35], s%d offen offset:%d sc1' % (
                self.kfrag(s), self.vl16, 76 + (s >> 1), (s & 1) * 2048)))
            for m in range(2):
                def f(s=s, m=m):
                    e('s_mov_b64 exec, s[38:39]')
                    e('buffer_load_dwordx4 %s, %s, s[32:35], s%d offen offset:%d sc1' % (
                        self.vfrag(s, m), self.vidx16, 76 + (s >> 1), (s & 1) * 2048 + 1024 + 512 * m))
                    e('s_mov_b64 exec, -1')
                    self.halo_done.add((s, m))
                items.append(f)

        def pissue():
            self.bg_flush()
            self.poll_issue(vpf, 's82', t[6])

        def pcheck():
            self.pace(False)
            self.stamp('halowait')
            e('v_cmp_ne_u32 vcc, s6, %s' % t[6])
            e('s_and_b64 vcc, vcc, s[80:81]')
            e('s_cbranch_vccz L_halook')
            self.poll(vpf, 's82', t.sub(6, 2), mask='s[80:81]')
            e('L_halook:')
            self.stamp('haloflag')
            self.bg.extend(items)
            self.bg_flush(o.get('halo_burst', 5))
            self.gap = o.get('gap_halo', 64)
            self.pace(True)

        prep = ['s_load_dwordx16 s[56:71], s[92:93], 144',
                'v_lshl_add_u32 %s, %s, 9, %s' % (t[0], vh, self.vtrb),
                'v_add_u32 %s, s5, %s' % (t[0], t[0]),
                'v_add_u32 %s, %d, %s' % (t[0], L_SIDE, t[0]),
                'v_lshl_add_u32 %s, %s, 6, %s' % (vsr[0], self.vq3, t[0]),
                'v_xor_b32 %s, 64, %s' % (vsr[1], vsr[0])]
        pi, pc = o.get('pissue', 0), o.get('pcheck', 2)
        fa = {0: list(prep)}
        fa.setdefault(pi, []).append(pissue)
        if pc < 3:
            fa.setdefault(pc, []).append(pcheck)
        pend = self.attn_run(e, own, S, P, O, first, fa)
        e('v_and_b32 %s, 31, %s' % (t[0], vlane))
        e('s_lshl_b32 s98, s3, 2')
        e(pend)
        if pc >= 3:
            pcheck()
        e('v_add_u32 %s, s5, %s' % (t[1], self.vl16))
        e('v_add_u32 %s, %d, %s' % (t[1], L_SIDE, t[1]))
        sw = [e('ds_write_b128 %s, %s offset:%d' % (t[1], self.SL.sub(4 * k, 4), 1024 * k)) for k in range(4)]
        e.wait(lgkm=sw)
        A.release('SL')
        for pc_ in (0, 1):
            for nt in range(2):
                for u in range(2):
                    lr = e('ds_read_b64_tr_b16 %s, %s offset:%d' % (SB.sub(pc_ * 8 + nt * 4 + 2 * u, 2), vsr[nt],
                                                                     pc_ * 2048 + u * 1024))
        e('v_lshl_add_u32 %s, %s, 4, s98' % (t[0], t[0]))
        M = 'v_mfma_f32_16x16x32_bf16 %s, %s, %s, %s'
        e(M % (sm.sub(0, 4), ones, SB.sub(0, 4), '0'))
        e(M % (sm.sub(4, 4), ones, SB.sub(4, 4), '0'))
        V.release('vsr')
        e('v_cndmask_b32 %s, %s, %s, s[38:39]' % (sm[0], sm[1], sm[0]))
        e('v_cndmask_b32 %s, %s, %s, s[38:39]' % (sm[4], sm[5], sm[4]))
        cw = [e('ds_write_b32 %s, %s offset:%d' % (t[0], sm[0], L_CSW1)),
              e('ds_write_b32 %s, %s offset:%d' % (t[0], sm[4], L_CSW1 + 512))]
        vpt = V.alloc('vpt', 4)
        lim = V.alloc('lim', 2)
        e('v_lshlrev_b32 %s, 3, %s' % (t[1], vlane))
        e('v_and_b32 %s, 15, %s' % (t[0], vlane))
        e('v_lshlrev_b32 %s, 2, %s' % (vpt[0], t[0]))
        e('v_lshlrev_b32 %s, 7, %s' % (t[5], t[0]))
        e('v_and_b32 %s, 31, %s' % (t[0], vlane))
        e('v_lshlrev_b32 %s, 3, %s' % (t[0], t[0]))
        e('v_lshl_add_u32 %s, %s, 11, %s' % (vpt[1], vh, t[0]))
        e('v_lshrrev_b32 %s, 1, %s' % (t[0], vlane))
        e('v_min_u32 %s, 13, %s' % (t[0], t[0]))
        e('v_add_u32 %s, s3, %s' % (t[4], t[0]))
        e('v_and_b32 %s, 3, %s' % (t[4], t[4]))
        e('v_lshl_add_u32 %s, %s, 2, %s' % (t[0], t[0], t[4]))
        e('v_and_b32 %s, 1, %s' % (t[4], vlane))
        e('v_lshl_add_u32 %s, %s, 1, %s' % (t[0], t[0], t[4]))
        e('v_lshlrev_b32 %s, 7, %s' % (vpt[2], t[0]))
        e('v_mov_b32 %s, %s' % (lim[0], hexf(2.0 ** -40)))
        e('v_mov_b32 %s, %s' % (lim[1], hexf(2.0 ** 40)))
        self.pace(False)
        e('s_barrier', wait_lgkm=cw + [lr])
        self.pace(True)
        e('ds_read_b128 %s, %s offset:%d' % (sm.sub(0, 4), self.vl16, L_CSW1))
        e('v_mov_b32 %s, %s' % (t[3], self.vtag))
        self.vpt = vpt
        self.w2p_st = []

        def w2st(k):
            def f():
                self.w2p_st.append(e('buffer_store_dwordx4 %s, %s, s[32:35], s83 offen offset:%d sc1' % (
                    SB.sub(8 + 4 * k, 4), self.vl16, 1024 * k)))
                self.extra_gap = o.get('stgap', 128)
            return f

        def cspub():
            e('v_add_f32 %s, %s, %s' % (sm[0], sm[0], sm[1]))
            e('v_add_f32 %s, %s, %s' % (sm[2], sm[2], sm[3]))
            e('v_add_f32 %s, %s, %s' % (t[2], sm[0], sm[2]))
            e('buffer_store_dwordx2 %s, %s, s[32:35], s45 offen sc1' % (t.sub(2, 2), t[1]))

        def slow():
            assert len(self.wo_tok) == 16
            V.release('vwo')
            vw1_, ops = self.img_voff('vw1', 3584)
            for s in ops + ['s_and_b32 s100, s4, 2', 's_lshl_b32 s42, s100, 14']:
                e(s)
            self.cache.pop('m0', None)
            self.gap = o.get('gap_w1', 128)
        vw1 = R('v', 18, 4)
        self.vw1 = vw1
        w1a_f, self.w1a_tok = self.img_dma(vw1, 's[20:23]', 3584, L_W1A, 's46')
        if o.get('now1a'):
            w1a_f = w1a_f[:0]
            self.w1a_tok += [self.wo_tok[0]] * 16
        self.bg.extend([w2st(0), w2st(1), cspub,
                        lambda: setattr(self, 'xccld', e('buffer_load_dword %s, %s, s[32:35], s87 offen sc1' % (t[7], t[5]))),
                        ] + self.wo_rest + [slow] + w1a_f)

        def w2flag():
            assert len(self.w2p_st) == 2 and len(self.halo_done) == 16
            e('buffer_store_dword %s, %s, s[32:35], s44 offen sc1' % (self.vtag, self.vflag), wait_vm=self.w2p_st)
            e('s_load_dwordx8 s[76:83], s[92:93], 112')

        def xcccheck():
            self.pace(False)
            assert self.xccld
            e('v_xor_b32 %s, s6, %s' % (t[7], t[7]))
            e('v_cmp_le_u32 vcc, 16, %s' % t[7])
            e('s_cbranch_vccnz L_xccspin')
            e('L_xccok:')
            e('v_cmp_ne_u32 vcc, s0, %s' % t[7])
            e('s_cmp_eq_u64 vcc, 0')
            e('s_cselect_b32 s7, 1, 0')
            if o.get('force_slow'):
                e('s_mov_b32 s7, 0')
            self.tail.append(
                'L_xccspin:\n    buffer_load_dword %s, %s, s[32:35], s87 offen sc1\n    s_add_u32 s96, s96, 1\n'
                '    s_cmp_gt_u32 s96, s97\n    s_waitcnt vmcnt(0)\n    v_xor_b32 %s, s6, %s\n'
                '    s_cbranch_scc1 L_xccok\n    v_cmp_le_u32 vcc, 16, %s\n    s_nop 1\n'
                '    s_cbranch_vccnz L_xccspin\n    s_branch L_xccok\n' % (t[7], t[5], t[7], t[7], t[7]))
            self.pace(True)

        blocks = []
        for s in range(7, 0, -1):
            blocks += [(s, 1), (s, 0)]
        blocks += [(0, 0)]
        fa = {}
        fa.setdefault(o.get('w2flag_at', 12), []).append(w2flag)
        fa.setdefault(o.get('xcc_at', 13), []).append(xcccheck)
        fa.setdefault(o.get('stop_at', 11), []).append(lambda: self.pace(False))
        if o.get('finea'):
            for k in (1, 4, 7, 10):
                fa.setdefault(k, []).append(lambda k=k: self.stamp('b%d' % k))
        self.stamp('side')
        pend = self.attn_run(e, blocks, S, P, O, first, fa)
        self.pace(False)
        vo1 = t[4]

        def chk(qb):
            o_ = O[qb]
            e('v_max3_f32 %s, abs(%s), abs(%s), abs(%s)' % (t[0], o_[0], o_[1], o_[2]))
            e('v_max3_f32 %s, abs(%s), abs(%s), %s' % (t[0], o_[3], o_[4], t[0]))
            e('v_max3_f32 %s, abs(%s), abs(%s), %s' % (t[0], o_[5], o_[6], t[0]))
            e('v_max3_f32 %s, abs(%s), %s, %s' % (t[0], o_[7], t[0], t[0]))
            e('v_fma_f32 %s, %s, 0, %s' % (t[0], t[0], o_[8]))
            e('v_med3_f32 %s, %s, %s, %s' % (t[1], t[0], lim[0], lim[1]))
            e('v_cmp_neq_f32 vcc, %s, %s' % (t[0], t[1]))
            if o.get('force_fallback'):
                e('s_mov_b64 vcc, -1')
        e('v_add_u32 %s, %d, %s' % (vo1, H1_GT, self.vl16))
        e('s_nop 0')
        e(pend)
        self.stamp('attn')
        chk(1)
        e('s_cbranch_vccnz L_fallback')
        chk(0)
        e('s_cbranch_vccnz L_fallback')
        e('L_attn_ok:')
        rc = t.sub(0, 2)
        for qb in (1, 0):
            o_ = O[qb]
            e('v_rcp_f32 %s, %s' % (rc[0], o_[8]))
            for r in range(0, 8, 2):
                e('v_pk_mul_f32 %s, %s, %s op_sel_hi:[1,0]' % (o_.sub(r, 2), o_.sub(r, 2), rc))
            for r in range(4):
                e('v_cvt_pk_bf16_f32 %s, %s, %s' % (P[4 * qb + r], o_[2 * r], o_[2 * r + 1]))
        if o.get('drain_pre'):
            e('s_waitcnt vmcnt(0)')
            self.stamp('drained')
        self.o_st = self.data_stores(['buffer_store_dwordx4 %s, %s, s[32:35], s91 offen' % (P.sub(4, 4), vo1),
                                      'buffer_store_dwordx4 %s, %s, s[32:35], s91 offen' % (P.sub(0, 4), self.vl16)])
        self.fallback()
        print('bg left after attention:', len(self.bg), file=sys.stderr)
        V.release('S0', 'S1', 'O0', 'O1', 'Cl', 'Cu', 'HK', 'HV', 'vpf', 'idx16', 'swz', 'ones', 'sm2', 'lim')
        A.release('OWN', 'SB')

    def fallback(self):
        f = Emitter('fb')
        S, P, O, t = self.S, self.P, self.O, self.pt
        Cz = S[1]
        f('L_fallback:')
        f('s_nop 15')
        for qb in (0, 1):
            slots = list(range(qb + 8, qb - 1, -1))
            f('v_mov_b32 %s, 0xff800000' % t[0])
            for s in slots:
                if s < 8:
                    f('s_cmp_lt_u32 s4, %d' % (4 - (s >> 1)))
                    f('s_cbranch_scc1 L_fb_a%d_%d' % (qb, s))
                f('v_mfma_f32_32x32x16_bf16 %s, %s, %s, %s' % (S[0], self.kfrag(s), self.qfrag(qb), self.cmask(s, qb)))
                for r in range(0, 16, 2):
                    f('v_max3_f32 %s, %s, %s, %s' % (t[0], S[0][r], S[0][r + 1], t[0]))
                f('s_nop 7')
                f('L_fb_a%d_%d:' % (qb, s))
            f('v_mov_b32 %s, %s' % (t[1], t[0]))
            f('v_permlane32_swap_b32 %s, %s' % (t[0], t[1]))
            f('v_max_f32 %s, %s, %s' % (t[0], t[0], t[1]))
            for r in range(16):
                f('v_mov_b32 %s, 0' % O[qb][r])
            for s in slots:
                if s < 8:
                    f('s_cmp_lt_u32 s4, %d' % (4 - (s >> 1)))
                    f('s_cbranch_scc1 L_fb_b%d_%d' % (qb, s))
                f('v_mfma_f32_32x32x16_bf16 %s, %s, %s, %s' % (S[0], self.kfrag(s), self.qfrag(qb), self.cmask(s, qb)))
                for r in range(16):
                    f('v_sub_f32 %s, %s, %s' % (S[0][r], S[0][r], t[0]))
                for r in range(16):
                    f('v_exp_f32 %s, %s' % (S[0][r], S[0][r]))
                for r in range(8):
                    f('v_cvt_pk_bf16_f32 %s, %s, %s' % (P[r], S[0][2 * r], S[0][2 * r + 1]))
                for m in range(2):
                    f('v_mfma_f32_32x32x16_bf16 %s, %s, %s, %s' % (O[qb], self.vfrag(s, m), P.sub(4 * m, 4), O[qb]))
                f('s_nop 15')
                f('L_fb_b%d_%d:' % (qb, s))
        f('s_nop 15')
        f('s_branch L_attn_ok')
        self.cold = f.text()

    def w2_loads(self, lo, hi):
        e = self.e
        out = []
        for n in range(lo, hi):
            p, m, b = n >> 2, (n >> 1) & 1, n & 1
            pre = [('s43', ('w2', p), ['s_lshl1_add_u32 s43, s%d, s52' % (56 + p)])]

            def f(n=n, m=m, b=b, pre=pre):
                self.setup(*pre[0])
                e('buffer_load_dwordx4 %s, %s, s[32:35], s43 offen offset:%d sc1' % (
                    self.W2.sub(n * 4, 4), self.vw2[b], m * 2048))
                self.w2_done = n + 1
            out.append(f)
        return out

    def tagcheck(self, e, regs, tmp):
        e('v_min3_u32 %s, %s, %s, %s' % (tmp[0], regs[0], regs[1], regs[2]))
        e('v_max3_u32 %s, %s, %s, %s' % (tmp[1], regs[0], regs[1], regs[2]))
        k = 3
        while k < len(regs):
            b = regs[k + 1] if k + 1 < len(regs) else regs[k]
            e('v_min3_u32 %s, %s, %s, %s' % (tmp[0], regs[k], b, tmp[0]))
            e('v_max3_u32 %s, %s, %s, %s' % (tmp[1], regs[k], b, tmp[1]))
            k += 2
        e('v_xor_b32 %s, s6, %s' % (tmp[0], tmp[0]))
        e('v_xor_b32 %s, s6, %s' % (tmp[1], tmp[1]))
        e('v_or_b32 %s, %s, %s' % (tmp[0], tmp[0], tmp[1]))
        e('v_cmp_ne_u32 vcc, 0, %s' % tmp[0])

    def p3(self):
        e, V, A = self.e, self.V, self.A
        o = self.o
        t, vlane, vh = self.pt, self.vlane, self.vh
        vpt = self.vpt
        self.W2 = R('a', 0, 224)
        WB = A.alloc('WB3', 32, at=224)
        self.WBa = WB
        H = V.alloc('hres', 16, at=240)
        self.H = H
        acc1 = V.alloc('acc1', 16, at=224)
        OF = V.alloc('OF', 64, at=128)
        cb = V.alloc('cb', 8, at=48)
        xr = V.alloc('xr', 8, at=56)
        vwr = V.alloc('vwr', 2)
        def csl(em):
            for k in range(4):
                em('buffer_load_dwordx2 %s, %s, s[32:35], s47 offen offset:%d sc1' % (cb.sub(2 * k, 2), vpt[1], 512 * k))
        self.bg_until(lambda: len(self.wo_tok) == 16)
        self.bg_flush(o.get('bulk_b', 0))
        for k in range(8):
            e('v_accvgpr_read_b32 %s, %s' % (xr[k], self.XRS[k]))
        A.release('xres')
        e('v_lshl_add_u32 %s, %s, 9, %s' % (t[0], vh, self.vtrb))
        self.vtr9 = V.alloc('vtr9')
        e('v_lshl_add_u32 %s, %s, 6, %s' % (self.vtr9, self.vq3, t[0]))
        e('v_permlane32_swap_b32 %s, %s' % (xr[0], xr[2]))
        e('v_permlane32_swap_b32 %s, %s' % (xr[1], xr[3]))
        e('v_permlane32_swap_b32 %s, %s' % (xr[4], xr[6]))
        e('v_permlane32_swap_b32 %s, %s' % (xr[5], xr[7]))
        for k in range(8):
            e('v_lshlrev_b32 %s, 16, %s' % (H[2 * k], xr[k]))
            e('v_and_b32 %s, 0xffff0000, %s' % (H[2 * k + 1], xr[k]))
        V.release('xr')
        e('s_lshl_b32 s98, s40, 6')
        e('v_xor_b32 %s, s98, %s' % (t[0], self.vtr9))
        e('s_lshl_b32 s98, s40, 15')
        e('s_add_u32 s98, s98, %d' % L_WO)
        e('v_add_u32 %s, s98, %s' % (vwr[0], t[0]))
        e('v_xor_b32 %s, 64, %s' % (vwr[1], vwr[0]))
        e('s_lshl_b32 s98, s40, 10')
        e('v_add_u32 %s, s98, %s' % (self.vw2[0], self.vl16))
        e('v_xor_b32 %s, 1024, %s' % (self.vw2[1], self.vw2[0]))
        e.wait(vm=self.o_st)
        self.mode_stores(['buffer_store_dword %s, %s, s[32:35], s49 offen' % (self.vtag, self.vflag)])
        if o.get('drain_pre'):
            self.stamp('oack')
        e('s_barrier', wait_vm=self.wo_tok)
        self.stamp('opub')

        def wreads(s):
            out = []
            for u in (1, 0):
                buf = WB.sub((s % 4) * 8 + 4 * u, 4)
                for uu in range(2):
                    out.append('ds_read_b64_tr_b16 %s, %s offset:%d' % (buf.sub(2 * uu, 2), vwr[u], s * 2048 + uu * 1024))
            return out
        self.poll_issue(vpt[0], 's50', vpt[3])
        for s in wreads(0) + wreads(1):
            e(s)
        vred = V.alloc('vred', 2)
        e('s_xor_b32 s98, s5, 4096')
        e('s_add_u32 s98, s98, %d' % L_RED3)
        e('v_add_u32 %s, s98, %s' % (vred[0], self.vl16))
        e('v_xor_b32 %s, 4096, %s' % (vred[1], vred[0]))
        e('v_bfe_u32 %s, %s, 4, 1' % (t[4], vlane))
        e('v_lshlrev_b32 %s, 3, %s' % (t[4], t[4]))
        e('v_lshl_add_u32 %s, %s, 2, %s' % (t[4], vpt[0], t[4]))
        e('v_lshl_add_u32 %s, %s, 29, %s' % (t[4], vh, t[4]))
        e('v_cmp_ne_u32 vcc, s6, %s' % vpt[3])
        e('s_cbranch_vccz L_ook')
        self.poll(vpt[0], 's50', t.sub(6, 2))
        e('L_ook:')
        self.stamp('oflag')

        def old(u):
            if u % 4 == 0:
                e('s_add_u32 s98, s48, %d' % (u * 1024))
            e('buffer_load_dwordx4 %s, %s, s[32:35], s98 offen offset:%d sc1' % (OF.sub(4 * u, 4), self.vl16,
                                                                                (u % 4) * 1024))
        LA = o.get('la3', 6)
        for u in range(LA):
            old(u)
        self.w2_done = 0
        for k, x in enumerate([lambda: self.poll_issue(vpt[2], 's51', t[6]), lambda: csl(e)]):
            self.bg.insert(k, x)
        n3 = o.get('bulk_3', 6)
        for s in range(16):
            b = WB.sub((s % 4) * 8, 8)
            e('v_mfma_f32_32x32x16_bf16 %s, %s, %s, %s' % (acc1, b.sub(4, 4), OF.sub(4 * s, 4), '0' if s == 0 else acc1))
            rd = wreads(s + 2) if s + 2 < 16 else []
            for x in rd[:2]:
                e(x)
            if s + LA < 16:
                old(s + LA)
            elif n3 > 0:
                self.bg_flush(1)
                n3 -= 1
            e('v_mfma_f32_32x32x16_bf16 %s, %s, %s, %s' % (H, b.sub(0, 4), OF.sub(4 * s, 4), H))
            for x in rd[2:]:
                e(x)
        self.stamp('p3mm')
        self.bg_flush(n3)
        wr = [e('ds_write_b128 %s, %s offset:%d' % (vred[0], acc1.sub(4 * g, 4), g * 1024)) for g in range(4)]
        e('s_barrier', wait_lgkm=wr)
        for g in range(4):
            e('ds_read_b128 %s, %s offset:%d' % (acc1.sub(4 * g, 4), vred[1], g * 1024))
        PK = OF
        for g in range(4):
            for r in range(4 * g, 4 * g + 4, 2):
                e('v_pk_add_f32 %s, %s, %s' % (H.sub(r, 2), H.sub(r, 2), acc1.sub(r, 2)))
            for r in range(2 * g, 2 * g + 2):
                e('v_cvt_pk_bf16_f32 %s, %s, %s' % (PK[r], H[2 * r], H[2 * r + 1]))
        h_st = self.data_stores(['buffer_store_dwordx4 %s, %s, s[28:31], s53 offen' % (PK.sub(0, 4), self.vl16),
                                 'buffer_store_dwordx4 %s, %s, s[28:31], s53 offen offset:1024' % (PK.sub(4, 4), self.vl16)])
        a = acc1
        e('v_pk_mul_f32 %s, %s, %s' % (a.sub(0, 2), H.sub(0, 2), H.sub(0, 2)))
        e('v_pk_add_f32 %s, %s, %s' % (a.sub(2, 2), H.sub(0, 2), H.sub(2, 2)))
        for r in range(2, 16, 2):
            e('v_pk_fma_f32 %s, %s, %s, %s' % (a.sub(0, 2), H.sub(r, 2), H.sub(r, 2), a.sub(0, 2)))
            if r >= 4:
                e('v_pk_add_f32 %s, %s, %s' % (a.sub(2, 2), a.sub(2, 2), H.sub(r, 2)))
        e('v_add_f32 %s, %s, %s' % (a[4], a[2], a[3]))
        e('v_add_f32 %s, %s, %s' % (a[5], a[0], a[1]))
        e('v_mov_b64 %s, %s' % (a.sub(0, 2), a.sub(4, 2)))
        e('v_permlane32_swap_b32 %s, %s' % (a[0], a[4]))
        e('v_permlane32_swap_b32 %s, %s' % (a[1], a[5]))
        e('v_pk_add_f32 %s, %s, %s' % (a.sub(4, 2), a.sub(4, 2), a.sub(0, 2)))
        h_st += self.data_stores(['buffer_store_dwordx2 %s, %s, s[32:35], s54 offen' % (a.sub(4, 2), t[4])])
        self.bg_until(lambda: len(self.w1a_tok) == 16)
        e('s_add_u32 s46, s46, 128')
        w1b_f, self.w1b_tok = self.img_dma(self.vw1, 's[20:23]', 3584, L_W1B, 's46')
        for k, x in enumerate(w1b_f):
            self.bg.insert(k, x)
        self.bg_flush(o.get('bulk_c', 0))
        self.poll_check(vpt[2], 's51', t[6])
        tags = [cb[k] for k in (1, 3, 5, 7)]
        self.tagcheck(e, tags, t.sub(2, 2))
        e('s_cbranch_vccnz L_csspin')
        e('L_csok:')
        f = Emitter('cs')
        f('L_csspin:')
        csl(f)
        f('s_add_u32 s96, s96, 1')
        f('s_cmp_gt_u32 s96, s97')
        f('s_waitcnt vmcnt(0)')
        f('s_cbranch_scc1 L_csok')
        self.tagcheck(f, tags, t.sub(2, 2))
        f('s_cbranch_vccnz L_csspin')
        f('s_branch L_csok')
        self.tail.append(f.text())
        e('v_add_f32 %s, %s, %s' % (cb[0], cb[0], cb[2]))
        e('v_add_f32 %s, %s, %s' % (cb[4], cb[4], cb[6]))
        e('v_add_f32 %s, %s, %s' % (cb[0], cb[0], cb[4]))
        e('v_mov_b32 %s, %s' % (cb[1], cb[0]))
        e('s_lshl_b32 s98, s3, 9')
        e('v_lshl_add_u32 %s, %s, 3, s98' % (t[0], vlane))
        e('v_permlane32_swap_b32 %s, %s' % (cb[0], cb[1]))
        e('v_add_f32 %s, %s, %s' % (cb[0], cb[0], cb[1]))
        e('v_mul_f32 %s, %s, %s' % (cb[0], self.hz, cb[0]))
        e('v_cvt_pk_bf16_f32 %s, %s, %s' % (cb[2], cb[0], cb[0]))
        e('v_and_b32 %s, 0xffff0000, %s' % (cb[1], cb[2]))
        e('v_sub_f32 %s, %s, %s' % (cb[1], cb[0], cb[1]))
        e('v_cvt_pk_bf16_f32 %s, %s, %s' % (cb[3], cb[1], cb[1]))
        caw = e('ds_write_b64 %s, %s offset:%d' % (t[0], cb.sub(2, 2), L_CA))
        self.caw = caw
        self.bg.extend(self.w2_loads(0, 56))
        self.h_st = h_st
        V.release('acc1', 'OF', 'vwr', 'vred', 'P', 'trb', 'q3', 'cb')

    def p4(self):
        e, V, A = self.e, self.V, self.A
        o = self.o
        t, vlane, vh = self.pt, self.vlane, self.vh
        vpt = self.vpt
        WB = self.WBa
        HF = V.alloc('HF', 128, at=48)
        acc = [V.alloc('acc%d' % k, 16, at=176 + 16 * k) for k in range(4)]
        self.HF, self.acc = HF, acc
        vA = V.alloc('vA', 2)
        cz = [V.alloc('cA%d' % k, 6, 2) for k in range(2)]
        cA = [cz[0].sub(0, 2), cz[0].sub(4, 2), cz[1].sub(0, 2), cz[1].sub(4, 2)]
        cT = [cz[0].sub(0, 4), cz[0].sub(2, 4), cz[1].sub(0, 4), cz[1].sub(2, 4)]
        e('v_add_u32 %s, %d, %s' % (vA[0], L_W1A, self.vtr9))
        e('v_xor_b32 %s, 64, %s' % (vA[1], vA[0]))
        V.release('vtr9')
        e('v_lshlrev_b32 %s, 3, %s' % (t[2], vlane))
        for k in range(2):
            e('v_mov_b64 %s, 0' % cz[k].sub(2, 2))
        e('v_and_b32 %s, 31, %s' % (t[0], vlane))
        e('v_lshl_add_u32 %s, %s, 10, s83' % (t[0], t[0]))
        e('v_lshl_add_u32 %s, %s, 4, %s' % (self.vout, vh, t[0]))
        e.wait(vm=self.h_st)
        self.mode_stores(['buffer_store_dword %s, %s, s[32:35], s55 offen' % (self.vtag, self.vflag)])
        e('s_barrier', wait_vm=self.w1a_tok, wait_lgkm=[self.caw])
        self.stamp('hpub')

        def wreads(tl, s, slot):
            buf = WB.sub(slot * 4, 4)
            return ['ds_read_b64_tr_b16 %s, %s offset:%d' % (buf.sub(2 * uu, 2), vA[tl & 1], s * 2048 + uu * 1024)
                    for uu in range(2)]
        RA = 4
        seq1 = [(tl, s) for s in range(32) for tl in (0, 1)]
        self.poll_issue(vpt[0], 's77', vpt[3])
        for n in range(RA):
            for x in wreads(seq1[n][0], seq1[n][1], n):
                e(x)
        for tl in range(4):
            e('ds_read_b64 %s, %s offset:%d' % (cA[tl], t[2], L_CA + 512 * tl))
        self.vh1 = V.alloc('vh1', 2)
        vpf = vpt[2]
        self.vpf5 = vpf
        for x in ['s_mul_i32 s98, s41, %d' % H1_GT,
                  'v_add_u32 %s, s98, %s' % (self.vh1[0], self.vl16),
                  's_xor_b32 s98, s41, 1',
                  's_mul_i32 s98, s98, %d' % H1_GT,
                  'v_add_u32 %s, s98, %s' % (self.vh1[1], self.vl16),
                  'v_min_u32 %s, 52, %s' % (t[0], vpt[0]),
                  'v_bfe_u32 %s, %s, 4, 1' % (t[1], vlane),
                  'v_mul_u32_u24 %s, 384, %s' % (t[1], t[1]),
                  'v_add_u32 %s, %s, %s' % (vpf, t[0], t[1])]:
            e(x)
        e('v_cmp_ne_u32 vcc, s6, %s' % vpt[3])
        e('s_cbranch_vccz L_hok')
        self.poll(vpt[0], 's77', t.sub(6, 2))
        e('L_hok:')
        self.stamp('hflag')
        sb = acc[2]

        def hld(s):
            if s % 4 == 0:
                e('s_add_u32 s98, s76, %d' % (s * 1024))
            e('buffer_load_dwordx4 %s, %s, s[28:31], s98 offen offset:%d sc1' % (HF.sub(4 * s, 4), self.vl16,
                                                                                (s % 4) * 1024))
        q = []
        SAT = o.get('stat_at', 20)
        every = o.get('w1b_every', 3)
        for s in range(32):
            if s == SAT:
                for k in range(4):
                    q.append(lambda k=k: e('buffer_load_dwordx4 %s, %s, s[32:35], s78 offen offset:%d sc1' % (
                        sb.sub(4 * k, 4), self.vl16, k * 1024)))
            q.append(lambda s=s: hld(s))
            if every and s >= o.get('w1b_from', 6) and s % every == 0:
                q.append(lambda: self.bg_flush(1) if len(self.w1b_tok) < 16 else None)
        hl_done = [0]
        LA = o.get('la4', 6)
        for _ in range(LA):
            q.pop(0)()
        mB = V.alloc('mB2', 4, 2)
        sc = V.alloc('sc', 2, 2)

        def stats_ops():
            a = sb
            ops = []
            for k in range(4):
                ops += ['v_add_f32 %s, %s, %s' % (a[k], a[k], a[k + 4]),
                        'v_add_f32 %s, %s, %s' % (a[k + 8], a[k + 8], a[k + 12]),
                        'v_add_f32 %s, %s, %s' % (a[k], a[k], a[k + 8])]
            ops += ['s_nop 1',
                    'v_permlane16_swap_b32 %s, %s' % (a[0], a[2]),
                    'v_permlane16_swap_b32 %s, %s' % (a[1], a[3]),
                    'v_add_f32 %s, %s, %s' % (a[0], a[0], a[2]),
                    'v_add_f32 %s, %s, %s' % (a[1], a[1], a[3])]
            ops += ['v_mov_b64 %s, %s' % (a.sub(2, 2), a.sub(0, 2)),
                    's_nop 1',
                    'v_permlane32_swap_b32 %s, %s' % (a[0], a[2]),
                    'v_permlane32_swap_b32 %s, %s' % (a[1], a[3]),
                    'v_add_f32 %s, %s, %s' % (a[0], a[0], a[2]),
                    'v_add_f32 %s, %s, %s' % (a[1], a[1], a[3]),
                    'v_mul_f32 %s, %s, %s' % (a[0], hexf(-1.0 / 512), a[0]),
                    'v_mul_f32 %s, %s, %s' % (a[1], hexf(1.0 / 512), a[1]),
                    'v_fma_f32 %s, -%s, %s, %s' % (a[1], a[0], a[0], a[1]),
                    'v_max_f32 %s, 0, %s' % (a[1], a[1]),
                    'v_add_f32 %s, %s, %s' % (a[1], hexf(1e-5), a[1]),
                    'v_rsq_f32 %s, %s' % (sc[0], a[1]),
                    'v_sqrt_f32 %s, %s' % (sc[1], a[1])]
            ops += self.aug_ops(mB, a[0], a[2], False)[:-2]
            ops += ['v_mov_b64 %s, %s' % (mB.sub(2, 2), mB.sub(0, 2)),
                    'v_mul_f32 %s, %s, %s' % (sc[0], hexf(-LOG2E), sc[0])]
            return ops

        def aug(tl):
            return 'v_mfma_f32_32x32x16_bf16 %s, %s, %s, %s' % (acc[tl], cT[tl], mB, acc[tl])

        et = t.sub(2, 4)
        self.h1_st = {}
        h1fl = '' if o.get('h1plain') else ' sc1'

        def epi(tl):
            ops = []
            a = acc[tl]
            for r in range(0, 16, 2):
                x, y = et[(r // 2 % 2) * 2], et[(r // 2 % 2) * 2 + 1]
                ops += ['v_mul_f32 %s, %s, %s' % (x, sc[0], a[r]), 'v_mul_f32 %s, %s, %s' % (y, sc[0], a[r + 1]),
                        'v_exp_f32 %s, %s' % (x, x), 'v_exp_f32 %s, %s' % (y, y),
                        'v_fma_f32 %s, %s, %s, %s' % (x, x, sc[1], sc[1]),
                        'v_fma_f32 %s, %s, %s, %s' % (y, y, sc[1], sc[1]),
                        'v_rcp_f32 %s, %s' % (x, x), 'v_rcp_f32 %s, %s' % (y, y),
                        'v_mul_f32 %s, %s, %s' % (a[r], a[r], x),
                        'v_mul_f32 %s, %s, %s' % (a[r + 1], a[r + 1], y),
                        'v_cvt_pk_bf16_f32 %s, %s, %s' % (a[r // 2], a[r], a[r + 1])]
                if r in (6, 14):
                    ops.append(store(tl, r // 8))
            return ops

        def epi_packed(tl):
            ops = []
            a = acc[tl]
            for r in range(0, 16, 4):
                u, v = et.sub(0, 2), et.sub(2, 2)
                ops += ['v_pk_mul_f32 %s, %s, %s op_sel_hi:[1,0]' % (u, a.sub(r, 2), sc),
                        'v_pk_mul_f32 %s, %s, %s op_sel_hi:[1,0]' % (v, a.sub(r + 2, 2), sc)]
                ops += ['v_exp_f32 %s, %s' % (et[k], et[k]) for k in range(4)]
                ops += ['v_pk_fma_f32 %s, %s, %s, %s op_sel:[0,1,1] op_sel_hi:[1,1,1]' % (u, u, sc, sc),
                        'v_pk_fma_f32 %s, %s, %s, %s op_sel:[0,1,1] op_sel_hi:[1,1,1]' % (v, v, sc, sc)]
                ops += ['v_rcp_f32 %s, %s' % (et[k], et[k]) for k in range(4)]
                ops += ['v_pk_mul_f32 %s, %s, %s' % (a.sub(r, 2), a.sub(r, 2), u),
                        'v_pk_mul_f32 %s, %s, %s' % (a.sub(r + 2, 2), a.sub(r + 2, 2), v),
                        'v_cvt_pk_bf16_f32 %s, %s, %s' % (a[r // 2], a[r], a[r + 1]),
                        'v_cvt_pk_bf16_f32 %s, %s, %s' % (a[r // 2 + 1], a[r + 2], a[r + 3])]
                if r in (4, 12):
                    ops.append(store(tl, r // 8))
            return ops

        def store(tl, m):
            def st():
                h, e.hook = e.hook, None
                if tl == 2 and m == 0:
                    e('s_add_u32 s79, s79, 4096')
                tok = e('buffer_store_dwordx4 %s, %s, s[32:35], s79 offen offset:%d%s' % (
                    acc[tl].sub(4 * m, 4), self.vl16, (tl & 1) * 2048 + m * 1024, h1fl))
                e.hook = h
                self.extra_gap = o.get('stgap', 128)
                self.h1_st.setdefault(tl, []).append(tok)
            return st

        def flag(part, tiles):
            def f():
                w = []
                for tl in tiles:
                    assert len(self.h1_st[tl]) == 2
                    w += self.h1_st[tl]
                e.wait(vm=w)
                self.mode_stores(['buffer_store_dword %s, %s, s[32:35], s80 offen offset:%d' % (
                    self.vtag, self.vflag, part * 128)])
            return f

        so = stats_ops()
        S0 = 64 - (len(so) + 2) // 3 - 1
        nq = len(q)
        for n, (tl, s) in enumerate(seq1):
            e('v_mfma_f32_32x32x16_bf16 %s, %s, %s, %s' % (acc[tl], WB.sub((n % 8) * 4, 4), HF.sub(4 * s, 4),
                                                           '0' if s == 0 else acc[tl]))
            if n + RA < 64:
                for x in wreads(seq1[n + RA][0], seq1[n + RA][1], (n + RA) % 8):
                    e(x)
            want = (nq * (n + 1) + (64 - 2 * LA) - 1) // (64 - 2 * LA)
            while q and nq - len(q) < want:
                q.pop(0)()
            if n >= S0:
                for x in so[(n - S0) * 3:(n - S0) * 3 + 3]:
                    e(x)
        assert not q
        self.bg_until(lambda: len(self.w1b_tok) == 16)
        V.release('vw1')
        e(aug(0))
        e(aug(1))
        self.stamp('p4a')
        e('v_add_u32 %s, %d, %s' % (vA[0], L_W1B - L_W1A, vA[0]))
        e('v_add_u32 %s, %d, %s' % (vA[1], L_W1B - L_W1A, vA[1]))
        e0 = epi(0)
        pre = o.get('epi_pre', 33)
        self.gap = o.get('gap_w2', 56)
        self.pace(True)
        for x in e0[:pre]:
            x() if callable(x) else e(x)
        self.pace(False)
        e('s_barrier', wait_vm=self.w1b_tok)
        self.pace(True)
        seq2 = [(2, s) for s in range(32)] + [(3, s) for s in range(32)]
        for n in range(RA):
            for x in wreads(seq2[n][0], seq2[n][1], n):
                e(x)
        for x in e0[pre:pre + 11]:
            x() if callable(x) else e(x)
        e1 = epi(1)
        cut = o.get('epi_cut', 90)
        fillA = e0[pre + 11:] + e1[:cut]
        fillB = e1[cut:] + epi(2)

        def run(seq, base, fill, extra, lo, hi):
            pos = 0
            for k in range(32):
                n = base + k
                tl, s = seq[n]
                e('v_mfma_f32_32x32x16_bf16 %s, %s, %s, %s' % (acc[tl], WB.sub((n % 8) * 4, 4), HF.sub(4 * s, 4),
                                                               '0' if s == 0 else acc[tl]))
                if n + RA < 64:
                    for x in wreads(seq[n + RA][0], seq[n + RA][1], (n + RA) % 8):
                        e(x)
                upto = 0 if k < lo else min(len(fill), (len(fill) * (k - lo + 1) + (hi - lo) - 1) // (hi - lo))
                while pos < upto:
                    f = fill[pos]
                    f() if callable(f) else e(f)
                    pos += 1
                for f in extra.get(k, []):
                    f() if callable(f) else e(f)
                if o.get('fine4') and k % 8 == 7:
                    self.stamp('r%d' % n)
        run(seq2, 0, fillA, {}, 0, 32)
        e(aug(2))
        self.stamp('t2')
        run(seq2, 32, fillB, {o.get('flagA_at', 20): [flag(0, [0, 1])]}, 2, o.get('epi2_end', 26))
        e(aug(3))
        self.stamp('t3')
        print('bg left after tile 3:', len(self.bg), file=sys.stderr)
        ep = epi_packed(3)
        pa = o.get('pollA_at', 8)
        for k, x in enumerate(ep):
            if k == pa:
                self.pace(False)
                self.poll_issue(vpf, 's82', t[6], 0)
            x() if callable(x) else e(x)
        self.pace(False)
        self.flagB = flag(1, [2])
        self.flagC = flag(2, [3])
        self.stamp('p4end')
        V.release('vA', 'cA0', 'cA1', 'mB2', 'sc')

    def h1_item(self, n):
        e = self.e
        p, m, a = n >> 2, (n >> 1) & 1, n & 1
        e('buffer_load_dwordx4 %s, %s, s[32:35], s%d offen offset:%d sc1' % (
            self.HF.sub((n % 32) * 4, 4), self.vh1[a], 56 + p, m * 1024))

    def p5(self):
        e, V, A = self.e, self.V, self.A
        o = self.o
        t = self.pt
        acc = [self.H, self.acc[0], self.acc[1], self.acc[2]]
        HF, W2 = self.HF, self.W2
        vr = V.alloc('vr5', 4)

        def mf(p):
            out = []
            for m in range(2):
                for a in range(2):
                    for b in range(2):
                        u = 2 * a + b
                        c = '0' if (p == 0 and m == 0 and u != 0) else acc[u]
                        out.append('v_mfma_f32_32x32x16_bf16 %s, %s, %s, %s' % (
                            acc[u], W2.sub((p * 4 + m * 2 + b) * 4, 4), HF.sub(((p % 8) * 4 + m * 2 + a) * 4, 4), c))
            return out
        self.poll_check(self.vpf5, 's82', t[6], 0)
        self.stamp('flagA')
        LA = o.get('la5', 10)
        for n in range(LA):
            self.h1_item(n)
        nxt = LA
        extra = {}

        def add(k, f):
            extra.setdefault(k, []).append(f)
        add(o.get('flagB_at', 0), self.flagB)
        add(o.get('flagC_at', 12), self.flagC)
        add(24 - LA - 7, lambda: self.poll_issue(self.vpf5, 's82', t[6], 128))
        add(24 - LA - 1, lambda: self.poll_check(self.vpf5, 's82', t[6], 128))
        add(40 - LA - 7, lambda: self.poll_issue(self.vpf5, 's82', t[7], 256))
        add(40 - LA - 1, lambda: self.poll_check(self.vpf5, 's82', t[7], 256))

        def addr():
            for u in range(1, 4):
                e('s_xor_b32 s98, s3, %d' % u)
                e('s_mul_i32 s98, s98, 12288')
                e('s_add_u32 s98, s98, %d' % (L_RED5 + (u - 1) * 4096))
                e('v_add_u32 %s, s98, %s' % (vr[u], self.vl16))
            e('s_mul_i32 s98, s3, 12288')
            e('s_add_u32 s98, s98, %d' % L_RED5)
            e('v_add_u32 %s, s98, %s' % (vr[0], self.vl16))
        add(50, addr)
        slot = 0
        for p in range(13):
            for k, s in enumerate(mf(p)):
                if k == 0:
                    assert self.w2_done >= 4 * p + 4
                e(s)
                if k % 2 == 0:
                    if nxt < 56:
                        self.h1_item(nxt)
                        nxt += 1
                    for f in extra.get(slot, []):
                        f()
                    slot += 1
                    if o.get('fine5') and slot % 8 == 0:
                        self.stamp('s%d' % slot)
                elif self.bg and self.w2_done < nxt + o.get('w2_la', 12):
                    self.bg_flush(1)
        assert not self.bg
        last = mf(13)
        for k in [3, 7, 2, 6, 1, 5, 0, 4]:
            e(last[k])
        self.stamp('p5mm')
        wr = []
        for u in (3, 2, 1):
            for g in range(4):
                wr.append(e('ds_write_b128 %s, %s offset:%d' % (vr[u], acc[u].sub(4 * g, 4), g * 1024)))
        e('s_barrier', wait_lgkm=wr)
        for g in range(4):
            for u in (1, 2, 3):
                e('ds_read_b128 %s, %s offset:%d' % (acc[u].sub(4 * g, 4), vr[0], (u - 1) * 4096 + g * 1024))
        PK = HF
        fl = self.o.get('out_flags', '')
        for hf in range(2):
            for g in (2 * hf, 2 * hf + 1):
                for u in (1, 2, 3):
                    for r in range(4 * g, 4 * g + 4, 2):
                        e('v_pk_add_f32 %s, %s, %s' % (acc[0].sub(r, 2), acc[0].sub(r, 2), acc[u].sub(r, 2)))
                for r in range(2 * g, 2 * g + 2):
                    e('v_cvt_pk_bf16_f32 %s, %s, %s' % (PK[r], acc[0][2 * r], acc[0][2 * r + 1]))
            e('v_permlane32_swap_b32 %s, %s' % (PK[4 * hf], PK[4 * hf + 2]))
            e('v_permlane32_swap_b32 %s, %s' % (PK[4 * hf + 1], PK[4 * hf + 3]))
            e('buffer_store_dwordx4 %s, %s, s[28:31], 0 offen offset:%d %s' % (PK.sub(4 * hf, 4), self.vout, 32 * hf, fl))

    def finish(self):
        e = self.e
        t = self.pt
        if self.o.get('stamps'):
            self.stamp('end')
            self.stamp('dummy')
            e('s_waitcnt vmcnt(0) lgkmcnt(0)')
            e('s_memrealtime s[84:85]')
            e('s_lshl_b32 s98, s2, 2')
            e('s_add_u32 s98, s98, s3')
            e('s_lshl_b32 s98, s98, 7')
            e('s_add_u32 s98, s98, 0x%x' % WS_STAMP)
            for k, r in ((27, 's84'), (28, 's94'), (29, 's96'), (30, 's7'), (31, 's0')):
                e('v_writelane_b32 %s, %s, %d' % (self.vstamp, r, k))
            e('v_lshlrev_b32 %s, 2, %s' % (t[0], self.vlane))
            e('v_lshl_add_u32 %s, %s, 29, %s' % (t[0], self.vh, t[0]))
            e('buffer_store_dword %s, %s, s[32:35], s98 offen' % (self.vstamp, t[0]))
            if self.o.get('dbgstamps'):
                e('s_not_b32 s98, s94')
                e('v_mov_b32 %s, s98' % t[2])
                e('v_mov_b32 %s, s84' % t[3])
                e('v_mov_b32 %s, 4' % t[4])
                e('s_mov_b64 exec, 1')
                e.raw('    global_atomic_umax %s, %s, s[36:37]' % (t[4], t[2]))
                e.raw('    global_atomic_umax %s, %s, s[36:37] offset:4' % (t[4], t[3]))
                e('s_mov_b64 exec, -1')
                e('s_cmp_lg_u32 s2, %d' % self.o.get('dbgwg', 100))
                e('s_cbranch_scc1 L_nodbg')
                e('s_cmp_lg_u32 s3, 0')
                e('s_cbranch_scc1 L_nodbg')
                e('v_readlane_b32 s98, %s, 0' % self.vstamp)
                e('s_sub_u32 s99, s84, s94')
                e('v_subrev_u32 %s, s98, %s' % (self.vstamp, self.vstamp))
                sel = self.o.get('dbgsel', 'dma0,chunk0,kvpub,qdone,attn,oflag,hflag,p4a,p4end,p5mm,end').split(',')
                e('v_mov_b32 %s, s99' % t[2])
                e('v_mov_b32 %s, 12' % t[4])
                e.raw('    global_store_dword %s, %s, s[36:37]' % (t[4], t[2]))
                for k, nm in enumerate(sel):
                    e('v_readlane_b32 s98, %s, %d' % (self.vstamp, self.stamp_names.index(nm)))
                    e('s_nop 3')
                    e('v_mov_b32 %s, s98' % t[2])
                    e('v_mov_b32 %s, %d' % (t[4], 20 + 4 * k))
                    e.raw('    global_store_dword %s, %s, s[36:37]' % (t[4], t[2]))
                    e('s_nop 1')
                e('L_nodbg:')
        if self.o.get('padto'):
            if self.o.get('pad0'):
                e('v_mov_b32 %s, 0' % t[1])
                e('global_load_dword %s, %s, s[36:37] offset:32 sc1' % (t[2], t[1]))
                e('v_readfirstlane_b32 s94, %s' % t[2])
                e('s_nop 3')
            e('L_pad:')
            e('s_memrealtime s[84:85]')
            e('s_waitcnt lgkmcnt(0)')
            e('s_sub_u32 s98, s84, s94')
            e('s_cmp_lt_u32 s98, %d' % self.o.get('padto'))
            e('s_cbranch_scc1 L_pad')
        e('s_cmp_gt_u32 s96, s97')
        e('s_cbranch_scc0 L_end')
        e('v_mov_b32 %s, 16' % t[0])
        e('v_mov_b32 %s, 0xdead' % t[1])
        e('global_store_dword %s, %s, s[36:37]' % (t[0], t[1]))
        e('L_end:')
        e('s_endpgm')

    def text(self):
        hdr = open('sequential_preLN__sliding_block__dense_activation_silu__prompt.s.ref').read()
        head = [l for l in hdr.split('\n') if l.startswith(';') and '@launch' not in l]
        out = '\n'.join(head) + '\n'
        if self.stamp_names:
            out += '; stamps %s %s\n' % (','.join(self.stamp_names[:-1]), ','.join(str(x) for x in self.stamp_model[:-1]))
        out += '; @launch grid=(256,1,1) block=(256,1,1) lds=%d\n' % LDS_BYTES
        out += '.amdgcn_target "amdgcn-amd-amdhsa--gfx950"\n.text\n.globl %s\n.p2align 8\n.type %s,@function\n%s:\n' % (
            KNAME, KNAME, KNAME)
        out += self.e.text()
        for tl in self.tail:
            out += tl
        out += 'L_codeend:\n'
        out += self.cold
        out += '.p2align 6\n.type L_tab,@object\nL_tab:\n'
        for p in range(256):
            for w in range(4):
                out += '.long ' + ','.join(str(v) for v in table_entry(p, w, self.o)) + '\n'
        out += '.size L_tab, %d\n' % (1024 * TAB_STRIDE)
        out += '.section .rodata,"a"\n.p2align 6\n.amdhsa_kernel %s\n' % KNAME
        out += '  .amdhsa_next_free_vgpr 512\n  .amdhsa_next_free_sgpr 102\n  .amdhsa_accum_offset 256\n'
        out += '  .amdhsa_group_segment_fixed_size 0\n  .amdhsa_kernarg_size 72\n  .amdhsa_user_sgpr_count 2\n'
        out += '  .amdhsa_user_sgpr_kernarg_segment_ptr 1\n  .amdhsa_system_sgpr_workgroup_id_x 1\n.end_amdhsa_kernel\n'
        return out


def check_descriptors(txt):
    import re
    want = {8: 0, 12: 8, 16: 16, 20: 32, 24: 40, 28: 48, 32: 64}
    size = {8: 2048 * 1024, 12: 512 * 3072, 16: 512 * 1024, 20: 512 * 3584, 24: 1792 * 1024, 28: 2048 * 1024,
            32: WS_BYTES}
    tag = {0: ('kp', 0), 1: ('kp', 1)}
    for line in txt.split('\n'):
        t = line.split(';')[0].strip()
        if not t or t.startswith('.') or t.endswith(':'):
            continue
        i = Ins(t) if not t.startswith('global_atomic') else None
        m = re.search(r's\[(\d+):(\d+)\]', t)
        if t.startswith('buffer_'):
            b = [int(x[0]) for x in re.findall(r's\[(\d+):(\d+)\]', t) if int(x[1]) - int(x[0]) == 3][0]
            assert tag.get(b) == ('ka', want[b]) and tag.get(b + 1) == ('ka', want[b] + 4), t
            assert tag.get(b + 2) == ('c', size[b]) and tag.get(b + 3) == ('c', 0x20000), t
        if t.startswith('global_'):
            b = int(m.group(1))
            assert (tag.get(b), tag.get(b + 1)) in ((('ka', 56), ('ka', 60)), (('pc', 0), ('pc', 1))), t
        if i is None:
            continue
        if t.startswith('s_load'):
            ops = [x.strip() for x in t.split(None, 1)[1].split(',')]
            b = int(re.match(r's\[(\d+)', ops[1]).group(1))
            src = (tag.get(b), tag.get(b + 1))
            assert src in ((('kp', 0), ('kp', 1)), (('tab', 0), ('tab', 1)), (('ka', 64), ('ka', 68))), t
            for k, r in enumerate(sorted(x[1] for x in i.defs)):
                tag[r] = ('ka', int(ops[2]) + 4 * k) if src[0] == ('kp', 0) else None
            continue
        ds = sorted(x[1] for x in i.defs if x[0] == 's' and isinstance(x[1], int))
        ops = [x.strip() for x in t.split(None, 1)[1].split(',')] if ' ' in t else []
        if t.startswith('s_getpc'):
            tag[ds[0]], tag[ds[1]] = ('pc', 0), ('pc', 1)
        elif t.startswith('s_add_u32 s92, s92') and tag.get(92) == ('pc', 0):
            tag[92] = ('tab', 0)
        elif t.startswith('s_addc_u32 s93, s93, 0'):
            tag[93] = ('tab', 1)
        elif t.startswith('s_mov_b32') and ds and re.fullmatch(r's\d+', ops[1]):
            tag[ds[0]] = tag.get(int(ops[1][1:]))
        elif t.startswith('s_mov_b32') and ds:
            tag[ds[0]] = ('c', int(ops[1], 0))
        elif t.startswith('s_mov_b64') and len(ds) == 2 and ops[1].startswith('s['):
            b = int(re.match(r's\[(\d+)', ops[1]).group(1))
            tag[ds[0]], tag[ds[1]] = tag.get(b), tag.get(b + 1)
        elif t.startswith('s_and_b32') and ds and ops[2] == '0xffff':
            tag[ds[0]] = tag.get(int(ops[1][1:]))
        else:
            for r in ds:
                tag[r] = None


def parse_opts(args):
    o = {}
    for a in args:
        if '=' in a:
            k, v = a.split('=', 1)
            try:
                v = int(v)
            except ValueError:
                pass
            o[k] = v
        else:
            o[a] = 1
    return o


if __name__ == '__main__':
    path = sys.argv[1]
    g = Gen(parse_opts(sys.argv[2:]))
    txt = g.build()
    check_descriptors(txt)
    open(path, 'w').write(txt)
    print('wrote', path, len(txt), 'bytes; model cycles', g.e.now, 'stamps', ','.join(g.stamp_names[:-1]))
```
